```python
import torch

def _softmax(x, axis=-1):
    return torch.softmax(x, dim=axis)
def _gelu(x):
    return torch.nn.functional.gelu(x, approximate="tanh")
def _silu(x):
    return torch.nn.functional.silu(x)
def _sigmoid(x):
    return torch.sigmoid(x)
def _layernorm(x, axis=-1, eps=1e-5):
    m = x.mean(dim=axis, keepdim=True)
    v = x.var(dim=axis, keepdim=True, unbiased=False)
    return (x - m) / torch.sqrt(v + eps)
def _scatter_add(tgt, idx, src, axis=0):
    return tgt.clone().index_add_(axis, idx, src)
def _segment_sum(src, seg, n):
    out = torch.zeros((n,) + src.shape[1:], dtype=src.dtype)
    return out.index_add_(0, seg, src)
def _pad(x, pw):
    flat = tuple(v for pair in reversed(pw) for v in pair)
    return torch.nn.functional.pad(x, flat)

kernel_name = 'sequential_preLN__mha_block_cached__mixer_token_mlp__decode'

def setup_inputs():

    _w = (lambda a: (lambda t: t.to(torch.bfloat16) if t.is_floating_point() else t)(torch.as_tensor(a)))
    def _A_setup():
        B, Sq, D = 2, 1, 640
        H, Sk, Dh = 32, 8192, 128
        return {
            "x": _w((lambda *s: torch.randn(*s, dtype=torch.bfloat16) * 0.05)(B, Sq, D)),
            "k_cache": _w((lambda *s: torch.randn(*s, dtype=torch.bfloat16) * 3.2)(B, H, Sk, Dh)),
            "v_cache": _w((lambda *s: torch.randn(*s, dtype=torch.bfloat16) * 0.8)(B, H, Sk, Dh)),
            "wq": _w((lambda *s: torch.randn(*s, dtype=torch.bfloat16) * 3.2)(D, H * Dh) * (D ** -0.5)),
            "wo": _w((lambda *s: torch.randn(*s, dtype=torch.bfloat16) * 0.8)(H * Dh, D) * ((H * Dh) ** -0.5)),
        }
    _A_in = _A_setup()

    def _B_setup():
        B, S, D, F = 2, 1, 640, 1728
        return {
            "x": _w((lambda *s: torch.randn(*s, dtype=torch.bfloat16) * 0.05)(B, S, D)),
            "w1": _w((lambda *s: torch.randn(*s, dtype=torch.bfloat16) * 1.6)(S, F) * (S ** -0.5)),
            "b1": _w((lambda *s: torch.randn(*s, dtype=torch.bfloat16) * 1.6)(F) * 0.02),
            "w2": _w((lambda *s: torch.randn(*s, dtype=torch.bfloat16) * 1.6)(F, S) * (F ** -0.5)),
            "b2": _w((lambda *s: torch.randn(*s, dtype=torch.bfloat16) * 0.8)(S) * 0.02),
        }
    _B_in = _B_setup()

    return {
        "A_x": _A_in["x"],
        "A_k_cache": _A_in["k_cache"],
        "A_v_cache": _A_in["v_cache"],
        "A_wq": _A_in["wq"],
        "A_wo": _A_in["wo"],
        "B_x": _B_in["x"],
        "B_w1": _B_in["w1"],
        "B_b1": _B_in["b1"],
        "B_w2": _B_in["w2"],
        "B_b2": _B_in["b2"],
    }

def reference(A_x, A_k_cache, A_v_cache, A_wq, A_wo, B_x, B_w1, B_b1, B_w2, B_b2):
    def _A_ref(x, k_cache, v_cache, wq, wo):
        B, Sq, D = x.shape
        H, Dh = 32, 128
        q = (lambda x, *d: x.permute(*d))((x @ wq).reshape(B, Sq, H, Dh), 0, 2, 1, 3)
        scores = torch.einsum("bhqd,bhkd->bhqk", q, k_cache) * (Dh ** -0.5)
        p = _softmax(scores, axis=-1)
        o = torch.einsum("bhqk,bhkd->bhqd", p, v_cache)
        return (lambda x, *d: x.permute(*d))(o, 0, 2, 1, 3).reshape(B, Sq, H * Dh) @ wo

    def _B_ref(x, w1, b1, w2, b2):
        B, S, D = x.shape
        h = _layernorm(x, axis=-1)
        u = torch.einsum("bsd,sf->bdf", h, w1) + b1
        u = _gelu(u)
        y = torch.einsum("bdf,fs->bds", u, w2) + b2
        return (lambda x, *d: x.permute(*d))(y, 0, 2, 1)

    x = A_x
    h = x + _A_ref(_layernorm(x, axis=-1), A_k_cache, A_v_cache, A_wq, A_wo)
    h2 = h + _B_ref(_layernorm(h, axis=-1), B_w1, B_b1, B_w2, B_b2)
    return h2
```

```python
import sys, struct, argparse

NAME = "sequential_preLN__mha_block_cached__mixer_token_mlp__decode"
KN = NAME + "_kernel"

def f2u(x): return struct.unpack("<I", struct.pack("<f", x))[0]

class P:
    D = 16
    W = 6
    STRIDE = 1
    ROT = 4
    R = 4
    WQPOL = "nt"
    WOPOL = "nt"
    KFIRST = 4
    NPRO = 24
    WPRO = 4
    QPOLL_AT = 16
    QPOLL_USE = 19
    WO_START = 6
    WO_EVERY = 2
    POLL_AT = 40
    POLL_USE = 52
    TAB_AT = 24
    TAB_USE = 36
    DIAG = 0
    XTAB = 1
    XWO = 1
    MWPOL = "nt"

WS_E = 0x0
WS_ZF = 0x1000
WS_ML = 0x2000
WS_TAB = 0x10000
WS_ACC = 0x20000
REP_STRIDE = 3584
NGRAN = 214
WS_QG = 0x40000
WS_DIAG = 0x100000
L_QP = 0
L_Q1 = 16384
L_MW = 4096
L_OUTP = 16384
L_TAB = 36864
L_FIN = 53248
LDS_BYTES = 57344
EMIN = 108
LOG2E = 1.4426950408889634
FINAL_IDS = (0, 34)

class G:
    def __init__(s):
        s.L = []; s.fifo = []; s.lab = 0; s.nv = 0; s.names = {}
    def e(s, t):
        for x in t.split("\n"):
            x = x.strip()
            if x: s.L.append(("    " if not x.endswith(":") else "") + x)
    def c(s, t): s.L.append("    ; " + t)
    def label(s, p="L"):
        s.lab += 1; return f"{p}{s.lab}"
    def v(s, name, n=1, align=1):
        s.nv = (s.nv + align - 1)//align*align
        r = s.nv; s.nv += n; s.names[name] = r; return r
    def vm(s, text, tag):
        s.e(text); s.fifo.append(tag); assert len(s.fifo) <= 63, len(s.fifo)
    def wait(s, tag):
        if tag not in s.fifo: return
        i = s.fifo.index(tag); n = len(s.fifo) - 1 - i
        s.e(f"s_waitcnt vmcnt({n})"); del s.fifo[:i+1]
    def throttle(s, n):
        if len(s.fifo) > n:
            s.e(f"s_waitcnt vmcnt({n})"); del s.fifo[:len(s.fifo)-n]

def vr(r, n): return f"v[{r}:{r+n-1}]"
DPP = "row_mask:0xf bank_mask:0xf"

def wave_reduce(g, op, regs, nsteps=6):
    steps = [f"row_ror:8 {DPP}", f"row_ror:4 {DPP}", f"row_ror:2 {DPP}", f"row_ror:1 {DPP}",
             "row_bcast:15 row_mask:0xa bank_mask:0xf", "row_bcast:31 row_mask:0xc bank_mask:0xf"]
    for st in steps[:nsteps]:
        for r in regs: g.e(f"{op}_dpp v{r}, v{r}, v{r} {st}")
        pad = 2 - (len(regs) - 1)
        if pad > 0: g.e(f"s_nop {pad-1}")

def bf16r(g, d, s_):
    g.e(f"v_cvt_pk_bf16_f32 v{d}, v{s_}, v{s_}\n v_and_b32 v{d}, 0xffff0000, v{d}")

def stamp(g, k):
    if P.DIAG: g.e(f"s_memrealtime s[{60+2*k}:{61+2*k}]")

def gen():
    g = G(); e = g.e
    D, W = P.D, P.W
    g.v("tid"); vLANE = g.v("lane"); vL16 = g.v("l16"); vOFF = g.v("off")
    vMK = g.v("mask", 4); vA = g.v("A", 8, 2); vQ = g.v("q", 4, 2); vS = g.v("S", 4); vACC = g.v("acc", 4, 2)
    vB = g.v("b", 8, 2); vT = g.v("t", 16, 2)
    vTA = g.v("tacc", 3); vTL = g.v("tlds"); vXF = g.v("xfin", 3); vML = g.v("ml", 4, 2); vMISC = g.v("misc", 8, 2)
    vB2 = g.v("b2"); vTB = g.v("tabld", 16, 2)
    vR = g.v("ring", 4*D, 2); vWB = g.v("wb", 80, 2)
    NX = P.NPRO - D
    def ring(i):
        if i < D: return vR + 4*i
        if i < D + NX: return vWB + 80 - 4*NX + 4*(i - D)
        return vR + 4*((i - D - NX) % D)
    def slot_free_after(i):
        if i < D + NX: return -1
        return i - D - NX if i - D - NX < D else i - D
    sX, sK, sV, sWQ, sWO, sW1, sB1 = "s[8:9]", "s[10:11]", "s[12:13]", "s[14:15]", "s[16:17]", "s[20:21]", "s[22:23]"
    sW2, sB2, sOUT, sWS = "s[24:25]", "s[26:27]", "s[28:29]", "s[32:33]"
    SW, SH, SB, SS, ST, SFIN = "s34", "s35", "s36", "s37", "s38", "s39"
    e(f"{KN}:")
    e("s_cmp_ge_u32 s2, 256\n s_cbranch_scc1 Lend")
    stamp(g, 0)
    e("s_load_dwordx16 s[8:23], s[0:1], 0\n s_load_dwordx8 s[24:31], s[0:1], 64\n s_load_dwordx2 s[32:33], s[0:1], 96")
    e(f"v_lshrrev_b32 v{vT}, 6, v0\n v_and_b32 v{vLANE}, 63, v0")
    e(f"v_readfirstlane_b32 {SW}, v{vT}")
    e(f"v_lshlrev_b32 v{vL16}, 4, v{vLANE}")
    e(f"s_and_b32 s52, s2, 7\n s_lshl_b32 s52, s52, 2\n s_lshr_b32 s53, s2, 6\n s_add_u32 {SH}, s52, s53")
    e(f"s_bfe_u32 {SB}, s2, 0x10005\n s_bfe_u32 {SS}, s2, 0x20003")
    e(f"s_mov_b32 {SFIN}, 0\n s_cmp_eq_u32 s2, {FINAL_IDS[0]}\n s_cselect_b32 {SFIN}, 1, {SFIN}\n s_cmp_eq_u32 s2, {FINAL_IDS[1]}\n s_cselect_b32 {SFIN}, 1, {SFIN}")
    e(f"s_lshl_b32 s52, {SB}, 5\n s_add_u32 s52, s52, {SH}\n s_lshl_b32 s54, s52, 2\n s_add_u32 s54, s54, {SS}")
    e(f"s_lshl_b32 s53, s54, 19\n s_lshl_b32 s55, {SW}, 16\n s_add_u32 s53, s53, s55")
    e(f"s_mul_i32 s55, {SW}, {P.ROT*1024}\n v_add_u32 v{vOFF}, s55, v{vL16}\n v_and_b32 v{vOFF}, 0xffff, v{vOFF}")
    vG, vC = vMISC, vMISC+1
    e(f"v_lshrrev_b32 v{vG}, 4, v{vLANE}\n v_and_b32 v{vC}, 15, v{vLANE}")
    vWQO, vXQ, vXO = vMISC+2, vMISC+3, vMISC+6
    e(f"s_and_b32 s55, s2, 7\n s_mul_i32 s55, s55, 80\n s_lshl_b32 s56, {SW}, 2\n s_add_u32 s55, s55, s56")
    e(f"v_add_u32 v{vWQO}, s55, v{vG}")
    e(f"v_lshrrev_b32 v{vT}, 3, v{vC}\n v_mul_u32_u24 v{vT}, 640, v{vT}\n v_add_lshl_u32 v{vXQ}, v{vT}, v{vWQO}, 1")
    e(f"v_lshlrev_b32 v{vWQO}, 13, v{vWQO}\n v_lshl_add_u32 v{vWQO}, v{vC}, 4, v{vWQO}\n s_lshr_b32 s56, s2, 3\n s_lshl_b32 s56, s56, 8\n v_add_u32 v{vWQO}, s56, v{vWQO}")
    e(f"v_lshrrev_b32 v{vT}, 5, v{vLANE}\n v_mul_u32_u24 v{vT}, 1280, v{vT}\n v_and_b32 v{vXO}, 31, v{vLANE}\n v_lshl_add_u32 v{vXO}, v{vXO}, 3, v{vT}")
    e(f"v_bfe_u32 v{vT}, v{vC}, 1, 2\n v_and_b32 v{vT+1}, 1, v{vC}\n v_lshlrev_b32 v{vT+1}, 4, v{vT+1}\n v_mov_b32 v{vT+2}, 0xffff\n v_lshlrev_b32 v{vT+1}, v{vT+1}, v{vT+2}")
    for r in range(4):
        e(f"v_cmp_eq_u32 vcc, {r}, v{vT}\n s_nop 1\n v_cndmask_b32 v{vMK+r}, 0, v{vT+1}, vcc")
    e("s_waitcnt lgkmcnt(0)")
    stamp(g, 1)
    e("s_add_u32 s10, s10, s53\n s_addc_u32 s11, s11, 0")
    def kv_issue(i):
        r = ring(i); base = sK if i < 64 else sV
        g.vm(f"global_load_dwordx4 {vr(r,4)}, v{vOFF}, {base} nt", ("kv", i))
        e(f"v_add_u32 v{vOFF}, {P.STRIDE*1024}, v{vOFF}\n v_and_b32 v{vOFF}, 0xffff, v{vOFF}")
    e(f"s_load_dword {ST}, {sWS}, {WS_E}")
    e(f"s_lshl_b32 s55, {SB}, 15\n s_add_u32 s55, s55, {WS_ACC}\n s_add_u32 s44, s32, s55\n s_addc_u32 s45, s33, 0")
    e(f"s_mov_b32 s46, {P.R*REP_STRIDE}\n s_mov_b32 s47, 0x20000")
    lz = g.label("Lnz")
    e(f"s_cmp_eq_u32 {SFIN}, 0\n s_cbranch_scc1 {lz}")
    e(f"v_mov_b32 v{vT+4}, 0\n v_mov_b32 v{vT+5}, 0\n v_mov_b32 v{vT+6}, 0\n v_mov_b32 v{vT+7}, 0\n v_lshlrev_b32 v{vT}, 4, v0")
    for k in range((P.R*REP_STRIDE + 8191)//8192):
        e(f"s_mov_b32 s55, {k*8192}\n buffer_store_dwordx4 {vr(vT+4,4)}, v{vT}, s[44:47], s55 offen sc1")
    e(f"{lz}:")
    vXD = vWB
    for k in range(5): g.vm(f"global_load_dwordx2 {vr(vXD+2*k,2)}, v{vXO}, {sX} offset:{256*k}", ("x", k))
    e(f"s_mov_b32 s48, s14\n s_mov_b32 s49, s15\n s_mov_b32 s50, {640*8192}\n s_mov_b32 s51, 0x20000")
    e(f"s_mov_b32 s55, {32*8192}\n s_mov_b32 s56, {64*8192}\n s_cmp_lt_u32 {SW}, 4\n s_cselect_b32 s56, s56, {640*8192}")
    vWQ = vWB + 12
    g.vm(f"buffer_load_dwordx4 {vr(vWQ,4)}, v{vWQO}, s[48:51], 0 offen {P.WQPOL}", ("wq", 0))
    g.vm(f"buffer_load_dwordx4 {vr(vWQ+4,4)}, v{vWQO}, s[48:51], s55 offen {P.WQPOL}", ("wq", 1))
    g.vm(f"buffer_load_dwordx4 {vr(vWQ+8,4)}, v{vWQO}, s[48:51], s56 offen {P.WQPOL}", ("wq", 2))
    e(f"s_mov_b32 s48, s8\n s_mov_b32 s49, s9\n s_mov_b32 s50, 2560")
    g.vm(f"buffer_load_ushort v{vXQ+1}, v{vXQ}, s[48:51], 0 offen offset:64", ("xq", 1))
    g.vm(f"buffer_load_ushort v{vXQ+2}, v{vXQ}, s[48:51], 0 offen offset:128", ("xq", 2))
    g.vm(f"buffer_load_ushort v{vXQ}, v{vXQ}, s[48:51], 0 offen", ("xq", 0))
    nk = 0
    for _ in range(P.KFIRST): kv_issue(nk); nk += 1
    e("s_add_u32 s12, s12, s53\n s_addc_u32 s13, s13, 0")
    rep = f"s_mov_b32 s55, {SS}" if P.R == 4 else f"s_and_b32 s55, {SH}, {P.R//4-1}\n s_lshl_b32 s55, s55, 2\n s_add_u32 s55, s55, {SS}"
    e(rep)
    e(f"s_mul_i32 s55, s55, {REP_STRIDE}\n s_add_u32 s40, s44, s55\n s_addc_u32 s41, s45, 0\n s_mov_b32 s42, {NGRAN*16}\n s_mov_b32 s43, 0x20000")
    e("s_mov_b32 s4, 0\n s_mov_b32 s5, -1\n s_mov_b32 s6, 0xff00ff00\n s_mov_b32 s7, 0xff00ff00")
    g.wait(("x", 4))
    X = vWB + 24
    for k in range(10): e(f"v_lshlrev_b32 v{X+2*k}, 16, v{vXD+k}\n v_and_b32 v{X+2*k+1}, 0xffff0000, v{vXD+k}")
    e(f"v_readlane_b32 s55, v{X}, 0\n v_readlane_b32 s56, v{X}, 32\n s_nop 0\n v_mov_b32 v{vT}, s55\n v_mov_b32 v{vT+1}, s56")
    e(f"v_cndmask_b32 v{vT+2}, v{vT}, v{vT+1}, s[4:5]\n v_cndmask_b32 v{vT+3}, v{vT}, v{vT+1}, s[6:7]")
    for k in range(20): e(f"v_sub_f32 v{X+k}, v{X+k}, v{vT+2}")
    S1, S2 = vT+10, vT+11
    e(f"v_add_f32 v{S1}, v{X}, v{X+1}\n v_mul_f32 v{S2}, v{X}, v{X}\n v_fmac_f32 v{S2}, v{X+1}, v{X+1}")
    for k in range(2, 20): e(f"v_add_f32 v{S1}, v{S1}, v{X+k}\n v_fmac_f32 v{S2}, v{X+k}, v{X+k}")
    e("s_nop 1")
    wave_reduce(g, "v_add_f32", [S1, S2], 5)
    e(f"v_readlane_b32 s55, v{S1}, 31\n v_readlane_b32 s56, v{S1}, 63\n v_readlane_b32 s57, v{S2}, 31\n v_readlane_b32 s58, v{S2}, 63")
    M_, V_ = vT+12, vT+13
    e(f"v_mov_b32 v{vT}, s55\n v_mov_b32 v{vT+1}, s56\n v_mov_b32 v{vT+4}, s57\n v_mov_b32 v{vT+5}, s58")
    e(f"v_cndmask_b32 v{M_}, v{vT}, v{vT+1}, s[6:7]\n v_cndmask_b32 v{V_}, v{vT+4}, v{vT+5}, s[6:7]")
    e(f"v_mul_f32 v{M_}, {f2u(1.0/640):#x}, v{M_}\n v_mul_f32 v{V_}, {f2u(1.0/640):#x}, v{V_}")
    e(f"v_fma_f32 v{V_}, -v{M_}, v{M_}, v{V_}\n v_add_f32 v{M_}, v{vT+3}, v{M_}\n v_max_f32 v{V_}, 0, v{V_}")
    def ln_finish(M_, V_):
        bf16r(g, M_, M_); bf16r(g, V_, V_)
        e(f"v_add_f32 v{V_}, {f2u(1e-5):#x}, v{V_}"); bf16r(g, V_, V_)
        e(f"v_sqrt_f32 v{V_}, v{V_}\n s_nop 0"); bf16r(g, V_, V_)
        e(f"v_rcp_f32 v{V_}, v{V_}\n s_nop 0")
    ln_finish(M_, V_)
    g.wait(("xq", 0))
    for r in range(4): e(f"v_mov_b32 v{vACC+r}, 0")
    for k in range(3):
        r = vXQ + k
        e(f"v_lshlrev_b32 v{r}, 16, v{r}\n v_sub_f32 v{r}, v{r}, v{M_}"); bf16r(g, r, r)
        e(f"v_mul_f32 v{r}, v{r}, v{V_}\n v_cvt_pk_bf16_f32 v{r}, v{r}, v{r}")
        a_ = vA + 4*(k & 1)
        for j in range(4): e(f"v_and_b32 v{a_+j}, v{r}, v{vMK+j}")
        e(f"s_nop 1\n v_mfma_f32_16x16x32_bf16 {vr(vACC,4)}, {vr(a_,4)}, {vr(vWQ+4*k,4)}, {vr(vACC,4)}")
    stamp(g, 2)
    ab = [0]
    def rowmac(acc, src, lane, data, build=True):
        if build:
            ab[0] ^= 1
            a = vA + 4*ab[0]
            for r in range(4): e(f"v_and_b32_dpp v{a+r}, v{src}, v{vMK+r} row_newbcast:{lane} {DPP}")
            e("s_nop 1")
        a = vA + 4*ab[0]
        e(f"v_mfma_f32_16x16x32_bf16 {vr(acc,4)}, {vr(a,4)}, {vr(data,4)}, {vr(acc,4)}")
    e(f"s_lshl_b32 s55, {SW}, 10\n v_add_u32 v{vT}, s55, v{vL16}\n v_lshlrev_b32 v{vT+1}, 3, v0\n s_nop 4")
    e(f"ds_write_b128 v{vT}, {vr(vACC,4)} offset:{L_Q1}")
    e("s_waitcnt lgkmcnt(0)\n s_barrier")
    e(f"s_mul_i32 {ST}, {ST}, 1664525\n s_add_u32 {ST}, {ST}, 1013904223")
    lq = g.label("Lq")
    e(f"s_cmp_ge_u32 {SW}, 2\n s_cbranch_scc1 {lq}")
    for w in range(8): e(f"ds_read_b64 {vr(vWB+2*w,2)}, v{vT+1} offset:{L_Q1 + w*1024}")
    e(f"s_lshr_b32 s55, s2, 3\n s_lshl_b32 s55, s55, 1\n s_add_u32 s55, s55, {SW}\n s_lshl_b32 s55, s55, 3\n s_and_b32 s56, s2, 7\n s_add_u32 s55, s55, s56")
    e(f"s_lshl_b32 s55, s55, 10\n s_add_u32 s55, s55, {WS_QG}\n v_add_u32 v{vT+2}, s55, v{vL16}\n v_mov_b32 v{vT+5}, {ST}\n v_mov_b32 v{vT+7}, {ST}")
    e("s_waitcnt lgkmcnt(0)")
    for k in range(2):
        e(f"v_add_f32 v{vWB+k}, v{vWB+k}, v{vWB+2+k}\n v_add_f32 v{vWB+4+k}, v{vWB+4+k}, v{vWB+6+k}\n v_add_f32 v{vWB+8+k}, v{vWB+8+k}, v{vWB+10+k}\n v_add_f32 v{vWB+12+k}, v{vWB+12+k}, v{vWB+14+k}")
    for k in range(2):
        e(f"v_add_f32 v{vWB+k}, v{vWB+k}, v{vWB+4+k}\n v_add_f32 v{vWB+8+k}, v{vWB+8+k}, v{vWB+12+k}")
    e(f"v_add_f32 v{vT+4}, v{vWB}, v{vWB+8}\n v_add_f32 v{vT+6}, v{vWB+1}, v{vWB+9}")
    e(f"global_store_dwordx4 v{vT+2}, {vr(vT+4,4)}, {sWS} sc1")
    e(f"{lq}:")
    lz = g.label("Lnf")
    e(f"s_cmp_eq_u32 {SFIN}, 0\n s_cbranch_scc1 {lz}\n s_cmp_lg_u32 {SW}, 0\n s_cbranch_scc1 {lz}")
    e(f"v_mov_b32 v{vT+4}, {ST}\n v_mov_b32 v{vT+5}, {ST}\n v_mov_b32 v{vT+6}, {ST}\n v_mov_b32 v{vT+7}, {ST}")
    e(f"s_lshl_b32 s55, {SB}, 8\n s_add_u32 s55, s55, {WS_ZF}\n v_mov_b32 v{vT+8}, s55\n s_mov_b64 exec, 1")
    e(f"global_store_dwordx4 v{vT+8}, {vr(vT+4,4)}, {sWS} sc1\n s_mov_b64 exec, -1")
    e(f"{lz}:")
    e(f"v_lshlrev_b32 v{vT+3}, 2, v0")
    for a, sp in enumerate([(20,21), (22,23), (24,25)]):
        e(f"s_mov_b32 s48, s{sp[0]}\n s_mov_b32 s49, s{sp[1]}\n s_mov_b32 s50, 3456")
        g.vm(f"buffer_load_dword v{vTB+2*a}, v{vT+3}, s[48:51], 0 offen {P.MWPOL}", ("mw", 2*a))
        g.vm(f"buffer_load_dword v{vTB+2*a+1}, v{vT+3}, s[48:51], 0 offen offset:2048 {P.MWPOL}", ("mw", 2*a+1))
    e(f"v_mov_b32 v{vB2}, 0")
    g.vm(f"global_load_ushort v{vB2}, v{vB2}, {sB2}", ("b2", 0))
    e(f"s_lshl_b32 s55, {SH}, 1\n s_add_u32 s55, s55, {SB}\n s_lshl_b32 s55, s55, 3\n s_add_u32 s55, s55, {SW}\n s_lshl_b32 s55, s55, 10\n s_add_u32 s55, s55, {WS_QG}")
    e(f"v_add_u32 v{vMISC+2}, s55, v{vL16}\n s_lshl_b32 s55, {SW}, 9\n v_lshl_add_u32 v{vMISC+3}, v{vLANE}, 3, s55")
    while nk < P.NPRO:
        if nk < P.QPOLL_USE + 1: inflight_cap(g, P.WPRO)
        kv_issue(nk); nk += 1
        if nk == P.KFIRST + 4:
            g.wait(("b2", 0))
            e(f"v_lshlrev_b32 v{vB2}, 16, v{vB2}")
            for a in range(3): e(f"ds_write_b32 v{vT+3}, v{vTB+2*a} offset:{L_MW + a*3584}")
            e(f"v_cmp_gt_u32 vcc, 384, v0\n s_and_saveexec_b64 s[56:57], vcc")
            for a in range(3): e(f"ds_write_b32 v{vT+3}, v{vTB+2*a+1} offset:{L_MW + a*3584 + 2048}")
            e("s_mov_b64 exec, s[56:57]")
        if nk == P.QPOLL_AT:
            g.vm(f"global_load_dwordx4 {vr(vML,4)}, v{vMISC+2}, {sWS} sc1", ("qg", 0))
        if nk == P.QPOLL_USE:
            g.wait(("qg", 0))
            lr = g.label("Lqr"); lo = g.label("Lqo")
            e("s_mov_b32 s3, 0x40000")
            e(f"{lr}:")
            e(f"v_xor_b32 v{vT}, {ST}, v{vML+1}\n v_xor_b32 v{vT+1}, {ST}, v{vML+3}\n v_or_b32 v{vT}, v{vT}, v{vT+1}")
            e(f"v_cmp_ne_u32 vcc, 0, v{vT}\n s_cbranch_vccz {lo}")
            e(f"s_sub_u32 s3, s3, 1\n s_cbranch_scc1 {lo}\n s_sleep 1")
            e(f"global_load_dwordx4 {vr(vML,4)}, v{vMISC+2}, {sWS} sc1\n s_waitcnt vmcnt(0)\n s_branch {lr}")
            e(f"{lo}:")
            e(f"v_mov_b32 v{vML+1}, v{vML+2}\n ds_write_b64 v{vMISC+3}, {vr(vML,2)} offset:{L_QP}")
    e(f"v_lshlrev_b32 v{vT}, 4, v{vC}")
    e("s_waitcnt lgkmcnt(0)\n s_barrier")
    QS = vWB
    for half in range(2):
        for w in range(4):
            o = L_QP + (4*half + w)*512
            e(f"ds_read_b128 {vr(QS+8*w,4)}, v{vT} offset:{o}\n ds_read_b128 {vr(QS+8*w+4,4)}, v{vT} offset:{o + 256}")
        for w in range(4):
            e(f"s_waitcnt lgkmcnt({6-2*w})")
            for k in range(8):
                if half == 0 and w == 0: e(f"v_mov_b32 v{vB+k}, v{QS+k}")
                else: e(f"v_add_f32 v{vB+k}, v{vB+k}, v{QS+8*w+k}")
    for k in range(4): e(f"v_cvt_pk_bf16_f32 v{vQ+k}, v{vB+2*k}, v{vB+2*k+1}")
    e(f"s_lshl_b32 s55, s2, 3\n s_add_u32 s55, s55, {SW}")
    e(f"s_add_u32 s56, s55, {EMIN<<7}\n s_lshl_b32 s56, s56, 16")
    e(f"s_add_u32 s57, s55, {2048 + (EMIN<<7)}\n s_add_u32 s58, s55, {(2048 - 3072 + (EMIN<<7) + 0x8000) & 0xffffffff}")
    e(f"s_cmp_ge_u32 s55, 1024\n s_cselect_b32 s57, s58, s57\n s_lshl_b32 s57, s57, 16")
    e(f"s_add_u32 s58, s55, {4096 - 3072 + (EMIN<<7) + 0x8000}\n s_lshl_b32 s58, s58, 16")
    e(f"v_mov_b32 v{vTA}, 0\n v_mov_b32 v{vTA+1}, 0\n v_mov_b32 v{vTA+2}, 0\n v_lshlrev_b32 v{vTL}, 2, v{vLANE}")
    stamp(g, 3)
    e("s_mov_b32 s4, 0xcccccccc\n s_mov_b32 s5, 0xcccccccc\n s_mov_b32 s6, 0xaaaaaaaa\n s_mov_b32 s7, 0xaaaaaaaa")
    tab_iters = [4, 4, 3, 3]
    for G_ in range(4):
        pend = None
        def stepA(i, t):
            e(f"v_add_f32_dpp v{vB + (i & 7)}, v{t}, v{t} row_mirror row_mask:0xf bank_mask:{'0x3' if i < 8 else '0xc'}")
        for i in range(16):
            n = 16*G_ + i
            g.wait(("kv", n))
            r = ring(n); t = vT + (i & 1)
            e(f"v_dot2_f32_bf16 v{t}, v{r}, v{vQ}, 0")
            for k in range(1, 4): e(f"v_dot2_f32_bf16 v{t}, v{r+k}, v{vQ+k}, v{t}")
            if pend is not None: stepA(*pend)
            pend = (i, t)
            if slot_free_after(nk) <= n:
                inflight_cap(g, W); kv_issue(nk); nk += 1
        e("s_nop 1"); stepA(*pend)
        e("s_nop 1")
        for u in range(4):
            e(f"v_add_f32_dpp v{vT+u}, v{vB+u}, v{vB+u} row_half_mirror row_mask:0xf bank_mask:0x5")
            e(f"v_add_f32_dpp v{vT+u}, v{vB+u+4}, v{vB+u+4} row_half_mirror row_mask:0xf bank_mask:0xa")
        e("s_nop 0")
        for u in range(4): e(f"v_add_f32_dpp v{vT+4+u}, v{vT+u}, v{vT+u} quad_perm:[2,3,0,1] {DPP}")
        e(f"v_cndmask_b32 v{vT}, v{vT+4}, v{vT+6}, s[4:5]\n v_cndmask_b32 v{vT+1}, v{vT+5}, v{vT+7}, s[4:5]\n s_nop 1")
        e(f"v_add_f32_dpp v{vT+2}, v{vT}, v{vT} quad_perm:[1,0,3,2] {DPP}\n v_add_f32_dpp v{vT+3}, v{vT+1}, v{vT+1} quad_perm:[1,0,3,2] {DPP}")
        e(f"v_cndmask_b32 v{vT}, v{vT+2}, v{vT+3}, s[6:7]")
        bf16r(g, vT, vT)
        e(f"v_mul_f32 v{vT}, {f2u(128**-0.5):#x}, v{vT}")
        bf16r(g, vS+G_, vT)
        if P.XTAB: e(f"s_mov_b32 s3, {tab_iters[G_]}\n s_call_b64 s[30:31], Ltab")
    stamp(g, 4)
    e(f"v_max_f32 v{vT}, v{vS}, v{vS+1}\n v_max3_f32 v{vT}, v{vS+2}, v{vS+3}, v{vT}\n s_nop 1")
    wave_reduce(g, "v_max_f32", [vT])
    e(f"v_readlane_b32 s52, v{vT}, 63\n s_nop 1")
    for k in range(4): e(f"v_subrev_f32 v{vS+k}, s52, v{vS+k}")
    for k in range(4): e(f"v_mul_f32 v{vS+k}, {f2u(LOG2E):#x}, v{vS+k}")
    for k in range(4): e(f"v_exp_f32 v{vS+k}, v{vS+k}")
    e(f"s_nop 0\n v_add_f32 v{vT}, v{vS}, v{vS+1}\n v_add_f32 v{vT+1}, v{vS+2}, v{vS+3}\n v_add_f32 v{vT}, v{vT}, v{vT+1}")
    for k in range(4): e(f"v_cvt_pk_bf16_f32 v{vS+k}, v{vS+k}, v{vS+k}")
    wave_reduce(g, "v_add_f32", [vT, vTA, vTA+1, vTA+2])
    e(f"v_mov_b32 v{vT+4}, s52\n v_mov_b32 v{vT+5}, {ST}\n v_mov_b32 v{vT+6}, v{vT}\n v_mov_b32 v{vT+7}, {ST}")
    e(f"s_lshl_b32 s55, s54, 3\n s_add_u32 s55, s55, {SW}\n s_lshl_b32 s55, s55, 4\n s_add_u32 s55, s55, {WS_ML}\n v_mov_b32 v{vT+8}, s55")
    tab_finish(g, vTA, vT+10, vB2)
    e(f"v_mov_b32 v{vT+11}, {ST}\n v_mov_b32 v{vT+13}, {ST}")
    e(f"s_lshl_b32 s55, s2, 3\n s_add_u32 s55, s55, {SW}\n s_lshl_b32 s55, s55, 4\n s_add_u32 s55, s55, {WS_TAB}\n v_mov_b32 v{vT+9}, s55")
    e("s_mov_b32 exec_lo, 0\n s_mov_b32 exec_hi, 0x80000000")
    g.vm(f"global_store_dwordx4 v{vT+8}, {vr(vT+4,4)}, {sWS} sc1", ("st", 0))
    g.vm(f"global_store_dwordx4 v{vT+9}, {vr(vT+10,4)}, {sWS} sc1", ("st", 1))
    e("s_mov_b64 exec, -1")
    for r in range(4): e(f"v_mov_b32 v{vACC+r}, 0")
    vWOO, vMLO, vTBO = vMISC+2, vMISC+3, vMISC+4
    e(f"s_lshl_b32 s55, {SH}, 7\n s_lshl_b32 s53, {SW}, 4\n s_add_u32 s55, s55, s53\n v_add_u32 v{vWOO}, s55, v{vG}")
    e(f"v_mul_u32_u24 v{vWOO}, 1280, v{vWOO}\n v_lshl_add_u32 v{vWOO}, v{vC}, 4, v{vWOO}")
    e(f"s_lshr_b32 s55, s54, 2\n s_lshl_b32 s55, s55, 9\n s_add_u32 s55, s55, {WS_ML}\n v_add_u32 v{vMLO}, s55, v{vL16}")
    e(f"s_lshl_b32 s55, {SB}, 8\n s_add_u32 s55, s55, {WS_ZF}\n v_mov_b32 v{vB}, s55\n v_cmp_lt_u32 vcc, 31, v{vLANE}\n s_nop 1\n v_cndmask_b32 v{vMLO}, v{vMLO}, v{vB}, vcc")
    e(f"s_add_u32 s48, s32, {WS_TAB}\n s_addc_u32 s49, s33, 0\n s_lshl_b32 s50, {SFIN}, 15\n s_mov_b32 s51, 0x20000")
    e(f"v_lshlrev_b32 v{vTBO}, 4, v0")
    vXA = vMISC+5
    e(f"v_min_u32 v{vXA}, 213, v0\n v_mul_u32_u24 v{vXA}, 6, v{vXA}\n s_mul_i32 s55, {SB}, 1280\n v_add_u32 v{vXA}, s55, v{vXA}")
    e(f"s_mov_b32 s44, s8\n s_mov_b32 s45, s9\n s_mov_b32 s46, 2560")
    for k in range(3): g.vm(f"buffer_load_ushort v{vXF+k}, v{vXA}, s[44:47], 0 offen offset:{2*k}", ("xf", k))
    nwo = 0
    for i in range(64):
        n = 64 + i
        g.wait(("kv", n))
        rowmac(vACC, vS + i//16, i % 16, ring(n))
        if nk < 128 and slot_free_after(nk) <= n:
            inflight_cap(g, W); kv_issue(nk); nk += 1
        if i >= P.WO_START and (i - P.WO_START) % P.WO_EVERY == 0 and nwo < 20:
            ii, t = divmod(nwo, 5)
            if P.XWO: g.vm(f"global_load_dwordx4 {vr(vWB+4*nwo,4)}, v{vWOO}, {sWO} offset:{256*t} {P.WOPOL}", ("wo", nwo))
            if t == 4: e(f"v_add_u32 v{vWOO}, {4*1280}, v{vWOO}")
            nwo += 1
        if i == P.TAB_AT:
            for k in range(4):
                e(f"s_mov_b32 s55, {k*8192}")
                g.vm(f"buffer_load_dwordx4 {vr(vTB+4*k,4)}, v{vTBO}, s[48:51], s55 offen sc1", ("tb", k))
        if i == P.TAB_USE:
            g.wait(("tb", 3))
            ls = g.label("Lts"); lr = g.label("Ltr"); lo = g.label("Lto")
            e(f"s_cmp_eq_u32 {SFIN}, 0\n s_cbranch_scc1 {ls}\n s_mov_b32 s3, 0x40000")
            e(f"{lr}:")
            e(f"v_xor_b32 v{vT}, {ST}, v{vTB+1}")
            for k in range(1, 8): e(f"v_xor_b32 v{vT+1}, {ST}, v{vTB+1+2*k}\n v_or_b32 v{vT}, v{vT}, v{vT+1}")
            e(f"v_cmp_ne_u32 vcc, 0, v{vT}\n s_cbranch_vccz {lo}")
            e(f"s_sub_u32 s3, s3, 1\n s_cbranch_scc1 {lo}\n s_sleep 2")
            for k in range(4):
                e(f"s_mov_b32 s55, {k*8192}\n buffer_load_dwordx4 {vr(vTB+4*k,4)}, v{vTBO}, s[48:51], s55 offen sc1")
            e(f"s_waitcnt vmcnt(0)\n s_branch {lr}")
            e(f"{lo}:")
            e(f"v_lshlrev_b32 v{vT}, 3, v0")
            for k in range(4):
                e(f"v_mov_b32 v{vTB+4*k+1}, v{vTB+4*k+2}\n ds_write_b64 v{vT}, {vr(vTB+4*k,2)} offset:{L_TAB + k*4096}")
            e(f"{ls}:")
        if i == P.POLL_AT:
            g.vm(f"global_load_dwordx4 {vr(vML,4)}, v{vMLO}, {sWS} sc1", ("ml", 0))
        if i == P.POLL_USE:
            g.wait(("ml", 0))
            lr = g.label("Lmr"); lo = g.label("Lmo")
            e("s_mov_b32 s3, 0x40000")
            e(f"{lr}:")
            e(f"v_xor_b32 v{vT}, {ST}, v{vML+1}\n v_xor_b32 v{vT+1}, {ST}, v{vML+3}\n v_or_b32 v{vT}, v{vT}, v{vT+1}")
            e(f"v_cmp_ne_u32 vcc, 0, v{vT}\n s_cbranch_vccz {lo}")
            e(f"s_sub_u32 s3, s3, 1\n s_cbranch_scc1 {lo}\n s_sleep 2")
            e(f"global_load_dwordx4 {vr(vML,4)}, v{vMLO}, {sWS} sc1\n s_waitcnt vmcnt(0)\n s_branch {lr}")
            e(f"{lo}:")
            e(f"s_mov_b32 exec_lo, 0\n v_mov_b32 v{vML}, s52\n v_mov_b32 v{vML+2}, 0\n s_mov_b32 exec_lo, -1")
            e(f"v_mov_b32 v{vT}, v{vML}\n s_nop 1")
            wave_reduce(g, "v_max_f32", [vT])
            e(f"v_readlane_b32 s53, v{vT}, 63\n s_nop 1")
            e(f"v_subrev_f32 v{vML}, s53, v{vML}\n v_mov_b32 v{vT+1}, s52\n v_subrev_f32 v{vT+1}, s53, v{vT+1}")
            e(f"v_mul_f32 v{vML}, {f2u(LOG2E):#x}, v{vML}\n v_mul_f32 v{vT+1}, {f2u(LOG2E):#x}, v{vT+1}")
            e(f"v_exp_f32 v{vML}, v{vML}\n v_exp_f32 v{vT+1}, v{vT+1}\n s_nop 0\n v_mul_f32 v{vT}, v{vML}, v{vML+2}\n s_nop 1")
            wave_reduce(g, "v_add_f32", [vT])
            e(f"v_readlane_b32 s53, v{vT}, 63\n s_nop 1\n v_rcp_f32 v{vT}, s53\n s_nop 0\n v_mul_f32 v{vML}, v{vT+1}, v{vT}   ; f")
            vOPW, vOPR, vOUW = vML+1, vML+2, vML+3
            e(f"s_lshl_b32 s55, {SW}, 9\n v_add_u32 v{vOPW}, s55, v{vL16}")
            e(f"v_and_b32 v{vT}, 1, v{vC}\n v_lshlrev_b32 v{vT}, 8, v{vT}\n v_bfe_u32 v{vT+1}, v{vC}, 1, 1\n v_lshl_add_u32 v{vT}, v{vT+1}, 4, v{vT}")
            e(f"v_lshl_add_u32 v{vT}, v{vG}, 2, v{vT}\n v_lshrrev_b32 v{vT+1}, 2, v{vC}\n v_lshl_add_u32 v{vT}, v{vT+1}, 10, v{vT}")
            e(f"s_lshl_b32 s55, {SW}, 5\n v_add_u32 v{vOPR}, s55, v{vT}")
            e(f"s_mul_i32 s55, {SW}, 2560\n v_lshlrev_b32 v{vT}, 5, v{vC}\n v_lshl_add_u32 v{vT}, v{vG}, 4, v{vT}\n v_add_u32 v{vOUW}, s55, v{vT}")
            vGA = vB
            for k in range(2):
                e(f"v_add_u32 v{vT}, {512*k}, v0\n v_lshlrev_b32 v{vB+2+k}, 2, v{vT}\n v_lshrrev_b32 v{vT+1}, 2, v{vT}\n v_and_b32 v{vT}, 3, v{vT}")
                e(f"v_mad_u32_u24 v{vT+1}, v{vT+1}, 3, v{vT}\n v_min_u32 v{vB+k}, 639, v{vT+1}\n v_lshlrev_b32 v{vB+k}, 2, v{vB+k}")
            e(f"s_movk_i32 s55, 639\n v_cmp_lt_u32 s[6:7], s55, v{vT+1}")
            e("s_mov_b32 s4, 0x88888888\n s_mov_b32 s5, 0x88888888")
            for t in range(5):
                for r in range(4): e(f"v_mov_b32 v{vTB+4*t+r}, 0") if t < 4 else e(f"v_mov_b32 v{vB+4+r}, 0")
    assert nwo == 20
    stamp(g, 5)
    vOPW, vOPR, vOUW = vML+1, vML+2, vML+3
    oacc = lambda t: vTB+4*t if t < 4 else vB+4
    e("s_nop 7")
    for r in range(4): e(f"v_mul_f32 v{vACC+r}, v{vACC+r}, v{vML}")
    e(f"s_mov_b32 exec_hi, 0\n ds_write_b128 v{vOPW}, {vr(vACC,4)} offset:{L_QP}\n s_mov_b64 exec, -1")
    e("s_waitcnt lgkmcnt(0)\n s_barrier")
    e(f"ds_read2_b32 {vr(vT,2)}, v{vOPR} offset0:0 offset1:128")
    g.wait(("wo", 19))
    e(f"s_waitcnt lgkmcnt(0)\n v_add_f32 v{vT}, v{vT}, v{vT+1}\n s_nop 1")
    e(f"v_add_f32_dpp v{vT}, v{vT}, v{vT} row_ror:4 {DPP}\n s_nop 1\n v_add_f32_dpp v{vT}, v{vT}, v{vT} row_ror:8 {DPP}")
    e(f"v_cvt_pk_bf16_f32 v{vT}, v{vT}, v{vT}\n s_nop 1")
    for ii in range(4):
        for t in range(5):
            rowmac(oacc(t), vT, ii, vWB+4*(5*ii+t), build=(t == 0))
    e("s_nop 3\n s_mov_b32 exec_hi, 0")
    for t in range(5):
        e(f"ds_write_b128 v{vOUW}, {vr(oacc(t),4)} offset:{L_OUTP + t*512}")
    e("s_mov_b64 exec, -1\n s_waitcnt lgkmcnt(0)\n s_barrier")
    base64 = L_OUTP // 256
    for k in range(2):
        for p in range(4):
            e(f"ds_read2st64_b32 {vr(vR+8*k+2*p,2)}, v{vB+k} offset0:{base64+20*p} offset1:{base64+20*p+10}")
    for k in range(2):
        e(f"s_waitcnt lgkmcnt({4-4*k})")
        r = vR+8*k
        e(f"v_add_f32 v{r}, v{r}, v{r+1}\n v_add_f32 v{r+2}, v{r+2}, v{r+3}\n v_add_f32 v{r+4}, v{r+4}, v{r+5}\n v_add_f32 v{r+6}, v{r+6}, v{r+7}")
        e(f"v_add_f32 v{r}, v{r}, v{r+2}\n v_add_f32 v{r+4}, v{r+4}, v{r+6}\n v_add_f32 v{r}, v{r}, v{r+4}")
        if k == 1: e(f"v_cndmask_b32 v{r}, v{r}, 0, s[6:7]")
        e(f"v_cndmask_b32 v{r}, v{r}, 1.0, s[4:5]")
        e(f"buffer_atomic_add_f32 v{r}, v{vB+2+k}, s[40:43], 0 offen")
    stamp(g, 6)
    e(f"s_cmp_eq_u32 {SFIN}, 0\n s_cbranch_scc1 Ldone\n s_cmp_ge_u32 {SW}, 4\n s_cbranch_scc1 Ldone")
    H = vT
    e(f"s_lshl_b32 s55, {SB}, 15\n s_add_u32 s55, s55, {WS_ACC}\n s_add_u32 s44, s32, s55\n s_addc_u32 s45, s33, 0\n s_mov_b32 s46, {P.R*REP_STRIDE}")
    e(f"v_min_u32 v{vB}, 213, v0\n v_lshlrev_b32 v{vB}, 4, v{vB}")
    e(f"v_mul_u32_u24 v{vB+1}, 3, v0\n s_movk_i32 s55, 640\n v_cmp_gt_u32 s[4:5], s55, v{vB+1}\n s_movk_i32 s55, 639\n v_cmp_gt_u32 s[6:7], s55, v{vB+1}")
    e(f"s_mul_i32 s55, {SB}, 1280\n v_lshl_add_u32 v{vB+1}, v{vB+1}, 1, s55")
    e(f"v_mov_b32 v{vB+3}, 0x7ffffff0\n v_cndmask_b32 v{vB+2}, v{vB+3}, v{vB+1}, s[6:7]\n v_cndmask_b32 v{vB+1}, v{vB+3}, v{vB+1}, s[4:5]")
    e(f"s_mov_b32 s48, s28\n s_mov_b32 s49, s29\n s_mov_b32 s50, 2560")
    e(f"s_mov_b32 s52, {f2u(192.0):#x}\n s_mov_b32 s53, {f2u(1/192.0):#x}\n s_cmp_eq_u32 {SW}, 3\n s_cselect_b32 s52, {f2u(64.0):#x}, s52\n s_cselect_b32 s53, {f2u(1/64.0):#x}, s53")
    e(f"s_lshl_b32 s55, {SW}, 3\n v_mov_b32 v{vB+4}, s55\n v_mov_b32 v{vB+5}, 0")
    for k in range(3): e(f"v_lshlrev_b32 v{vXF+k}, 16, v{vXF+k}")
    cnt = f2u(128.0 / P.R)
    e("s_mov_b32 s3, 0x40000")
    e("Lpoll:")
    for r in range(P.R):
        e(f"s_movk_i32 s55, {r*REP_STRIDE}\n buffer_load_dwordx4 {vr(vR+4*r,4)}, v{vB}, s[44:47], s55 offen sc1")
    e("s_waitcnt vmcnt(0)")
    e(f"v_min_f32 v{vT}, v{vR+3}, v{vR+7}")
    for r in range(2, P.R): e(f"v_min_f32 v{vT}, v{vT}, v{vR+4*r+3}")
    e(f"v_cmp_gt_f32 vcc, {cnt:#x}, v{vT}\n s_cbranch_vccz Lpdone\n s_sub_u32 s3, s3, 1\n s_cbranch_scc0 Lpoll")
    e("Lpdone:")
    stamp(g, 7)
    for k in range(3):
        e(f"v_add_f32 v{H+k}, v{vR+k}, v{vR+4+k}")
    for r in range(2, P.R):
        for k in range(3): e(f"v_add_f32 v{H+k}, v{H+k}, v{vR+4*r+k}")
    for k in range(3): bf16r(g, H+k, H+k)
    for k in range(3): e(f"v_add_f32 v{H+k}, v{H+k}, v{vXF+k}")
    for k in range(3): bf16r(g, H+k, H+k)
    N = vT+4
    def ln_block(src, dst, slot):
        Y = vT+8; s1, s2 = vT+11, vT+12
        e(f"v_readfirstlane_b32 s55, v{src}\n s_nop 1")
        for k in range(3): e(f"v_subrev_f32 v{Y+k}, s55, v{src+k}")
        e(f"v_cndmask_b32 v{Y}, 0, v{Y}, s[4:5]\n v_cndmask_b32 v{Y+1}, 0, v{Y+1}, s[6:7]\n v_cndmask_b32 v{Y+2}, 0, v{Y+2}, s[6:7]")
        e(f"v_add_f32 v{s1}, v{Y}, v{Y+1}\n v_mul_f32 v{s2}, v{Y}, v{Y}\n v_add_f32 v{s1}, v{s1}, v{Y+2}\n v_fmac_f32 v{s2}, v{Y+1}, v{Y+1}\n v_fmac_f32 v{s2}, v{Y+2}, v{Y+2}\n s_nop 1")
        wave_reduce(g, "v_add_f32", [s1, s2])
        e(f"v_mul_f32 v{Y}, s53, v{s1}\n v_fma_f32 v{Y+1}, -v{Y}, v{s1}, v{s2}\n v_add_f32 v{Y}, s55, v{Y}")
        e("s_mov_b32 exec_lo, 0\n s_mov_b32 exec_hi, 0x80000000")
        e(f"ds_write_b64 v{vB+4}, {vr(Y,2)} offset:{L_FIN + slot*32}\n s_mov_b64 exec, -1\n s_waitcnt lgkmcnt(0)\n s_barrier")
        Z = vR+32
        e(f"ds_read_b128 {vr(Z,4)}, v{vB+5} offset:{L_FIN + slot*32}\n ds_read_b128 {vr(Z+4,4)}, v{vB+5} offset:{L_FIN + slot*32 + 16}\n s_waitcnt lgkmcnt(0)")
        e(f"v_add_f32 v{Y}, v{Z}, v{Z+2}\n v_add_f32 v{Y+1}, v{Z+1}, v{Z+3}\n v_add_f32 v{Y}, v{Y}, v{Z+4}\n v_add_f32 v{Y+1}, v{Y+1}, v{Z+5}")
        e(f"v_mul_f32 v{Y}, {f2u(0.3):#x}, v{Y}\n v_add_f32 v{Y+1}, v{Y+1}, v{Z+7}\n v_mov_b32 v{Y+2}, {f2u(0.1):#x}\n v_fmac_f32 v{Y}, v{Y+2}, v{Z+6}")
        for k in range(4): e(f"v_sub_f32 v{Z+2*k}, v{Z+2*k}, v{Y}")
        e(f"v_mul_f32 v{s1}, v{Z}, v{Z}\n v_fmac_f32 v{s1}, v{Z+2}, v{Z+2}\n v_fmac_f32 v{s1}, v{Z+4}, v{Z+4}\n v_mul_f32 v{s2}, v{Z+6}, v{Z+6}")
        e(f"v_mul_f32 v{Y+1}, {f2u(1.0/640):#x}, v{Y+1}\n v_fmac_f32 v{Y+1}, {f2u(0.3):#x}, v{s1}\n v_fmac_f32 v{Y+1}, v{Y+2}, v{s2}\n v_max_f32 v{Y+1}, 0, v{Y+1}")
        ln_finish(Y, Y+1)
        for k in range(3): e(f"v_sub_f32 v{dst+k}, v{src+k}, v{Y}")
        for k in range(3): bf16r(g, dst+k, dst+k)
        for k in range(3): e(f"v_mul_f32 v{dst+k}, v{dst+k}, v{Y+1}")
        for k in range(3): bf16r(g, dst+k, dst+k)
    ln_block(H, N, 0)
    ln_block(N, N, 1)
    I = vT+8
    for k in range(3):
        e(f"v_bfe_u32 v{I+k}, v{N+k}, 16, 15\n v_subrev_u32 v{I+k}, {EMIN<<7}, v{I+k}")
    e(f"v_max3_u32 v{vT+12}, v{I}, v{I+1}, v{I+2}\n s_movk_i32 s55, 3071\n v_cmp_lt_u32 vcc, s55, v{vT+12}")
    for k in range(3):
        e(f"v_min_u32 v{I+k}, s55, v{I+k}\n v_lshrrev_b32 v{vT+13}, 31, v{N+k}\n v_mad_u32_u24 v{I+k}, v{vT+13}, s55, v{I+k}\n v_add_u32 v{I+k}, v{I+k}, v{vT+13}")
        e(f"v_and_b32 v{vT+13}, 2047, v{I+k}\n v_lshrrev_b32 v{I+k}, 11, v{I+k}\n v_lshlrev_b32 v{I+k}, 1, v{I+k}\n v_lshl_add_u32 v{I+k}, v{vT+13}, 3, v{I+k}")
        e(f"ds_read_u16 v{I+k}, v{I+k} offset:{L_TAB}")
    e("s_and_b64 vcc, vcc, s[4:5]\n s_cbranch_scc1 Lslow")
    e("s_waitcnt lgkmcnt(0)")
    e("Lback:")
    for k in range(3): e(f"v_lshlrev_b32 v{I+k}, 16, v{I+k}")
    for k in range(3): e(f"v_add_f32 v{I+k}, v{I+k}, v{H+k}")
    for k in range(3): e(f"v_cvt_pk_bf16_f32 v{I+k}, v{I+k}, v{I+k}")
    e(f"buffer_store_short v{I}, v{vB+1}, s[48:51], 0 offen\n buffer_store_short v{I+1}, v{vB+2}, s[48:51], 0 offen offset:2\n buffer_store_short v{I+2}, v{vB+2}, s[48:51], 0 offen offset:4")
    e(f"s_cmp_lg_u32 s2, {FINAL_IDS[0]}\n s_cbranch_scc1 Ldone\n s_cmp_lg_u32 {SW}, 0\n s_cbranch_scc1 Ldone")
    e(f"v_mov_b32 v{vB+4}, {ST}\n s_mov_b64 exec, 1\n global_store_dword v{vB+5}, v{vB+4}, {sWS} offset:{WS_E} sc1\n s_mov_b64 exec, -1")
    e("Ldone:")
    if P.DIAG:
        stamp(g, 8)
        e(f"s_lshl_b32 s55, s2, 3\n s_add_u32 s55, s55, {SW}\n s_lshl_b32 s55, s55, 6\n s_add_u32 s55, s55, {WS_DIAG}\n s_getreg_b32 s3, hwreg(HW_REG_XCC_ID)\n s_waitcnt lgkmcnt(0)")
        e(f"v_mov_b32 v{vT}, s55\n s_mov_b64 exec, 1")
        for k in range(9): e(f"v_mov_b32 v{vR+k}, s{60+2*k}")
        e(f"v_mov_b32 v{vR+9}, s3\n v_mov_b32 v{vR+10}, 0\n v_mov_b32 v{vR+11}, 0")
        for k in range(3): e(f"global_store_dwordx4 v{vT}, {vr(vR+4*k,4)}, {sWS} offset:{16*k}")
    e("Lend:\n s_endpgm")
    e("Lslow:")
    e("s_waitcnt lgkmcnt(0)\n s_mov_b64 s[52:53], vcc")
    SV = vR+40
    for k in range(16): e(f"v_mov_b32 v{SV+k}, v{vT+k}")
    e("Lslow1:")
    e("s_ff1_i32_b64 s55, s[52:53]\n s_bitset0_b64 s[52:53], s55\n s_mov_b32 m0, s55\n s_nop 1")
    for k in range(3): e(f"v_readlane_b32 s{56+k}, v{SV+4+k}, m0")
    e(f"v_mov_b32 v{vTA}, 0\n v_mov_b32 v{vTA+1}, 0\n v_mov_b32 v{vTA+2}, 0\n v_lshlrev_b32 v{vTL}, 2, v{vLANE}")
    e("s_mov_b32 s3, 14\n s_call_b64 s[30:31], Ltab\n s_nop 2")
    wave_reduce(g, "v_add_f32", [vTA, vTA+1, vTA+2])
    tab_finish(g, vTA, vT+10, vB2)
    e(f"v_readlane_b32 s56, v{vT+10}, 63\n v_readlane_b32 s58, v{vT+12}, 63\n s_nop 3\n s_lshr_b32 s57, s56, 16\n s_and_b32 s56, s56, 0xffff\n s_and_b32 s58, s58, 0xffff")
    for k in range(3): e(f"v_writelane_b32 v{SV+8+k}, s{56+k}, m0")
    e("s_cmp_lg_u64 s[52:53], 0\n s_cbranch_scc1 Lslow1")
    for k in range(16): e(f"v_mov_b32 v{vT+k}, v{SV+k}")
    e("s_branch Lback")
    e("Ltab:")
    w1, b1, w2 = vT, vT+1, vT+2
    e(f"ds_read_b32 v{w1}, v{vTL} offset:{L_MW}\n ds_read_b32 v{b1}, v{vTL} offset:{L_MW+3584}\n ds_read_b32 v{w2}, v{vTL} offset:{L_MW+7168}")
    e(f"v_add_u32 v{vTL}, 256, v{vTL}\n s_waitcnt lgkmcnt(0)")
    wl, wh, bl, bh = vT+3, vT+4, vT+5, vT+6
    e(f"v_lshlrev_b32 v{wl}, 16, v{w1}\n v_and_b32 v{wh}, 0xffff0000, v{w1}\n v_lshlrev_b32 v{bl}, 16, v{b1}\n v_and_b32 v{bh}, 0xffff0000, v{b1}")
    K0 = (2/3.141592653589793)**0.5
    C1 = -2*K0*LOG2E; C3 = C1*0.044715
    e(f"v_mov_b32 v{vT+7}, {f2u(C1):#x}\n v_mov_b32 v{vT+14}, {f2u(C3):#x}")
    for k in range(3):
        u0, u1, z0, z1 = vT+8, vT+9, vT+10, vT+11
        e(f"v_mul_f32 v{u0}, s{56+k}, v{wl}\n v_mul_f32 v{u1}, s{56+k}, v{wh}\n v_cvt_pk_bf16_f32 v{z0}, v{u0}, v{u1}")
        e(f"v_lshlrev_b32 v{u0}, 16, v{z0}\n v_and_b32 v{u1}, 0xffff0000, v{z0}\n v_add_f32 v{u0}, v{u0}, v{bl}\n v_add_f32 v{u1}, v{u1}, v{bh}")
        e(f"v_cvt_pk_bf16_f32 v{z0}, v{u0}, v{u1}\n v_lshlrev_b32 v{u0}, 16, v{z0}\n v_and_b32 v{u1}, 0xffff0000, v{z0}")
        e(f"v_mul_f32 v{z0}, v{u0}, v{u0}\n v_mul_f32 v{z1}, v{u1}, v{u1}\n v_fma_f32 v{z0}, v{z0}, v{vT+14}, v{vT+7}\n v_fma_f32 v{z1}, v{z1}, v{vT+14}, v{vT+7}")
        e(f"v_mul_f32 v{z0}, v{z0}, v{u0}\n v_mul_f32 v{z1}, v{z1}, v{u1}\n v_exp_f32 v{z0}, v{z0}\n v_exp_f32 v{z1}, v{z1}")
        e(f"v_add_f32 v{z0}, 1.0, v{z0}\n v_add_f32 v{z1}, 1.0, v{z1}\n v_rcp_f32 v{z0}, v{z0}\n v_rcp_f32 v{z1}, v{z1}")
        e(f"v_mul_f32 v{z0}, v{z0}, v{u0}\n v_mul_f32 v{z1}, v{z1}, v{u1}\n v_cvt_pk_bf16_f32 v{vT+12}, v{z0}, v{z1}")
        e(f"v_dot2_f32_bf16 v{vTA+k}, v{vT+12}, v{w2}, v{vTA+k}")
    e("s_sub_u32 s3, s3, 1\n s_cmp_lg_u32 s3, 0\n s_cbranch_scc1 Ltab")
    e("s_nop 2\n s_setpc_b64 s[30:31]")
    return g

def inflight_cap(g, W):
    n = W - 1
    if len(g.fifo) > n:
        g.e(f"s_waitcnt vmcnt({n})")
        del g.fifo[:len(g.fifo)-n]

def tab_finish(g, vTA, dst, vB2):
    for k in range(3): bf16r(g, vTA+k, vTA+k)
    for k in range(3): g.e(f"v_add_f32 v{vTA+k}, v{vTA+k}, v{vB2}")
    g.e(f"v_cvt_pk_bf16_f32 v{dst}, v{vTA}, v{vTA+1}\n v_cvt_pk_bf16_f32 v{dst+2}, v{vTA+2}, v{vTA+2}")

HEADER = open("cdna_kernels/" + NAME + ".s.ref").read().split("; Override launch")[0]

def emit():
    g = gen()
    nv = (g.nv + 7)//8*8
    out = HEADER
    out += f"; @launch grid=(256,1,1) block=(512,1,1) lds={LDS_BYTES}\n"
    out += '.amdgcn_target "amdgcn-amd-amdhsa--gfx950"\n.text\n'
    out += f".globl {KN}\n.p2align 8\n.type {KN},@function\n"
    out += "\n".join(g.L) + "\n"
    out += f""".section .rodata,"a"
.p2align 6
.amdhsa_kernel {KN}
  .amdhsa_next_free_vgpr {nv}
  .amdhsa_next_free_sgpr 96
  .amdhsa_accum_offset {nv}
  .amdhsa_group_segment_fixed_size 0
  .amdhsa_kernarg_size 104
  .amdhsa_user_sgpr_count 2
  .amdhsa_user_sgpr_kernarg_segment_ptr 1
  .amdhsa_system_sgpr_workgroup_id_x 1
  .amdhsa_float_denorm_mode_32 3
.end_amdhsa_kernel
"""
    return out, g

if __name__ == "__main__":
    ap = argparse.ArgumentParser()
    ap.add_argument("-o", default="cdna_kernels/" + NAME + ".s")
    ap.add_argument("set", nargs="*")
    a = ap.parse_args()
    for kv in a.set:
        k, v = kv.split("=", 1)
        old = getattr(P, k)
        setattr(P, k, type(old)(v.replace("_", " ")) if isinstance(old, str) else int(v))
    out, g = emit()
    open(a.o, "w").write(out)
    print("vgprs", g.nv, "lines", len(g.L))
```

```python
import sys, struct, argparse

NAME = "sequential_preLN__mha_block_cached__mixer_token_mlp__decode"
KN = NAME + "_kernel"
def f2u(x): return struct.unpack("<I", struct.pack("<f", x))[0]

class P:
    D = 16
    W = 4
    WEND = 7
    ENDAT = 104
    LAG = 8
    CU_N = 1
    CU_D = 2
    PRE = 3
    STRIDE = 1
    ROT = 4
    R = 4
    POL = "nt"
    EB = 1
    K0 = 0
    KFIRST = 7
    KX1 = 0
    KX2 = 2
    NPRO = 20
    WPRO = 5
    QPOLL_AT = 12
    QPOLL_USE = 15
    WO_START = 24
    WO_EVERY = 5
    POLL_AT = 40
    POLL_USE = 52
    TAB_AT = 24
    TAB_USE = 36
    AGG = 1
    DRY = 1
    DRYW = 3
    DIAG = 0
    XTAB = 1
    XWO = 1
    XTAIL = 1
    XML = 1
    XQ = 1
    PSLEEP = 0
    PMISS = 2
    XCOMP = 1
    XLIM = 3071

WS_E, WS_ZF, WS_ML, WS_TAB, WS_ACC, WS_QG, WS_DIAG = 0x0, 0x1000, 0x2000, 0x10000, 0x20000, 0x40000, 0x100000
REP_STRIDE, NGRAN = 3584, 214
L_QP, L_MW, L_Q1, L_OUTP, L_TAB, L_FIN = 0, 4096, 16384, 16384, 36864, 53248
L_AGG = L_FIN + 256
LDS_BYTES = 57344
EMIN = 108
LOG2E = 1.4426950408889634
FINAL_IDS = (0, 34)
DPP = "row_mask:0xf bank_mask:0xf"
SPIN = 0x40000

class G:
    def __init__(s): s.L = []; s.fifo = []; s.lab = 0; s.nv = 0
    def e(s, t):
        for x in t.split("\n"):
            x = x.strip()
            if x: s.L.append(("    " if not x.endswith(":") else "") + x)
    def c(s, t): s.L.append("    ; " + t)
    def label(s, p="L"): s.lab += 1; return f"{p}{s.lab}"
    def v(s, n=1, align=1):
        s.nv = (s.nv + align - 1)//align*align
        r = s.nv; s.nv += n; return r
    def vm(s, text, tag):
        s.e(text); s.fifo.append(tag); assert len(s.fifo) <= 63
    def wait(s, tag):
        if tag not in s.fifo: return
        i = s.fifo.index(tag); n = len(s.fifo) - 1 - i
        s.e(f"s_waitcnt vmcnt({n})"); del s.fifo[:i+1]
    def cap(s, W):
        kv = [t for t in s.fifo if t[0] == "kv"]
        if len(kv) >= W: s.wait(kv[-W])

def vr(r, n): return f"v[{r}:{r+n-1}]"

def wave_reduce(g, op, regs, nsteps=6):
    steps = [f"row_ror:8 {DPP}", f"row_ror:4 {DPP}", f"row_ror:2 {DPP}", f"row_ror:1 {DPP}",
             "row_bcast:15 row_mask:0xa bank_mask:0xf", "row_bcast:31 row_mask:0xc bank_mask:0xf"]
    for st in steps[:nsteps]:
        for r in regs: g.e(f"{op}_dpp v{r}, v{r}, v{r} {st}")
        pad = 2 - (len(regs) - 1)
        if pad > 0: g.e(f"s_nop {pad-1}")

def bf16r(g, d, s_):
    g.e(f"v_cvt_pk_bf16_f32 v{d}, 0, v{s_}")
def bf16r_n(g, regs):
    for r in regs: bf16r(g, r, r)

def stamp(g, k, mode=0):
    if P.DIAG and (mode == 0 or mode == P.DIAG): g.e(f"s_memrealtime s[{62+2*k}:{63+2*k}]")

def tab_finish(g, vTA, dst, vB2):
    bf16r_n(g, [vTA, vTA+1, vTA+2])
    for k in range(3): g.e(f"v_add_f32 v{vTA+k}, v{vTA+k}, v{vB2}")
    g.e(f"v_cvt_pk_bf16_f32 v{dst}, v{vTA}, v{vTA+1}\n v_cvt_pk_bf16_f32 v{dst+2}, v{vTA+2}, v{vTA+2}")

def gen():
    g = G(); e = g.e
    D, W = P.D, P.W
    g.v(); vLANE = g.v(); vL16 = g.v(); vOFF = g.v()
    vMK = g.v(4); vA = g.v(8, 2); vQ = g.v(4, 2); vS = g.v(4); vACC = g.v(4, 2)
    vB = g.v(8, 2); vT = g.v(16, 2)
    vTA = g.v(3); vTL = g.v(); vXF = g.v(4); vML = g.v(4, 2); vMISC = g.v(8, 2)
    vB2 = g.v(); vWOO = g.v(); vTB = g.v(16, 2)
    vR = g.v(4*D, 2); vWB = g.v(80, 2)
    NX = P.NPRO - D
    def ring(i):
        if i < D: return vR + 4*i
        if i < D + NX: return vWB + 80 - 4*NX + 4*(i - D)
        return vR + 4*((i - D - NX) % D)
    def slot_free_after(i):
        if i < D + NX: return -1
        return i - D - NX if i - D - NX < D else i - D
    sX, sK, sV, sWO, sB2, sWS = "s[8:9]", "s[10:11]", "s[12:13]", "s[16:17]", "s[26:27]", "s[32:33]"
    SW, SH, SB, SS, ST, SFIN = "s34", "s35", "s36", "s37", "s38", "s39"
    FULL = "s[60:61]"; FULLHI = "s61"
    vG, vC = vMISC, vMISC+1
    st = {"nk": 0, "nwo": 0, "ab": 0}
    def kv_issue():
        i = st["nk"]; st["nk"] += 1
        g.vm(f"global_load_dwordx4 {vr(ring(i),4)}, v{vOFF}, {sK if i < 64 else sV} nt", ("kv", i))
        e(f"v_add_u32 v{vOFF}, {P.STRIDE*1024}, v{vOFF}\n v_and_b32 v{vOFF}, 0xffff, v{vOFF}")
    def after_consume(n):
        if st["nk"] < 128 and slot_free_after(st["nk"]) <= n and st["nk"] <= n + max(P.LAG, P.NPRO - n*P.CU_N//P.CU_D):
            g.cap(W if st['nk'] < P.ENDAT else P.WEND); kv_issue()
        if n >= P.WO_START and (n - P.WO_START) % P.WO_EVERY == 0 and st["nwo"] < 20:
            k = st["nwo"]; st["nwo"] += 1; t = k % 5
            if P.XWO: g.vm(f"global_load_dwordx4 {vr(vWB+4*k,4)}, v{vWOO}, {sWO} offset:{256*t} {P.POL}", ("wo", k))
            if t == 4: e(f"v_add_u32 v{vWOO}, {4*1280}, v{vWOO}")
    def pre_issue(n):
        for _ in range(P.PRE):
            if st["nk"] < 128 and slot_free_after(st["nk"]) <= n: kv_issue()
    def rowmac(acc, src, lane, data, build=True, first=False):
        if build:
            st["ab"] ^= 1; a = vA + 4*st["ab"]
            for r in range(4): e(f"v_and_b32_dpp v{a+r}, v{src}, v{vMK+r} row_newbcast:{lane} {DPP}")
            e("s_nop 1")
        a = vA + 4*st["ab"]
        e(f"v_mfma_f32_16x16x32_bf16 {vr(acc,4)}, {vr(a,4)}, {vr(data,4)}, {'0' if first else vr(acc,4)}")
    def ln_finish(M_, V_):
        bf16r_n(g, [M_, V_])
        e(f"v_add_f32 v{V_}, {f2u(1e-5):#x}, v{V_}"); bf16r(g, V_, V_)
        e(f"v_sqrt_f32 v{V_}, v{V_}\n s_nop 0"); bf16r(g, V_, V_)
        e(f"v_rcp_f32 v{V_}, v{V_}\n s_nop 0")
    def tag_poll(regs, reload, sleep):
        lr = g.label("Lr"); lo = g.label("Lo")
        e(f"s_mov_b32 s3, {SPIN:#x}\n {lr}:")
        e(f"v_xor_b32 v{vT}, {ST}, v{regs[0]}")
        for r in regs[1:]: e(f"v_xor_b32 v{vT+1}, {ST}, v{r}\n v_or_b32 v{vT}, v{vT}, v{vT+1}")
        e(f"v_cmp_ne_u32 vcc, 0, v{vT}\n s_cbranch_vccz {lo}\n s_sub_u32 s3, s3, 1\n s_cbranch_scc1 {lo}\n s_sleep {sleep}")
        e(reload); e(f"s_waitcnt vmcnt(0)\n s_branch {lr}\n {lo}:")

    e(f"{KN}:")
    e("s_cmp_ge_u32 s2, 256\n s_cbranch_scc1 Lend")
    stamp(g, 0)
    if P.DIAG == 5: e('s_memtime s[70:71]')
    e("s_load_dwordx16 s[8:23], s[0:1], 0\n s_load_dwordx8 s[24:31], s[0:1], 64\n s_load_dwordx2 s[32:33], s[0:1], 96")
    e(f"v_lshrrev_b32 v{vT}, 6, v0\n v_and_b32 v{vLANE}, 63, v0\n v_readfirstlane_b32 {SW}, v{vT}\n v_lshlrev_b32 v{vL16}, 4, v{vLANE}")
    g.c("id = 8j+x : head = 4x + (j>>3), batch = (j>>2)&1, split = j&3")
    e(f"s_and_b32 s52, s2, 7\n s_lshl_b32 s52, s52, 2\n s_lshr_b32 s53, s2, 6\n s_add_u32 {SH}, s52, s53")
    e(f"s_bfe_u32 {SB}, s2, 0x10005\n s_bfe_u32 {SS}, s2, 0x20003")
    e(f"s_lshl_b32 s52, {SB}, 5\n s_add_u32 s52, s52, {SH}\n s_lshl_b32 s54, s52, 2\n s_add_u32 s54, s54, {SS}")
    e(f"s_lshl_b32 s53, s54, 19\n s_lshl_b32 s55, {SW}, 16\n s_add_u32 s53, s53, s55")
    e(f"s_mul_i32 s55, {SW}, {P.ROT*1024}\n v_add_u32 v{vOFF}, s55, v{vL16}\n v_and_b32 v{vOFF}, 0xffff, v{vOFF}")
    e(f"s_mov_b32 {SFIN}, 0\n s_cmp_eq_u32 s2, {FINAL_IDS[0]}\n s_cselect_b32 {SFIN}, 1, {SFIN}\n s_cmp_eq_u32 s2, {FINAL_IDS[1]}\n s_cselect_b32 {SFIN}, 1, {SFIN}")
    e(f"v_lshrrev_b32 v{vG}, 4, v{vLANE}\n v_and_b32 v{vC}, 15, v{vLANE}")
    g.c("q work: head id>>3, rows 80*(id&7)..+80; wave w takes row quads w, w+8, w+16 (<20)")
    vWQO, vXQ, vXO = vMISC+2, vMISC+3, vMISC+6
    e(f"s_and_b32 s55, s2, 7\n s_mul_i32 s55, s55, 80\n s_lshl_b32 s56, {SW}, 2\n s_add_u32 s55, s55, s56\n v_add_u32 v{vWQO}, s55, v{vG}")
    e(f"v_lshrrev_b32 v{vT}, 3, v{vC}\n v_mul_u32_u24 v{vT}, 640, v{vT}\n v_add_lshl_u32 v{vXQ}, v{vT}, v{vWQO}, 1")
    e(f"v_lshlrev_b32 v{vWQO}, 13, v{vWQO}\n v_lshl_add_u32 v{vWQO}, v{vC}, 4, v{vWQO}\n s_lshr_b32 s56, s2, 3\n s_lshl_b32 s56, s56, 8\n v_add_u32 v{vWQO}, s56, v{vWQO}")
    e(f"v_lshrrev_b32 v{vT}, 5, v{vLANE}\n v_mul_u32_u24 v{vT}, 1280, v{vT}\n v_and_b32 v{vXO}, 31, v{vLANE}\n v_lshl_add_u32 v{vXO}, v{vXO}, 3, v{vT}")
    e(f"s_mov_b32 s50, {640*8192}\n s_mov_b32 s51, 0x20000\n s_mov_b32 s47, 0x20000\n s_mov_b32 s43, 0x20000")
    e(f"s_mov_b32 s57, {32*8192}\n s_mov_b32 s58, {64*8192}\n s_cmp_lt_u32 {SW}, 4\n s_cselect_b32 s58, s58, s50")
    e(f"s_lshl_b32 s55, {SB}, 15\n s_add_u32 s55, s55, {WS_ACC}\n s_mov_b32 s46, {P.R*REP_STRIDE}")
    e("s_waitcnt lgkmcnt(0)")
    stamp(g, 1)
    e("s_add_u32 s10, s10, s53\n s_addc_u32 s11, s11, 0")
    e("s_add_u32 s44, s32, s55\n s_addc_u32 s45, s33, 0")
    lz = g.label("Lnz")
    e(f"s_cmp_eq_u32 {SFIN}, 0\n s_cbranch_scc1 {lz}")
    e(f"v_mov_b32 v{vT+4}, 0\n v_mov_b32 v{vT+5}, 0\n v_mov_b32 v{vT+6}, 0\n v_mov_b32 v{vT+7}, 0\n v_lshlrev_b32 v{vT}, 4, v0")
    for k in range((P.R*REP_STRIDE + 8191)//8192):
        e(f"s_mov_b32 s55, {k*8192}\n buffer_store_dwordx4 {vr(vT+4,4)}, v{vT}, s[44:47], s55 offen sc1")
    e(f"{lz}:")
    for _ in range(P.K0): kv_issue()
    vXD, vWQ, X = vWB, vWB + 12, vWB + 24
    for k in range(5): g.vm(f"global_load_dwordx2 {vr(vXD+2*k,2)}, v{vXO}, {sX} offset:{256*k}", ("x", k))
    e("s_mov_b32 s48, s14\n s_mov_b32 s49, s15")
    g.vm(f"buffer_load_dwordx4 {vr(vWQ,4)}, v{vWQO}, s[48:51], 0 offen {P.POL}", ("wq", 0))
    g.vm(f"buffer_load_dwordx4 {vr(vWQ+4,4)}, v{vWQO}, s[48:51], s57 offen {P.POL}", ("wq", 1))
    g.vm(f"buffer_load_dwordx4 {vr(vWQ+8,4)}, v{vWQO}, s[48:51], s58 offen {P.POL}", ("wq", 2))
    e("s_mov_b32 s48, s8\n s_mov_b32 s49, s9\n s_mov_b32 s50, 2560")
    g.vm(f"buffer_load_ushort v{vXQ+1}, v{vXQ}, s[48:51], 0 offen offset:64", ("xq", 1))
    g.vm(f"buffer_load_ushort v{vXQ+2}, v{vXQ}, s[48:51], 0 offen offset:128", ("xq", 2))
    g.vm(f"buffer_load_ushort v{vXQ}, v{vXQ}, s[48:51], 0 offen", ("xq", 0))
    if P.EB: e("s_barrier")
    while st["nk"] < P.KFIRST: kv_issue()
    e(f"s_load_dword {ST}, {sWS}, {WS_E}")
    e("s_add_u32 s12, s12, s53\n s_addc_u32 s13, s13, 0")
    g.c("operand masks: lane (g,i) owns element i&7 of its 8-element slab")
    e(f"v_bfe_u32 v{vT}, v{vC}, 1, 2\n v_and_b32 v{vT+1}, 1, v{vC}\n v_lshlrev_b32 v{vT+1}, 4, v{vT+1}\n v_mov_b32 v{vT+2}, 0xffff\n v_lshlrev_b32 v{vT+1}, v{vT+1}, v{vT+2}")
    for r in range(4): e(f"v_cmp_eq_u32 vcc, {r}, v{vT}\n s_nop 1\n v_cndmask_b32 v{vMK+r}, 0, v{vT+1}, vcc")
    rep = f"s_mov_b32 s55, {SS}" if P.R == 4 else (f"s_and_b32 s55, {SS}, {P.R-1}" if P.R < 4 else f"s_and_b32 s55, {SH}, {P.R//4-1}\n s_lshl_b32 s55, s55, 2\n s_add_u32 s55, s55, {SS}")
    e(rep)
    e(f"s_mul_i32 s55, s55, {REP_STRIDE}\n s_add_u32 s40, s44, s55\n s_addc_u32 s41, s45, 0\n s_mov_b32 s42, {NGRAN*16}")
    e(f"s_mov_b32 s4, 0\n s_mov_b32 s5, -1\n s_mov_b32 s6, 0xff00ff00\n s_mov_b32 s7, 0xff00ff00\n s_mov_b64 {FULL}, -1")
    e(f"s_lshl_b32 s55, {SH}, 7\n s_lshl_b32 s53, {SW}, 4\n s_add_u32 s55, s55, s53\n v_add_u32 v{vWOO}, s55, v{vG}")
    e(f"v_mul_u32_u24 v{vWOO}, 1280, v{vWOO}\n v_lshl_add_u32 v{vWOO}, v{vC}, 4, v{vWOO}")
    e(f"v_mov_b32 v{vB2}, 0\n ds_write_b32 v{vB2}, v{vB2} offset:{L_AGG+256}")
    g.wait(("x", 4)); stamp(g, 4, 3)
    for _ in range(P.KX1): kv_issue()
    for k in range(10): e(f"v_lshlrev_b32 v{X+2*k}, 16, v{vXD+k}\n v_and_b32 v{X+2*k+1}, 0xffff0000, v{vXD+k}")
    e(f"v_readlane_b32 s55, v{X}, 0\n v_readlane_b32 s56, v{X}, 32\n s_nop 0\n v_mov_b32 v{vT}, s55\n v_mov_b32 v{vT+1}, s56")
    e(f"v_cndmask_b32 v{vT+2}, v{vT}, v{vT+1}, s[4:5]\n v_cndmask_b32 v{vT+3}, v{vT}, v{vT+1}, s[6:7]")
    for k in range(20): e(f"v_sub_f32 v{X+k}, v{X+k}, v{vT+2}")
    S1, S2 = vT+10, vT+11
    e(f"v_add_f32 v{S1}, v{X}, v{X+1}\n v_mul_f32 v{S2}, v{X}, v{X}\n v_fmac_f32 v{S2}, v{X+1}, v{X+1}")
    for k in range(2, 20): e(f"v_add_f32 v{S1}, v{S1}, v{X+k}\n v_fmac_f32 v{S2}, v{X+k}, v{X+k}")
    e("s_nop 1")
    wave_reduce(g, "v_add_f32", [S1, S2], 5)
    e(f"v_readlane_b32 s55, v{S1}, 31\n v_readlane_b32 s56, v{S1}, 63\n v_readlane_b32 s57, v{S2}, 31\n v_readlane_b32 s58, v{S2}, 63")
    M_, V_ = vT+12, vT+13
    e(f"v_mov_b32 v{vT}, s55\n v_mov_b32 v{vT+1}, s56\n v_mov_b32 v{vT+4}, s57\n v_mov_b32 v{vT+5}, s58")
    e(f"v_cndmask_b32 v{M_}, v{vT}, v{vT+1}, s[6:7]\n v_cndmask_b32 v{V_}, v{vT+4}, v{vT+5}, s[6:7]")
    e(f"v_mul_f32 v{M_}, {f2u(1.0/640):#x}, v{M_}\n v_mul_f32 v{V_}, {f2u(1.0/640):#x}, v{V_}")
    e(f"v_fma_f32 v{V_}, -v{M_}, v{M_}, v{V_}\n v_add_f32 v{M_}, v{vT+3}, v{M_}\n v_max_f32 v{V_}, 0, v{V_}")
    ln_finish(M_, V_)
    g.wait(("xq", 0)); stamp(g, 5, 3)
    for _ in range(P.KX2): kv_issue()
    for k in range(3):
        r = vXQ + k
        e(f"v_lshlrev_b32 v{r}, 16, v{r}\n v_sub_f32 v{r}, v{r}, v{M_}"); bf16r(g, r, r)
        e(f"v_mul_f32 v{r}, v{r}, v{V_}\n v_cvt_pk_bf16_f32 v{r}, v{r}, v{r}")
        a_ = vA + 4*(k & 1)
        for j in range(4): e(f"v_and_b32 v{a_+j}, v{r}, v{vMK+j}")
        e(f"s_nop 1\n v_mfma_f32_16x16x32_bf16 {vr(vACC,4)}, {vr(a_,4)}, {vr(vWQ+4*k,4)}, {vr(vACC,4) if k else '0'}")
    stamp(g, 2)
    e(f"s_lshl_b32 s55, {SW}, 10\n v_add_u32 v{vT}, s55, v{vL16}\n v_lshlrev_b32 v{vT+1}, 3, v0\n s_nop 4")
    e(f"ds_write_b128 v{vT}, {vr(vACC,4)} offset:{L_Q1}\n s_waitcnt lgkmcnt(0)\n s_barrier")
    stamp(g, 6, 3)
    e(f"s_mul_i32 {ST}, {ST}, 1664525\n s_add_u32 {ST}, {ST}, 1013904223")
    lq = g.label("Lq")
    e(f"s_cmp_ge_u32 {SW}, {2 if P.XQ else 0}\n s_cbranch_scc1 {lq}")
    for w in range(8): e(f"ds_read_b64 {vr(vWB+2*w,2)}, v{vT+1} offset:{L_Q1 + w*1024}")
    e(f"s_lshr_b32 s55, s2, 3\n s_lshl_b32 s55, s55, 1\n s_add_u32 s55, s55, {SW}\n s_lshl_b32 s55, s55, 3\n s_and_b32 s56, s2, 7\n s_add_u32 s55, s55, s56")
    e(f"s_lshl_b32 s55, s55, 10\n s_add_u32 s55, s55, {WS_QG}\n v_add_u32 v{vT+2}, s55, v{vL16}\n v_mov_b32 v{vT+5}, {ST}\n v_mov_b32 v{vT+7}, {ST}")
    e("s_waitcnt lgkmcnt(0)")
    for k in range(2):
        e(f"v_add_f32 v{vWB+k}, v{vWB+k}, v{vWB+2+k}\n v_add_f32 v{vWB+4+k}, v{vWB+4+k}, v{vWB+6+k}\n v_add_f32 v{vWB+8+k}, v{vWB+8+k}, v{vWB+10+k}\n v_add_f32 v{vWB+12+k}, v{vWB+12+k}, v{vWB+14+k}")
    for k in range(2): e(f"v_add_f32 v{vWB+k}, v{vWB+k}, v{vWB+4+k}\n v_add_f32 v{vWB+8+k}, v{vWB+8+k}, v{vWB+12+k}")
    e(f"v_add_f32 v{vT+4}, v{vWB}, v{vWB+8}\n v_add_f32 v{vT+6}, v{vWB+1}, v{vWB+9}")
    e(f"global_store_dwordx4 v{vT+2}, {vr(vT+4,4)}, {sWS} sc1\n {lq}:")
    g.c("zero-fill-done flag: the fill is older than the wq loads every wave waited for before the barrier")
    lz = g.label("Lnf")
    e(f"s_cmp_eq_u32 {SFIN}, 0\n s_cbranch_scc1 {lz}\n s_cmp_lg_u32 {SW}, 2\n s_cbranch_scc1 {lz}")
    e(f"v_mov_b32 v{vT+4}, {ST}\n v_mov_b32 v{vT+5}, {ST}\n v_mov_b32 v{vT+6}, {ST}\n v_mov_b32 v{vT+7}, {ST}")
    e(f"s_lshl_b32 s55, {SB}, 8\n s_add_u32 s55, s55, {WS_ZF}\n v_mov_b32 v{vT+8}, s55\n s_mov_b64 exec, 1")
    e(f"global_store_dwordx4 v{vT+8}, {vr(vT+4,4)}, {sWS} sc1\n s_mov_b64 exec, -1\n {lz}:")
    if P.DRY:
        ld = g.label("Lnd")
        e(f"s_cmp_lg_u32 {SW}, {P.DRYW}\n s_cbranch_scc1 Ldryret\n s_mov_b64 {FULL}, 0\n s_mov_b64 exec, 0\n s_branch Ltail")
        e(f"Ldryret:\n s_mov_b64 {FULL}, -1\n s_mov_b64 exec, -1")
    g.c("mixer weights: 12 chunks of 1KB (array = chunk>>2, zero past 3456 B); wave w takes chunk w and, for w<4, chunk 8+w")
    vMW = vWB + 32
    e(f"s_cmp_lt_u32 {SW}, 4\n s_cselect_b32 s48, s20, s22\n s_cselect_b32 s49, s21, s23\n s_mov_b32 s50, 3456")
    e(f"s_and_b32 s55, {SW}, 3\n s_lshl_b32 s55, s55, 10")
    g.vm(f"buffer_load_dwordx4 {vr(vMW,4)}, v{vL16}, s[48:51], s55 offen {P.POL}", ("mw", 0))
    e(f"s_mov_b32 s48, s24\n s_mov_b32 s49, s25\n s_lshl_b32 s55, {SW}, 10\n v_add_u32 v{vT+3}, s55, v{vL16}")
    g.vm(f"buffer_load_dwordx4 {vr(vMW+4,4)}, v{vL16}, s[48:51], s55 offen {P.POL}", ("mw", 1))
    g.vm(f"global_load_ushort v{vB2}, v{vB2}, {sB2}", ("b2", 0))
    e(f"s_lshl_b32 s55, {SH}, 1\n s_add_u32 s55, s55, {SB}\n s_lshl_b32 s55, s55, 3\n s_add_u32 s55, s55, {SW}\n s_lshl_b32 s55, s55, 10\n s_add_u32 s55, s55, {WS_QG}")
    e(f"v_add_u32 v{vMISC+2}, s55, v{vL16}\n s_lshl_b32 s55, {SW}, 9\n v_lshl_add_u32 v{vMISC+3}, v{vLANE}, 3, s55")
    mw_at = st["nk"] + 3
    qload = f"global_load_dwordx4 {vr(vML,4)}, v{vMISC+2}, {sWS} sc1"
    while st["nk"] < P.NPRO:
        if st["nk"] < P.QPOLL_USE + 1: g.cap(P.WPRO)
        kv_issue()
        if st["nk"] == mw_at:
            g.wait(("b2", 0))
            lm = g.label("Lmw")
            e(f"v_lshlrev_b32 v{vB2}, 16, v{vB2}\n ds_write_b128 v{vT+3}, {vr(vMW,4)} offset:{L_MW}\n s_cmp_ge_u32 {SW}, 4\n s_cbranch_scc1 {lm}")
            e(f"ds_write_b128 v{vT+3}, {vr(vMW+4,4)} offset:{L_MW + 8192}\n {lm}:")
        if st["nk"] == P.QPOLL_AT and P.XQ: g.vm(qload, ("qg", 0))
        if st["nk"] == P.QPOLL_USE and P.XQ:
            g.wait(("qg", 0)); stamp(g, 8, 3)
            tag_poll([vML+1, vML+3], qload, 1)
            e(f"v_mov_b32 v{vML+1}, v{vML+2}\n ds_write_b64 v{vMISC+3}, {vr(vML,2)} offset:{L_QP}")
    stamp(g, 10, 3)
    e(f"v_lshlrev_b32 v{vT}, 4, v{vC}\n s_waitcnt lgkmcnt(0)\n s_barrier")
    QS = vWB
    for half in range(2):
        for w in range(4):
            o = L_QP + (4*half + w)*512
            e(f"ds_read_b128 {vr(QS+8*w,4)}, v{vT} offset:{o}\n ds_read_b128 {vr(QS+8*w+4,4)}, v{vT} offset:{o + 256}")
        for w in range(4):
            e(f"s_waitcnt lgkmcnt({6-2*w})")
            for k in range(8):
                e(f"v_mov_b32 v{vB+k}, v{QS+k}" if half == 0 and w == 0 else f"v_add_f32 v{vB+k}, v{vB+k}, v{QS+8*w+k}")
    for k in range(4): e(f"v_cvt_pk_bf16_f32 v{vQ+k}, v{vB+2*k}, v{vB+2*k+1}")
    g.c("table inputs of this wave: entry k*2048 + (wg*8+w), k = 0..2")
    e(f"s_lshl_b32 s55, s2, 3\n s_add_u32 s55, s55, {SW}\n s_add_u32 s56, s55, {EMIN<<7}\n s_lshl_b32 s56, s56, 16")
    e(f"s_add_u32 s57, s55, {2048 + (EMIN<<7)}\n s_add_u32 s58, s55, {2048 - 3072 + (EMIN<<7) + 0x8000}")
    e(f"s_cmp_ge_u32 s55, 1024\n s_cselect_b32 s57, s58, s57\n s_lshl_b32 s57, s57, 16")
    e(f"s_add_u32 s58, s55, {4096 - 3072 + (EMIN<<7) + 0x8000}\n s_lshl_b32 s58, s58, 16")
    e(f"v_mov_b32 v{vTA}, 0\n v_mov_b32 v{vTA+1}, 0\n v_mov_b32 v{vTA+2}, 0\n v_lshlrev_b32 v{vTL}, 2, v{vLANE}")
    e("s_mov_b32 s4, 0xcccccccc\n s_mov_b32 s5, 0xcccccccc\n s_mov_b32 s6, 0xaaaaaaaa\n s_mov_b32 s7, 0xaaaaaaaa")
    stamp(g, 3)
    tab_iters = [4, 4, 3, 3]
    def stepA(i, t):
        e(f"v_add_f32_dpp v{vB + (i & 7)}, v{t}, v{t} row_mirror row_mask:0xf bank_mask:{'0x3' if i < 8 else '0xc'}")
    for G_ in range(4):
        pend = None
        for i in range(16):
            n = 16*G_ + i
            g.wait(("kv", n))
            r = ring(n); t = vT + (i & 1)
            if P.XCOMP:
                e(f"v_dot2_f32_bf16 v{t}, v{r}, v{vQ}, 0")
                for k in range(1, 4): e(f"v_dot2_f32_bf16 v{t}, v{r+k}, v{vQ+k}, v{t}")
                if pend is not None: stepA(*pend)
            pend = (i, t)
            after_consume(n)
        pre_issue(n)
        e("s_nop 2"); stepA(*pend); e("s_nop 1")
        for u in range(4):
            e(f"v_add_f32_dpp v{vT+u}, v{vB+u}, v{vB+u} row_half_mirror row_mask:0xf bank_mask:0x5")
            e(f"v_add_f32_dpp v{vT+u}, v{vB+u+4}, v{vB+u+4} row_half_mirror row_mask:0xf bank_mask:0xa")
        e("s_nop 0")
        for u in range(4): e(f"v_add_f32_dpp v{vT+4+u}, v{vT+u}, v{vT+u} quad_perm:[2,3,0,1] {DPP}")
        e(f"v_cndmask_b32 v{vT}, v{vT+4}, v{vT+6}, s[4:5]\n v_cndmask_b32 v{vT+1}, v{vT+5}, v{vT+7}, s[4:5]\n s_nop 1")
        e(f"v_add_f32_dpp v{vT+2}, v{vT}, v{vT} quad_perm:[1,0,3,2] {DPP}\n v_add_f32_dpp v{vT+3}, v{vT+1}, v{vT+1} quad_perm:[1,0,3,2] {DPP}")
        e(f"v_cndmask_b32 v{vT}, v{vT+2}, v{vT+3}, s[6:7]")
        bf16r(g, vT, vT)
        e(f"v_mul_f32 v{vT}, {f2u(128**-0.5):#x}, v{vT}")
        bf16r(g, vS+G_, vT)
        stamp(g, 4+G_, 1 if G_ < 3 else 0)
        if P.XTAB: e(f"s_mov_b32 s3, {tab_iters[G_]}\n s_call_b64 s[30:31], Ltab")
    e(f"v_max_f32 v{vT}, v{vS}, v{vS+1}\n v_max3_f32 v{vT}, v{vS+2}, v{vS+3}, v{vT}\n s_nop 1")
    wave_reduce(g, "v_max_f32", [vT])
    e(f"v_readlane_b32 s52, v{vT}, 63\n s_nop 1")
    for k in range(4): e(f"v_subrev_f32 v{vS+k}, s52, v{vS+k}")
    for k in range(4): e(f"v_mul_f32 v{vS+k}, {f2u(LOG2E):#x}, v{vS+k}")
    for k in range(4): e(f"v_exp_f32 v{vS+k}, v{vS+k}")
    e(f"s_nop 0\n v_add_f32 v{vT}, v{vS}, v{vS+1}\n v_add_f32 v{vT+1}, v{vS+2}, v{vS+3}\n v_add_f32 v{vT}, v{vT}, v{vT+1}")
    for k in range(4): e(f"v_cvt_pk_bf16_f32 v{vS+k}, v{vS+k}, v{vS+k}")
    wave_reduce(g, "v_add_f32", [vT, vTA, vTA+1, vTA+2])
    e(f"v_mov_b32 v{vT+4}, s52\n v_mov_b32 v{vT+5}, {ST}\n v_mov_b32 v{vT+6}, v{vT}\n v_mov_b32 v{vT+7}, {ST}")
    tab_finish(g, vTA, vT+10, vB2)
    e(f"v_mov_b32 v{vT+11}, {ST}\n v_mov_b32 v{vT+13}, {ST}")
    if not P.XML: pass
    elif P.AGG:
        la = g.label("Lag")
        e(f"s_lshl_b32 s55, {SW}, 4\n v_mov_b32 v{vT+8}, s55\n v_mov_b32 v{vT+9}, 1\n v_mov_b32 v{vT+1}, 0")
        e("s_mov_b32 exec_lo, 0\n s_mov_b32 exec_hi, 0x80000000")
        e(f"ds_write_b128 v{vT+8}, {vr(vT+4,4)} offset:{L_AGG}\n ds_write_b128 v{vT+8}, {vr(vT+10,4)} offset:{L_AGG+128}\n s_waitcnt lgkmcnt(0)")
        e(f"ds_add_rtn_u32 v{vT+9}, v{vT+1}, v{vT+9} offset:{L_AGG+256}\n s_mov_b64 exec, -1\n s_waitcnt lgkmcnt(0)")
        e(f"v_readlane_b32 s55, v{vT+9}, 63\n s_nop 3\n s_cmp_lg_u32 s55, 7\n s_cbranch_scc1 {la}")
        e(f"ds_read_b128 {vr(vT+4,4)}, v{vL16} offset:{L_AGG}")
        e(f"s_lshl_b32 s55, s54, 7\n s_add_u32 s55, s55, {WS_ML}\n s_lshl_b32 s53, s2, 7\n s_add_u32 s53, s53, {WS_TAB - 128}")
        e(f"v_mov_b32 v{vT+8}, s55\n v_mov_b32 v{vT+9}, s53\n v_cmp_lt_u32 vcc, 7, v{vLANE}\n s_nop 1\n v_cndmask_b32 v{vT+8}, v{vT+8}, v{vT+9}, vcc\n v_add_u32 v{vT+8}, v{vT+8}, v{vL16}")
        e(f"s_mov_b64 exec, 0xffff\n s_waitcnt lgkmcnt(0)\n global_store_dwordx4 v{vT+8}, {vr(vT+4,4)}, {sWS} sc1\n s_mov_b64 exec, -1\n {la}:")
    else:
        e(f"s_lshl_b32 s55, s54, 3\n s_add_u32 s55, s55, {SW}\n s_lshl_b32 s55, s55, 4\n s_add_u32 s55, s55, {WS_ML}\n v_mov_b32 v{vT+8}, s55")
        e(f"s_lshl_b32 s55, s2, 3\n s_add_u32 s55, s55, {SW}\n s_lshl_b32 s55, s55, 4\n s_add_u32 s55, s55, {WS_TAB}\n v_mov_b32 v{vT+9}, s55")
        e("s_mov_b32 exec_lo, 0\n s_mov_b32 exec_hi, 0x80000000")
        g.vm(f"global_store_dwordx4 v{vT+8}, {vr(vT+4,4)}, {sWS} sc1", ("st", 0))
        g.vm(f"global_store_dwordx4 v{vT+9}, {vr(vT+10,4)}, {sWS} sc1", ("st", 1))
        e("s_mov_b64 exec, -1")
    vMLO, vTBO, vXA = vMISC+3, vMISC+4, vMISC+5
    e(f"s_lshr_b32 s55, s54, 2\n s_lshl_b32 s55, s55, 9\n s_add_u32 s55, s55, {WS_ML}\n v_add_u32 v{vMLO}, s55, v{vL16}")
    e(f"s_lshl_b32 s55, {SB}, 8\n s_add_u32 s55, s55, {WS_ZF}\n v_mov_b32 v{vB}, s55\n v_cmp_lt_u32 vcc, 31, v{vLANE}\n s_nop 1\n v_cndmask_b32 v{vMLO}, v{vMLO}, v{vB}, vcc")
    e(f"s_add_u32 s48, s32, {WS_TAB}\n s_addc_u32 s49, s33, 0\n s_lshl_b32 s50, {SFIN}, 15\n v_lshlrev_b32 v{vTBO}, 4, v0")
    g.c("final stage x values (final workgroups only): columns 3j..3j+2, j = min(tid,213), and column 0")
    e(f"v_min_u32 v{vXA}, 213, v0\n v_mul_u32_u24 v{vXA}, 6, v{vXA}\n s_mul_i32 s55, {SB}, 1280\n v_add_u32 v{vXA}, s55, v{vXA}\n v_mov_b32 v{vXF+3}, s55")
    e(f"s_mov_b32 s44, s8\n s_mov_b32 s45, s9\n s_mul_i32 s46, {SFIN}, 2560")
    lx = g.label("Lxf")
    e(f"s_cmp_eq_u32 {SFIN}, 0\n s_cbranch_scc1 {lx}")
    for k in range(3): e(f"buffer_load_ushort v{vXF+k}, v{vXA}, s[44:47], 0 offen offset:{2*k}")
    e(f"buffer_load_ushort v{vXF+3}, v{vXF+3}, s[44:47], 0 offen\n {lx}:")
    vOPW, vOPR, vOUW = vML+1, vML+2, vML+3
    for i in range(64):
        n = 64 + i
        g.wait(("kv", n))
        if P.XCOMP: rowmac(vACC, vS + i//16, i % 16, ring(n), first=(i == 0))
        if i % 16 == 15: stamp(g, 8 + i//16, 1 if i < 48 else 0)
        after_consume(n)
        tload = "\n".join(f"s_mov_b32 s55, {k*8192}\n buffer_load_dwordx4 {vr(vTB+4*k,4)}, v{vTBO}, s[48:51], s55 offen sc1" for k in range(4))
        if i == P.TAB_AT and P.XML:
            for k in range(4):
                e(f"s_mov_b32 s55, {k*8192}")
                g.vm(f"buffer_load_dwordx4 {vr(vTB+4*k,4)}, v{vTBO}, s[48:51], s55 offen sc1", ("tb", k))
        if i == P.TAB_USE and P.XML:
            g.wait(("tb", 3))
            ls = g.label("Lts")
            e(f"s_cmp_eq_u32 {SFIN}, 0\n s_cbranch_scc1 {ls}")
            tag_poll([vTB+1+2*k for k in range(8)], tload, 2)
            e(f"v_lshlrev_b32 v{vT}, 3, v0")
            for k in range(4):
                e(f"v_mov_b32 v{vTB+4*k+1}, v{vTB+4*k+2}\n ds_write_b64 v{vT}, {vr(vTB+4*k,2)} offset:{L_TAB + k*4096}")
            for k in range(4): e(f"v_lshlrev_b32 v{vXF+k}, 16, v{vXF+k}")
            e(f"{ls}:")
        mload = f"global_load_dwordx4 {vr(vML,4)}, v{vMLO}, {sWS} sc1"
        if i == P.POLL_AT and P.XML: g.vm(mload, ("ml", 0))
        if i == P.POLL_USE:
            pre_issue(n)
            g.wait(("ml", 0))
            if P.XML: tag_poll([vML+1, vML+3], mload, 2)
            e(f"s_mov_b32 exec_lo, 0\n v_mov_b32 v{vML}, s52\n v_mov_b32 v{vML+2}, 0\n s_mov_b32 exec_lo, -1")
            e(f"v_mov_b32 v{vT}, v{vML}\n s_nop 1")
            wave_reduce(g, "v_max_f32", [vT])
            e(f"v_readlane_b32 s53, v{vT}, 63\n s_nop 1")
            e(f"v_subrev_f32 v{vML}, s53, v{vML}\n v_mov_b32 v{vT+1}, s52\n v_subrev_f32 v{vT+1}, s53, v{vT+1}")
            e(f"v_mul_f32 v{vML}, {f2u(LOG2E):#x}, v{vML}\n v_mul_f32 v{vT+1}, {f2u(LOG2E):#x}, v{vT+1}")
            e(f"v_exp_f32 v{vML}, v{vML}\n v_exp_f32 v{vT+1}, v{vT+1}\n s_nop 0\n v_mul_f32 v{vT}, v{vML}, v{vML+2}\n s_nop 1")
            wave_reduce(g, "v_add_f32", [vT])
            e(f"v_readlane_b32 s53, v{vT}, 63\n s_nop 1\n v_rcp_f32 v{vT}, s53\n s_nop 0\n v_mul_f32 v{vML}, v{vT+1}, v{vT}")
            g.c("addresses for the tail")
            e(f"s_lshl_b32 s55, {SW}, 9\n v_add_u32 v{vOPW}, s55, v{vL16}")
            e(f"v_and_b32 v{vT}, 1, v{vC}\n v_lshlrev_b32 v{vT}, 8, v{vT}\n v_bfe_u32 v{vT+1}, v{vC}, 1, 1\n v_lshl_add_u32 v{vT}, v{vT+1}, 4, v{vT}")
            e(f"v_lshl_add_u32 v{vT}, v{vG}, 2, v{vT}\n v_lshrrev_b32 v{vT+1}, 2, v{vC}\n v_lshl_add_u32 v{vT}, v{vT+1}, 10, v{vT}")
            e(f"s_lshl_b32 s55, {SW}, 5\n v_add_u32 v{vOPR}, s55, v{vT}")
            e(f"s_mul_i32 s55, {SW}, 2560\n v_lshlrev_b32 v{vT}, 5, v{vC}\n v_lshl_add_u32 v{vT}, v{vG}, 4, v{vT}\n v_add_u32 v{vOUW}, s55, v{vT}")
            for k in range(2):
                e(f"v_add_u32 v{vT}, {512*k}, v0\n v_lshlrev_b32 v{vB+2+k}, 2, v{vT}\n v_lshrrev_b32 v{vT+1}, 2, v{vT}\n v_and_b32 v{vT}, 3, v{vT}")
                e(f"v_mad_u32_u24 v{vT+1}, v{vT+1}, 3, v{vT}\n v_min_u32 v{vB+k}, 639, v{vT+1}\n v_lshlrev_b32 v{vB+k}, 2, v{vB+k}")
            e(f"s_movk_i32 s55, 639\n v_cmp_lt_u32 s[6:7], s55, v{vT+1}\n s_mov_b32 s4, 0x88888888\n s_mov_b32 s5, 0x88888888")
            g.c("final stage constants")
            vPA, vO0, vO1, vFW, vZ = vMISC+2, vMISC+3, vMISC+4, vMISC+5, vMISC+6
            e(f"v_min_u32 v{vPA}, 213, v0\n v_lshlrev_b32 v{vPA}, 4, v{vPA}\n v_mul_u32_u24 v{vT}, 3, v0")
            e(f"s_movk_i32 s55, 640\n v_cmp_gt_u32 s[56:57], s55, v{vT}\n s_movk_i32 s55, 639\n v_cmp_gt_u32 s[58:59], s55, v{vT}")
            e(f"s_mul_i32 s55, {SB}, 1280\n v_lshl_add_u32 v{vT}, v{vT}, 1, s55\n v_mov_b32 v{vT+1}, 0x7ffffff0")
            e(f"v_cndmask_b32 v{vO0}, v{vT+1}, v{vT}, s[56:57]\n v_cndmask_b32 v{vO1}, v{vT+1}, v{vT}, s[58:59]")
            e(f"s_lshl_b32 s55, {SW}, 3\n v_mov_b32 v{vFW}, s55\n v_mov_b32 v{vZ}, 0")
            e(f"s_lshl_b32 s55, {SB}, 15\n s_add_u32 s55, s55, {WS_ACC}\n s_add_u32 s44, s32, s55\n s_addc_u32 s45, s33, 0\n s_mov_b32 s46, {P.R*REP_STRIDE}")
            e("s_mov_b32 s48, s28\n s_mov_b32 s49, s29\n s_mov_b32 s50, 2560")
    assert st["nwo"] == 20 and st["nk"] == 128, st
    def guarded(text):
        if not P.DRY: e(text); return
        l = g.label("Lg"); e(f"s_cbranch_execz {l}"); e(text); e(f"{l}:")
    oacc = lambda t: vTB+4*t if t < 4 else vB+4
    if P.DIAG == 5: e('s_memtime s[72:73]')
    if not P.XTAIL: e("s_branch Ldone")
    e("s_nop 7")
    e("Ltail:")
    for r in range(4): e(f"v_mul_f32 v{vACC+r}, v{vACC+r}, v{vML}")
    e(f"s_mov_b32 exec_hi, 0\n ds_write_b128 v{vOPW}, {vr(vACC,4)} offset:{L_QP}\n s_mov_b64 exec, {FULL}")
    wow = ""
    if ("wo", 19) in g.fifo:
        wow = f"s_waitcnt vmcnt({len(g.fifo) - 1 - g.fifo.index(('wo', 19))})\n"
    guarded(wow + "s_waitcnt lgkmcnt(0)\n s_barrier")
    stamp(g, 4, 4)
    e(f"ds_read2_b32 {vr(vT,2)}, v{vOPR} offset0:0 offset1:128")
    e(f"s_waitcnt lgkmcnt(0)\n v_add_f32 v{vT}, v{vT}, v{vT+1}\n s_nop 1")
    e(f"v_add_f32_dpp v{vT}, v{vT}, v{vT} row_ror:4 {DPP}\n s_nop 1\n v_add_f32_dpp v{vT}, v{vT}, v{vT} row_ror:8 {DPP}")
    e(f"v_cvt_pk_bf16_f32 v{vT}, v{vT}, v{vT}\n s_nop 1")
    for ii in range(4):
        for t in range(5): rowmac(oacc(t), vT, ii, vWB+4*(5*ii+t), build=(t == 0), first=(ii == 0))
    stamp(g, 5, 4)
    e("s_nop 3\n s_mov_b32 exec_hi, 0")
    for t in range(5): e(f"ds_write_b128 v{vOUW}, {vr(oacc(t),4)} offset:{L_OUTP + t*512}")
    e(f"s_mov_b64 exec, {FULL}")
    guarded("s_waitcnt lgkmcnt(0)\n s_barrier")
    stamp(g, 6, 4)
    if P.DIAG == 4: e("s_waitcnt lgkmcnt(0)")
    base64 = L_OUTP // 256
    GA = vT
    for k in range(2):
        for p in range(4): e(f"ds_read2st64_b32 {vr(GA+8*k+2*p,2)}, v{vB+k} offset0:{base64+20*p} offset1:{base64+20*p+10}")
    for k in range(2):
        r = GA+8*k
        e(f"s_waitcnt lgkmcnt({4-4*k})")
        e(f"v_add_f32 v{r}, v{r}, v{r+1}\n v_add_f32 v{r+2}, v{r+2}, v{r+3}\n v_add_f32 v{r+4}, v{r+4}, v{r+5}\n v_add_f32 v{r+6}, v{r+6}, v{r+7}")
        e(f"v_add_f32 v{r}, v{r}, v{r+2}\n v_add_f32 v{r+4}, v{r+4}, v{r+6}\n v_add_f32 v{r}, v{r}, v{r+4}")
        if k == 1: e(f"v_cndmask_b32 v{r}, v{r}, 0, s[6:7]")
        e(f"v_cndmask_b32 v{r}, v{r}, 1.0, s[4:5]")
        guarded(f"buffer_atomic_add_f32 v{r}, v{vB+2+k}, s[40:43], 0 offen")
    stamp(g, 12)
    e(f"s_cmp_eq_u32 {SFIN}, 0\n s_cbranch_scc1 Ldone\n s_cmp_ge_u32 {SW}, 4\n s_cbranch_scc1 Ldone")
    vPA, vO0, vO1, vFW, vZ = vMISC+2, vMISC+3, vMISC+4, vMISC+5, vMISC+6
    PL = vWB
    H, N, Y = vT, vT+4, vT+8
    if P.DIAG == 4: e("s_mov_b32 s94, 0\nLagain:")
    e(f"s_mov_b32 s3, {SPIN:#x}\n Lpoll:")
    guarded("\n".join(f"s_movk_i32 s55, {r*REP_STRIDE}\n buffer_load_dwordx4 {vr(PL+8*r,4)}, v{vPA}, s[44:47], s55 offen sc1\n buffer_load_dwordx4 {vr(PL+8*r+4,4)}, v{vZ}, s[44:47], s55 offen sc1" for r in range(P.R)) + "\n s_waitcnt vmcnt(0)")
    cs = [PL+4*k+3 for k in range(2*P.R)]
    e(f"v_min_f32 v{Y}, v{cs[0]}, v{cs[1]}")
    for k in range(2, len(cs), 2): e(f"v_min3_f32 v{Y}, v{cs[k]}, v{cs[k+1]}, v{Y}")
    def tree(dst, regs):
        regs = list(regs)
        while len(regs) > 2:
            for a in range(0, len(regs) - 1, 2): e(f"v_add_f32 v{regs[a]}, v{regs[a]}, v{regs[a+1]}")
            regs = regs[0::2]
        e(f"v_add_f32 v{dst}, v{regs[0]}, v{regs[1]}" if len(regs) == 2 else f"v_mov_b32 v{dst}, v{regs[0]}")
    e(f"v_cmp_gt_f32 vcc, {f2u(128.0/P.R):#x}, v{Y}\n s_cbranch_vccz Lpdone")
    if P.PSLEEP: e(f"v_cmp_gt_f32 vcc, {f2u(128.0/P.R - P.PMISS):#x}, v{Y}\n s_cbranch_vccz Lpns\n s_sleep {P.PSLEEP}\n Lpns:")
    e("s_sub_u32 s3, s3, 1\n s_cbranch_scc0 Lpoll\n Lpdone:")
    if P.DIAG == 4: e("s_mov_b64 s[78:79], s[88:89]\n s_mov_b64 s[80:81], s[82:83]")
    stamp(g, 13)
    for k in range(3): tree(H+k, [PL+8*r+k for r in range(P.R)])
    tree(H+3, [PL+8*r+4 for r in range(P.R)])
    bf16r_n(g, [H, H+1, H+2])
    for k in range(4): e(f"v_add_f32 v{H+k}, v{H+k}, v{vXF+k}")
    bf16r_n(g, [H, H+1, H+2])
    def ln_block(src, dst, piv, slot):
        s1, s2 = vT+12, vT+13; Z = vWB+64
        for k in range(3): e(f"v_sub_f32 v{Y+k}, v{src+k}, v{piv}")
        e(f"v_cndmask_b32 v{Y}, 0, v{Y}, s[56:57]\n v_cndmask_b32 v{Y+1}, 0, v{Y+1}, s[58:59]\n v_cndmask_b32 v{Y+2}, 0, v{Y+2}, s[58:59]")
        e(f"v_add_f32 v{s1}, v{Y}, v{Y+1}\n v_mul_f32 v{s2}, v{Y}, v{Y}\n v_fmac_f32 v{s2}, v{Y+1}, v{Y+1}\n v_add_f32 v{s1}, v{s1}, v{Y+2}\n v_fmac_f32 v{s2}, v{Y+2}, v{Y+2}\n s_nop 0")
        wave_reduce(g, "v_add_f32", [s1, s2])
        g.L.pop()
        e(f"s_mov_b32 exec_lo, 0\n s_and_b32 exec_hi, {FULLHI}, 0x80000000\n ds_write_b64 v{vFW}, {vr(s1,2)} offset:{L_FIN + slot*32}\n s_mov_b64 exec, {FULL}")
        guarded("s_waitcnt lgkmcnt(0)\n s_barrier")
        e(f"ds_read_b128 {vr(Z,4)}, v{vZ} offset:{L_FIN + slot*32}\n ds_read_b128 {vr(Z+4,4)}, v{vZ} offset:{L_FIN + slot*32 + 16}\n s_waitcnt lgkmcnt(0)")
        e(f"v_pk_add_f32 {vr(Z,2)}, {vr(Z,2)}, {vr(Z+2,2)}\n v_pk_add_f32 {vr(Z+4,2)}, {vr(Z+4,2)}, {vr(Z+6,2)}\n v_pk_add_f32 {vr(Z,2)}, {vr(Z,2)}, {vr(Z+4,2)}")
        e(f"v_mul_f32 v{Y}, {f2u(1.0/640):#x}, v{Z}\n v_mul_f32 v{Y+1}, {f2u(1.0/640):#x}, v{Z+1}")
        e(f"v_fma_f32 v{Y+1}, -v{Y}, v{Y}, v{Y+1}\n v_add_f32 v{Y}, v{Y}, v{piv}\n v_max_f32 v{Y+1}, 0, v{Y+1}\n v_mov_b32 v{Y+2}, v{Y}")
        bf16r_n(g, [Y+1, Y])
        e(f"v_add_f32 v{Y+1}, {f2u(1e-5):#x}, v{Y+1}")
        for k in range(3): e(f"v_sub_f32 v{dst+k}, v{src+k}, v{Y}")
        bf16r(g, Y+1, Y+1)
        e(f"v_sqrt_f32 v{Y+1}, v{Y+1}")
        bf16r_n(g, [dst, dst+1, dst+2])
        bf16r(g, Y+1, Y+1)
        e(f"v_rcp_f32 v{Y+1}, v{Y+1}\n v_sub_f32 v{Y+2}, v{Y+2}, v{Y}")
        for k in range(3): e(f"v_mul_f32 v{dst+k}, v{dst+k}, v{Y+1}")
        e(f"v_mul_f32 v{dst+3}, v{Y+2}, v{Y+1}")
        bf16r_n(g, [dst, dst+1, dst+2])
    ln_block(H, N, H+3, 0)
    N2 = vWB+72
    ln_block(N, N2, N+3, 1)
    I = vT+8
    for k in range(3): e(f"v_bfe_u32 v{I+k}, v{N2+k}, 16, 15")
    for k in range(3): e(f"v_subrev_u32 v{I+k}, {EMIN<<7}, v{I+k}\n v_ashrrev_i32 v{N+k}, 31, v{N2+k}")
    e(f"v_max3_u32 v{vT+12}, v{I}, v{I+1}, v{I+2}\n s_movk_i32 s55, 3071")
    for k in range(3): e(f"v_min_u32 v{I+k}, s55, v{I+k}\n v_and_b32 v{N+k}, 3072, v{N+k}")
    e(f"v_cmp_lt_u32 vcc, s55, v{vT+12}" if P.XLIM == 3071 else f"v_cmp_lt_u32 vcc, {P.XLIM}, v{vT+12}")
    for k in range(3): e(f"v_add_u32 v{I+k}, v{I+k}, v{N+k}")
    for k in range(3): e(f"v_and_b32 v{N+k}, 2047, v{I+k}\n v_lshrrev_b32 v{I+k}, 10, v{I+k}")
    for k in range(3): e(f"v_and_b32 v{I+k}, 6, v{I+k}")
    for k in range(3): e(f"v_lshl_add_u32 v{I+k}, v{N+k}, 3, v{I+k}")
    for k in range(3): e(f"ds_read_u16 v{I+k}, v{I+k} offset:{L_TAB}")
    e("s_and_b64 vcc, vcc, s[56:57]\n s_cbranch_scc1 Lslow" if P.XTAB and P.XWO and P.XCOMP and P.XML and P.XQ else "")
    e("s_waitcnt lgkmcnt(0)\n Lback:")
    for k in range(3): e(f"v_lshlrev_b32 v{I+k}, 16, v{I+k}")
    for k in range(3): e(f"v_add_f32 v{I+k}, v{I+k}, v{H+k}")
    for k in range(3): e(f"v_cvt_pk_bf16_f32 v{I+k}, v{I+k}, v{I+k}")
    guarded(f"buffer_store_short v{I}, v{vO0}, s[48:51], 0 offen\n buffer_store_short v{I+1}, v{vO1}, s[48:51], 0 offen offset:2\n buffer_store_short v{I+2}, v{vO1}, s[48:51], 0 offen offset:4")
    if P.DIAG == 4:
        stamp(g, 10); e("s_waitcnt lgkmcnt(0)\n s_add_u32 s94, s94, 1\n s_cmp_lt_u32 s94, 2\n s_cbranch_scc1 Lagain")
    if P.DRY: e("s_cbranch_execz Ldryret")
    e(f"s_cmp_lg_u32 s2, {FINAL_IDS[0]}\n s_cbranch_scc1 Ldone\n s_cmp_lg_u32 {SW}, 0\n s_cbranch_scc1 Ldone")
    e(f"v_mov_b32 v{vT}, {ST}\n s_mov_b64 exec, 1\n global_store_dword v{vZ}, v{vT}, {sWS} offset:{WS_E} sc1\n s_mov_b64 exec, -1")
    e("Ldone:")
    if P.DRY: e("s_cbranch_execz Ldryret")
    if P.DIAG:
        stamp(g, 14)
        e(f"s_lshl_b32 s55, s2, 3\n s_add_u32 s55, s55, {SW}\n s_lshl_b32 s55, s55, 6\n s_add_u32 s55, s55, {WS_DIAG}\n s_getreg_b32 s3, hwreg(HW_REG_XCC_ID)\n s_waitcnt lgkmcnt(0)")
        e(f"v_mov_b32 v{vT}, s55\n s_mov_b64 exec, 1")
        for k in range(15): e(f"v_mov_b32 v{vR+k}, s{62+2*k}")
        e(f"v_mov_b32 v{vR+15}, s3")
        for k in range(4): e(f"global_store_dwordx4 v{vT}, {vr(vR+4*k,4)}, {sWS} offset:{16*k}")
    e("Lend:\n s_endpgm")
    SV = vR
    e("Lslow:\n s_waitcnt lgkmcnt(0)\n s_mov_b64 s[52:53], vcc")
    for k in range(16): e(f"v_mov_b32 v{SV+k}, v{vT+k}")
    e("Lslow1:\n s_ff1_i32_b64 s55, s[52:53]\n s_bitset0_b64 s[52:53], s55\n s_mov_b32 m0, s55\n s_nop 1")
    for k in range(3): e(f"v_readlane_b32 s{56+k}, v{N2+k}, m0")
    e(f"v_mov_b32 v{vTA}, 0\n v_mov_b32 v{vTA+1}, 0\n v_mov_b32 v{vTA+2}, 0\n v_lshlrev_b32 v{vTL}, 2, v{vLANE}")
    e("s_mov_b32 s3, 14\n s_call_b64 s[30:31], Ltab")
    wave_reduce(g, "v_add_f32", [vTA, vTA+1, vTA+2])
    tab_finish(g, vTA, vT+10, vB2)
    e(f"s_nop 0\n v_readlane_b32 s56, v{vT+10}, 63\n v_readlane_b32 s58, v{vT+12}, 63\n s_nop 3\n s_lshr_b32 s57, s56, 16\n s_and_b32 s56, s56, 0xffff\n s_and_b32 s58, s58, 0xffff")
    for k in range(3): e(f"v_writelane_b32 v{SV+8+k}, s{56+k}, m0")
    e("s_cmp_lg_u64 s[52:53], 0\n s_cbranch_scc1 Lslow1")
    for k in range(16): e(f"v_mov_b32 v{vT+k}, v{SV+k}")
    e("s_branch Lback")
    w1, b1, w2, wl, wh, bl, bh = vT, vT+1, vT+2, vT+3, vT+4, vT+5, vT+6
    K0 = (2/3.141592653589793)**0.5; C1 = -2*K0*LOG2E; C3 = C1*0.044715
    e("Ltab:")
    e(f"ds_read_b32 v{w1}, v{vTL} offset:{L_MW}\n ds_read_b32 v{b1}, v{vTL} offset:{L_MW+4096}\n ds_read_b32 v{w2}, v{vTL} offset:{L_MW+8192}")
    e(f"v_add_u32 v{vTL}, 256, v{vTL}\n v_mov_b32 v{vT+7}, {f2u(C1):#x}\n v_mov_b32 v{vT+14}, {f2u(C3):#x}\n s_waitcnt lgkmcnt(0)")
    e(f"v_lshlrev_b32 v{wl}, 16, v{w1}\n v_and_b32 v{wh}, 0xffff0000, v{w1}\n v_lshlrev_b32 v{bl}, 16, v{b1}\n v_and_b32 v{bh}, 0xffff0000, v{b1}")
    u0, u1, z0, z1 = vT+8, vT+9, vT+10, vT+11
    for k in range(3):
        e(f"v_mul_f32 v{u0}, s{56+k}, v{wl}\n v_mul_f32 v{u1}, s{56+k}, v{wh}\n v_cvt_pk_bf16_f32 v{z0}, v{u0}, v{u1}")
        e(f"v_lshlrev_b32 v{u0}, 16, v{z0}\n v_and_b32 v{u1}, 0xffff0000, v{z0}\n v_add_f32 v{u0}, v{u0}, v{bl}\n v_add_f32 v{u1}, v{u1}, v{bh}")
        e(f"v_cvt_pk_bf16_f32 v{z0}, v{u0}, v{u1}\n v_lshlrev_b32 v{u0}, 16, v{z0}\n v_and_b32 v{u1}, 0xffff0000, v{z0}")
        e(f"v_mul_f32 v{z0}, v{u0}, v{u0}\n v_mul_f32 v{z1}, v{u1}, v{u1}\n v_fma_f32 v{z0}, v{z0}, v{vT+14}, v{vT+7}\n v_fma_f32 v{z1}, v{z1}, v{vT+14}, v{vT+7}")
        e(f"v_mul_f32 v{z0}, v{z0}, v{u0}\n v_mul_f32 v{z1}, v{z1}, v{u1}\n v_exp_f32 v{z0}, v{z0}\n v_exp_f32 v{z1}, v{z1}")
        e(f"v_add_f32 v{z0}, 1.0, v{z0}\n v_add_f32 v{z1}, 1.0, v{z1}\n v_rcp_f32 v{z0}, v{z0}\n v_rcp_f32 v{z1}, v{z1}")
        e(f"v_mul_f32 v{z0}, v{z0}, v{u0}\n v_mul_f32 v{z1}, v{z1}, v{u1}\n v_cvt_pk_bf16_f32 v{vT+12}, v{z0}, v{z1}")
        e(f"v_dot2_f32_bf16 v{vTA+k}, v{vT+12}, v{w2}, v{vTA+k}")
    e("s_sub_u32 s3, s3, 1\n s_cmp_lg_u32 s3, 0\n s_cbranch_scc1 Ltab\n s_nop 2\n s_setpc_b64 s[30:31]")
    return g

HEADER = open("cdna_kernels/" + NAME + ".s.ref").read().split("; Override launch")[0]

def emit():
    g = gen()
    nv = (g.nv + 7)//8*8
    out = HEADER + f"; @launch grid=(256,1,1) block=(512,1,1) lds={LDS_BYTES}\n"
    out += '.amdgcn_target "amdgcn-amd-amdhsa--gfx950"\n.text\n'
    out += f".globl {KN}\n.p2align 8\n.type {KN},@function\n" + "\n".join(g.L) + "\n"
    out += f""".section .rodata,"a"
.p2align 6
.amdhsa_kernel {KN}
  .amdhsa_next_free_vgpr {nv}
  .amdhsa_next_free_sgpr 96
  .amdhsa_accum_offset {nv}
  .amdhsa_group_segment_fixed_size 0
  .amdhsa_kernarg_size 104
  .amdhsa_user_sgpr_count 2
  .amdhsa_user_sgpr_kernarg_segment_ptr 1
  .amdhsa_system_sgpr_workgroup_id_x 1
  .amdhsa_float_denorm_mode_32 3
.end_amdhsa_kernel
"""
    return out, g

if __name__ == "__main__":
    ap = argparse.ArgumentParser()
    ap.add_argument("-o", default="cdna_kernels/" + NAME + ".s")
    ap.add_argument("set", nargs="*")
    a = ap.parse_args()
    for kv in a.set:
        k, v = kv.split("=", 1); old = getattr(P, k)
        setattr(P, k, v.replace("_", " ") if isinstance(old, str) else int(v))
    out, g = emit()
    open(a.o, "w").write(out)
    print("vgprs", g.nv, "lines", len(g.L))
```

```python
import sys, struct, argparse

NAME = "sequential_preLN__mha_block_cached__mixer_token_mlp__decode"
KN = NAME + "_kernel"
def f2u(x): return struct.unpack("<I", struct.pack("<f", x))[0]

class P:
    D = 16
    W = 4
    WEND = 7
    ENDAT = 104
    LAG = 8
    CU_N = 1
    CU_D = 2
    PRE = 3
    STRIDE = 5
    ROTJ = 16
    ROTX = 6
    ROT = 4
    R = 4
    POL = "nt"
    EB = 1
    K0 = 0
    KFIRST = 7
    KX1 = 0
    KX2 = 2
    NPRO = 20
    WPRO = 5
    QPOLL_AT = 12
    QPOLL_USE = 15
    WO_START = 24
    WO_EVERY = 5
    POLL_AT = 40
    POLL_USE = 52
    TAB_AT = 24
    TAB_USE = 36
    TABK0 = 10
    TABKE = 6
    TABPRO = 1
    AGG = 1
    DRY = 0
    DRYW = 3
    DIAG = 0
    XTAB = 1
    XWO = 1
    XTAIL = 1
    XML = 1
    XQ = 1
    XMM = 0
    XPRO = 9
    PSLEEP = 0
    PMISS = 2
    XCOMP = 1
    XLIM = 3071

WS_E, WS_ZF, WS_ML, WS_TAB, WS_ACC, WS_QG, WS_DIAG = 0x0, 0x1000, 0x2000, 0x10000, 0x20000, 0x40000, 0x100000
REP_STRIDE, NGRAN = 3584, 214
L_QP, L_MW, L_Q1, L_OUTP, L_TAB, L_FIN = 0, 4096, 16384, 16384, 36864, 53248
L_AGG = L_FIN + 256
LDS_BYTES = 57344
EMIN = 108
LOG2E = 1.4426950408889634
FINAL_IDS = (0, 34)
DPP = "row_mask:0xf bank_mask:0xf"
SPIN = 0x40000

class G:
    def __init__(s): s.L = []; s.fifo = []; s.lab = 0; s.nv = 0
    def e(s, t):
        for x in t.split("\n"):
            x = x.strip()
            if x: s.L.append(("    " if not x.endswith(":") else "") + x)
    def c(s, t): s.L.append("    ; " + t)
    def label(s, p="L"): s.lab += 1; return f"{p}{s.lab}"
    def v(s, n=1, align=1):
        s.nv = (s.nv + align - 1)//align*align
        r = s.nv; s.nv += n; return r
    def vm(s, text, tag):
        s.e(text); s.fifo.append(tag); assert len(s.fifo) <= 63
    def wait(s, tag):
        if tag not in s.fifo: return
        i = s.fifo.index(tag); n = len(s.fifo) - 1 - i
        s.e(f"s_waitcnt vmcnt({n})"); del s.fifo[:i+1]
    def cap(s, W):
        kv = [t for t in s.fifo if t[0] == "kv"]
        if len(kv) >= W: s.wait(kv[-W])

def vr(r, n): return f"v[{r}:{r+n-1}]"

def wave_reduce(g, op, regs, nsteps=6):
    steps = [f"row_ror:8 {DPP}", f"row_ror:4 {DPP}", f"row_ror:2 {DPP}", f"row_ror:1 {DPP}",
             "row_bcast:15 row_mask:0xa bank_mask:0xf", "row_bcast:31 row_mask:0xc bank_mask:0xf"]
    for st in steps[:nsteps]:
        for r in regs: g.e(f"{op}_dpp v{r}, v{r}, v{r} {st}")
        pad = 2 - (len(regs) - 1)
        if pad > 0: g.e(f"s_nop {pad-1}")

def bf16r(g, d, s_):
    g.e(f"v_cvt_pk_bf16_f32 v{d}, 0, v{s_}")
def bf16r_n(g, regs):
    for r in regs: bf16r(g, r, r)

def stamp(g, k, mode=0):
    if P.DIAG and (mode == 0 or mode == P.DIAG): g.e(f"s_memrealtime s[{62+2*k}:{63+2*k}]")

def tab_finish(g, vTA, dst, vB2):
    bf16r_n(g, [vTA, vTA+1, vTA+2])
    for k in range(3): g.e(f"v_add_f32 v{vTA+k}, v{vTA+k}, v{vB2}")
    g.e(f"v_cvt_pk_bf16_f32 v{dst}, v{vTA}, v{vTA+1}\n v_cvt_pk_bf16_f32 v{dst+2}, v{vTA+2}, v{vTA+2}")

def gen():
    g = G(); e = g.e
    D, W = P.D, P.W
    g.v(); vLANE = g.v(); vL16 = g.v(); vOFF = g.v()
    vMK = g.v(4); vA = g.v(8, 2); vQ = g.v(4, 2); vS = g.v(4); vACC = g.v(4, 2)
    vB = g.v(8, 2); vT = g.v(16, 2)
    vTA = g.v(3); vTL = g.v(); vXF = g.v(4); vML = g.v(4, 2); vMISC = g.v(8, 2)
    vB2 = g.v(); vWOO = g.v(); vDT = g.v(2); vTB = g.v(16, 2)
    vR = g.v(4*D, 2); vWB = g.v(80, 2)
    NX = P.NPRO - D
    def ring(i):
        if i < D: return vR + 4*i
        if i < D + NX: return vWB + 80 - 4*NX + 4*(i - D)
        return vR + 4*((i - D - NX) % D)
    def slot_free_after(i):
        if i < D + NX: return -1
        return i - D - NX if i - D - NX < D else i - D
    sX, sK, sV, sWO, sB2, sWS = "s[8:9]", "s[10:11]", "s[12:13]", "s[16:17]", "s[26:27]", "s[32:33]"
    SW, SH, SB, SS, ST, SFIN = "s34", "s35", "s36", "s37", "s38", "s39"
    FULL = "s[60:61]"; FULLHI = "s61"
    vG, vC = vMISC, vMISC+1
    st = {"nk": 0, "nwo": 0, "ab": 0}
    def kv_issue():
        i = st["nk"]; st["nk"] += 1
        g.vm(f"global_load_dwordx4 {vr(ring(i),4)}, v{vOFF}, {sK if i < 64 else sV} nt", ("kv", i))
        e(f"v_add_u32 v{vOFF}, {P.STRIDE*1024}, v{vOFF}\n v_and_b32 v{vOFF}, 0xffff, v{vOFF}")
    def after_consume(n):
        if st["nk"] < 128 and slot_free_after(st["nk"]) <= n and st["nk"] <= n + max(P.LAG, P.NPRO - n*P.CU_N//P.CU_D):
            g.cap(W if st['nk'] < P.ENDAT else P.WEND); kv_issue()
        if n >= P.WO_START and (n - P.WO_START) % P.WO_EVERY == 0 and st["nwo"] < 20:
            k = st["nwo"]; st["nwo"] += 1; t = k % 5
            if P.XWO == 1: g.vm(f"global_load_dwordx4 {vr(vWB+4*k,4)}, v{vWOO}, {sWO} offset:{256*t} {P.POL}", ("wo", k))
            elif P.XWO == 2:
                g.vm(f"global_load_dwordx4 {vr(vWB+4*k,4)}, v{vWOO}, {sWO} offset:{256*t} {P.POL}", ("wo", k))
            elif P.XWO == 3:
                l = g.label("Lw"); e(f"s_bfe_u32 s55, s2, 0x30003\n s_cmp_lg_u32 s55, {SW}\n s_cbranch_scc1 {l}")
                e(f"global_load_dwordx4 {vr(vWB+4*k,4)}, v{vWOO}, {sWO} offset:{256*t} {P.POL}\n {l}:")
            if t == 4: e(f"v_add_u32 v{vWOO}, {4*1280}, v{vWOO}")
    def pre_issue(n):
        for _ in range(P.PRE):
            if st["nk"] < 128 and slot_free_after(st["nk"]) <= n: kv_issue()
    def rowmac(acc, src, lane, data, build=True, first=False):
        if build:
            st["ab"] ^= 1; a = vA + 4*st["ab"]
            for r in range(4): e(f"v_and_b32_dpp v{a+r}, v{src}, v{vMK+r} row_newbcast:{lane} {DPP}")
            e("s_nop 1")
        a = vA + 4*st["ab"]
        e(f"v_mfma_f32_16x16x32_bf16 {vr(acc,4)}, {vr(a,4)}, {vr(data,4)}, {'0' if first else vr(acc,4)}")
    def spam(n):
        l = g.label("Lsp")
        e(f"s_cmp_ge_u32 {SW}, 4\n s_cbranch_scc1 {l}")
        for t in range(n): e(f"v_mfma_f32_16x16x32_bf16 {vr(vTB+8+4*(t&1),4)}, {vr(vMK,4)}, {vr(vMK,4)}, 0")
        e(f"{l}:")
    def ln_finish(M_, V_):
        bf16r_n(g, [M_, V_])
        e(f"v_add_f32 v{V_}, {f2u(1e-5):#x}, v{V_}"); bf16r(g, V_, V_)
        e(f"v_sqrt_f32 v{V_}, v{V_}\n s_nop 0"); bf16r(g, V_, V_)
        e(f"v_rcp_f32 v{V_}, v{V_}\n s_nop 0")
    def tag_poll(regs, reload, sleep):
        lr = g.label("Lr"); lo = g.label("Lo")
        e(f"s_mov_b32 s3, {SPIN:#x}\n {lr}:")
        e(f"v_xor_b32 v{vT}, {ST}, v{regs[0]}")
        for r in regs[1:]: e(f"v_xor_b32 v{vT+1}, {ST}, v{r}\n v_or_b32 v{vT}, v{vT}, v{vT+1}")
        e(f"v_cmp_ne_u32 vcc, 0, v{vT}\n s_cbranch_vccz {lo}\n s_sub_u32 s3, s3, 1\n s_cbranch_scc1 {lo}\n s_sleep {sleep}")
        e(reload); e(f"s_waitcnt vmcnt(0)\n s_branch {lr}\n {lo}:")

    e(f"{KN}:")
    e("s_cmp_ge_u32 s2, 256\n s_cbranch_scc1 Lend")
    stamp(g, 0)
    if P.DIAG == 5: e('s_memtime s[70:71]')
    e("s_load_dwordx16 s[8:23], s[0:1], 0\n s_load_dwordx8 s[24:31], s[0:1], 64\n s_load_dwordx2 s[32:33], s[0:1], 96")
    e(f"v_lshrrev_b32 v{vT}, 6, v0\n v_and_b32 v{vLANE}, 63, v0\n v_readfirstlane_b32 {SW}, v{vT}\n v_lshlrev_b32 v{vL16}, 4, v{vLANE}")
    g.c("id = 8j+x : head = 4x + (j>>3), batch = (j>>2)&1, split = j&3")
    e(f"s_and_b32 s52, s2, 7\n s_lshl_b32 s52, s52, 2\n s_lshr_b32 s53, s2, 6\n s_add_u32 {SH}, s52, s53")
    e(f"s_bfe_u32 {SB}, s2, 0x10005\n s_bfe_u32 {SS}, s2, 0x20003")
    e(f"s_lshl_b32 s52, {SB}, 5\n s_add_u32 s52, s52, {SH}\n s_lshl_b32 s54, s52, 2\n s_add_u32 s54, s54, {SS}")
    e(f"s_lshl_b32 s53, s54, 19\n s_lshl_b32 s55, {SW}, 16\n s_add_u32 s53, s53, s55")
    e(f"s_mul_i32 s55, {SW}, {P.ROT*1024}\n s_lshr_b32 s56, s2, 3\n s_mul_i32 s56, s56, {P.ROTJ*1024}\n s_add_u32 s55, s55, s56")
    e(f"s_and_b32 s56, s2, 7\n s_mul_i32 s56, s56, {P.ROTX*1024}\n s_add_u32 s55, s55, s56\n v_add_u32 v{vOFF}, s55, v{vL16}\n v_and_b32 v{vOFF}, 0xffff, v{vOFF}")
    e(f"s_mov_b32 {SFIN}, 0\n s_cmp_eq_u32 s2, {FINAL_IDS[0]}\n s_cselect_b32 {SFIN}, 1, {SFIN}\n s_cmp_eq_u32 s2, {FINAL_IDS[1]}\n s_cselect_b32 {SFIN}, 1, {SFIN}")
    e(f"v_lshrrev_b32 v{vG}, 4, v{vLANE}\n v_and_b32 v{vC}, 15, v{vLANE}")
    g.c("q work: head id>>3, rows 80*(id&7)..+80; wave w takes row quads w, w+8, w+16 (<20)")
    vWQO, vXQ, vXO = vMISC+2, vMISC+3, vMISC+6
    e(f"s_and_b32 s55, s2, 7\n s_mul_i32 s55, s55, 80\n s_lshl_b32 s56, {SW}, 2\n s_add_u32 s55, s55, s56\n v_add_u32 v{vWQO}, s55, v{vG}")
    e(f"v_lshrrev_b32 v{vT}, 3, v{vC}\n v_mul_u32_u24 v{vT}, 640, v{vT}\n v_add_lshl_u32 v{vXQ}, v{vT}, v{vWQO}, 1")
    e(f"v_lshlrev_b32 v{vWQO}, 13, v{vWQO}\n v_lshl_add_u32 v{vWQO}, v{vC}, 4, v{vWQO}\n s_lshr_b32 s56, s2, 3\n s_lshl_b32 s56, s56, 8\n v_add_u32 v{vWQO}, s56, v{vWQO}")
    e(f"v_lshrrev_b32 v{vT}, 5, v{vLANE}\n v_mul_u32_u24 v{vT}, 1280, v{vT}\n v_and_b32 v{vXO}, 31, v{vLANE}\n v_lshl_add_u32 v{vXO}, v{vXO}, 3, v{vT}")
    e(f"s_mov_b32 s50, {640*8192}\n s_mov_b32 s51, 0x20000\n s_mov_b32 s47, 0x20000\n s_mov_b32 s43, 0x20000")
    e(f"s_mov_b32 s57, {32*8192}\n s_mov_b32 s58, {64*8192}\n s_cmp_lt_u32 {SW}, 4\n s_cselect_b32 s58, s58, s50")
    e(f"s_lshl_b32 s55, {SB}, 15\n s_add_u32 s55, s55, {WS_ACC}\n s_mov_b32 s46, {P.R*REP_STRIDE}")
    e("s_waitcnt lgkmcnt(0)")
    stamp(g, 1)
    e("s_add_u32 s10, s10, s53\n s_addc_u32 s11, s11, 0")
    e("s_add_u32 s44, s32, s55\n s_addc_u32 s45, s33, 0")
    lz = g.label("Lnz")
    e(f"s_cmp_eq_u32 {SFIN}, 0\n s_cbranch_scc1 {lz}")
    e(f"v_mov_b32 v{vT+4}, 0\n v_mov_b32 v{vT+5}, 0\n v_mov_b32 v{vT+6}, 0\n v_mov_b32 v{vT+7}, 0\n v_lshlrev_b32 v{vT}, 4, v0")
    for k in range((P.R*REP_STRIDE + 8191)//8192):
        e(f"s_mov_b32 s55, {k*8192}\n buffer_store_dwordx4 {vr(vT+4,4)}, v{vT}, s[44:47], s55 offen sc1")
    e(f"{lz}:")
    for _ in range(P.K0): kv_issue()
    vXD, vWQ, X = vWB, vWB + 12, vWB + 24
    if P.XPRO >= 1:
        for k in range(5): g.vm(f"global_load_dwordx2 {vr(vXD+2*k,2)}, v{vXO}, {sX} offset:{256*k}", ("x", k))
        e("s_mov_b32 s48, s14\n s_mov_b32 s49, s15")
        g.vm(f"buffer_load_dwordx4 {vr(vWQ,4)}, v{vWQO}, s[48:51], 0 offen {P.POL}", ("wq", 0))
        g.vm(f"buffer_load_dwordx4 {vr(vWQ+4,4)}, v{vWQO}, s[48:51], s57 offen {P.POL}", ("wq", 1))
        g.vm(f"buffer_load_dwordx4 {vr(vWQ+8,4)}, v{vWQO}, s[48:51], s58 offen {P.POL}", ("wq", 2))
        e("s_mov_b32 s48, s8\n s_mov_b32 s49, s9\n s_mov_b32 s50, 2560")
        g.vm(f"buffer_load_ushort v{vXQ+1}, v{vXQ}, s[48:51], 0 offen offset:64", ("xq", 1))
        g.vm(f"buffer_load_ushort v{vXQ+2}, v{vXQ}, s[48:51], 0 offen offset:128", ("xq", 2))
        g.vm(f"buffer_load_ushort v{vXQ}, v{vXQ}, s[48:51], 0 offen", ("xq", 0))
    g.c("mixer weights: 12 chunks of 1KB (array = chunk>>2, zero past 3456 B); wave w takes chunk w and, for w<4, chunk 8+w")
    vMW = vTB
    e(f"s_cmp_lt_u32 {SW}, 4\n s_cselect_b32 s48, s20, s22\n s_cselect_b32 s49, s21, s23\n s_mov_b32 s50, 3456")
    e(f"s_and_b32 s55, {SW}, 3\n s_lshl_b32 s55, s55, 10")
    if P.XPRO >= 3: g.vm(f"buffer_load_dwordx4 {vr(vMW,4)}, v{vL16}, s[48:51], s55 offen {P.POL}", ("mw", 0))
    e(f"s_mov_b32 s48, s24\n s_mov_b32 s49, s25\n s_lshl_b32 s55, {SW}, 10\n v_add_u32 v{vTL}, s55, v{vL16}")
    if P.XPRO >= 3: g.vm(f"buffer_load_dwordx4 {vr(vMW+4,4)}, v{vL16}, s[48:51], s55 offen {P.POL}", ("mw", 1))
    e(f"v_mov_b32 v{vB2}, 0")
    if P.XPRO >= 3: g.vm(f"global_load_ushort v{vB2}, v{vB2}, {sB2}", ("b2", 0))
    if P.EB and P.XPRO >= 1: e("s_barrier")
    while st["nk"] < P.KFIRST: kv_issue()
    e(f"s_load_dword {ST}, {sWS}, {WS_E}")
    e("s_add_u32 s12, s12, s53\n s_addc_u32 s13, s13, 0")
    g.c("operand masks: lane (g,i) owns element i&7 of its 8-element slab")
    e(f"v_bfe_u32 v{vT}, v{vC}, 1, 2\n v_and_b32 v{vT+1}, 1, v{vC}\n v_lshlrev_b32 v{vT+1}, 4, v{vT+1}\n v_mov_b32 v{vT+2}, 0xffff\n v_lshlrev_b32 v{vT+1}, v{vT+1}, v{vT+2}")
    for r in range(4): e(f"v_cmp_eq_u32 vcc, {r}, v{vT}\n s_nop 1\n v_cndmask_b32 v{vMK+r}, 0, v{vT+1}, vcc")
    rep = f"s_mov_b32 s55, {SS}" if P.R == 4 else (f"s_and_b32 s55, {SS}, {P.R-1}" if P.R < 4 else f"s_and_b32 s55, {SH}, {P.R//4-1}\n s_lshl_b32 s55, s55, 2\n s_add_u32 s55, s55, {SS}")
    e(rep)
    e(f"s_mul_i32 s55, s55, {REP_STRIDE}\n s_add_u32 s40, s44, s55\n s_addc_u32 s41, s45, 0\n s_mov_b32 s42, {NGRAN*16}")
    e(f"s_mov_b32 s4, 0\n s_mov_b32 s5, -1\n s_mov_b32 s6, 0xff00ff00\n s_mov_b32 s7, 0xff00ff00\n s_mov_b64 {FULL}, -1")
    e(f"s_lshl_b32 s55, {SH}, 7\n" + ("s_mov_b32 s55, 0\n" if P.XWO == 2 else "") + f"s_lshl_b32 s53, {SW}, 4\n s_add_u32 s55, s55, s53\n v_add_u32 v{vWOO}, s55, v{vG}")
    e(f"v_mul_u32_u24 v{vWOO}, 1280, v{vWOO}\n v_lshl_add_u32 v{vWOO}, v{vC}, 4, v{vWOO}")
    e(f"v_mov_b32 v{vT}, 0\n ds_write_b32 v{vT}, v{vT} offset:{L_AGG+256}")
    if P.XPRO >= 2:
        g.wait(("x", 4)); stamp(g, 4, 3)
        if P.XMM == 5: spam(60)
        for _ in range(P.KX1): kv_issue()
        for k in range(10): e(f"v_lshlrev_b32 v{X+2*k}, 16, v{vXD+k}\n v_and_b32 v{X+2*k+1}, 0xffff0000, v{vXD+k}")
        e(f"v_readlane_b32 s55, v{X}, 0\n v_readlane_b32 s56, v{X}, 32\n s_nop 0\n v_mov_b32 v{vT}, s55\n v_mov_b32 v{vT+1}, s56")
        e(f"v_cndmask_b32 v{vT+2}, v{vT}, v{vT+1}, s[4:5]\n v_cndmask_b32 v{vT+3}, v{vT}, v{vT+1}, s[6:7]")
        for k in range(20): e(f"v_sub_f32 v{X+k}, v{X+k}, v{vT+2}")
        S1, S2 = vT+10, vT+11
        e(f"v_add_f32 v{S1}, v{X}, v{X+1}\n v_mul_f32 v{S2}, v{X}, v{X}\n v_fmac_f32 v{S2}, v{X+1}, v{X+1}")
        for k in range(2, 20): e(f"v_add_f32 v{S1}, v{S1}, v{X+k}\n v_fmac_f32 v{S2}, v{X+k}, v{X+k}")
        e("s_nop 1")
        wave_reduce(g, "v_add_f32", [S1, S2], 5)
        e(f"v_readlane_b32 s55, v{S1}, 31\n v_readlane_b32 s56, v{S1}, 63\n v_readlane_b32 s57, v{S2}, 31\n v_readlane_b32 s58, v{S2}, 63")
        M_, V_ = vT+12, vT+13
        e(f"v_mov_b32 v{vT}, s55\n v_mov_b32 v{vT+1}, s56\n v_mov_b32 v{vT+4}, s57\n v_mov_b32 v{vT+5}, s58")
        e(f"v_cndmask_b32 v{M_}, v{vT}, v{vT+1}, s[6:7]\n v_cndmask_b32 v{V_}, v{vT+4}, v{vT+5}, s[6:7]")
        e(f"v_mul_f32 v{M_}, {f2u(1.0/640):#x}, v{M_}\n v_mul_f32 v{V_}, {f2u(1.0/640):#x}, v{V_}")
        e(f"v_fma_f32 v{V_}, -v{M_}, v{M_}, v{V_}\n v_add_f32 v{M_}, v{vT+3}, v{M_}\n v_max_f32 v{V_}, 0, v{V_}")
        ln_finish(M_, V_)
        g.wait(("xq", 0)); stamp(g, 5, 3)
        for _ in range(P.KX2): kv_issue()
        for k in range(3):
            r = vXQ + k
            e(f"v_lshlrev_b32 v{r}, 16, v{r}\n v_sub_f32 v{r}, v{r}, v{M_}"); bf16r(g, r, r)
            e(f"v_mul_f32 v{r}, v{r}, v{V_}\n v_cvt_pk_bf16_f32 v{r}, v{r}, v{r}")
            a_ = vA + 4*(k & 1)
            for j in range(4): e(f"v_and_b32 v{a_+j}, v{r}, v{vMK+j}")
            e(f"s_nop 1\n v_mfma_f32_16x16x32_bf16 {vr(vACC,4)}, {vr(a_,4)}, {vr(vWQ+4*k,4)}, {vr(vACC,4) if k else '0'}")
        stamp(g, 2)
        g.wait(("b2", 0))
        lm = g.label("Lmw")
        e(f"v_lshlrev_b32 v{vB2}, 16, v{vB2}\n ds_write_b128 v{vTL}, {vr(vMW,4)} offset:{L_MW}\n s_cmp_ge_u32 {SW}, 4\n s_cbranch_scc1 {lm}")
        e(f"ds_write_b128 v{vTL}, {vr(vMW+4,4)} offset:{L_MW + 8192}\n {lm}:")
        e(f"s_lshl_b32 s55, {SW}, 10\n v_add_u32 v{vT}, s55, v{vL16}\n v_lshlrev_b32 v{vT+1}, 3, v0\n s_nop 4")
        e(f"ds_write_b128 v{vT}, {vr(vACC,4)} offset:{L_Q1}\n s_waitcnt lgkmcnt(0)\n s_barrier")
    else: e('s_waitcnt lgkmcnt(0)')
    stamp(g, 6, 3)
    e(f"s_mul_i32 {ST}, {ST}, 1664525\n s_add_u32 {ST}, {ST}, 1013904223")
    lq = g.label("Lq")
    e(f"s_cmp_ge_u32 {SW}, {2 if P.XQ else 0}\n s_cbranch_scc1 {lq}")
    for w in range(8): e(f"ds_read_b64 {vr(vWB+2*w,2)}, v{vT+1} offset:{L_Q1 + w*1024}")
    e(f"s_lshr_b32 s55, s2, 3\n s_lshl_b32 s55, s55, 1\n s_add_u32 s55, s55, {SW}\n s_lshl_b32 s55, s55, 3\n s_and_b32 s56, s2, 7\n s_add_u32 s55, s55, s56")
    e(f"s_lshl_b32 s55, s55, 10\n s_add_u32 s55, s55, {WS_QG}\n v_add_u32 v{vT+2}, s55, v{vL16}\n v_mov_b32 v{vT+5}, {ST}\n v_mov_b32 v{vT+7}, {ST}")
    e("s_waitcnt lgkmcnt(0)")
    for k in range(2):
        e(f"v_add_f32 v{vWB+k}, v{vWB+k}, v{vWB+2+k}\n v_add_f32 v{vWB+4+k}, v{vWB+4+k}, v{vWB+6+k}\n v_add_f32 v{vWB+8+k}, v{vWB+8+k}, v{vWB+10+k}\n v_add_f32 v{vWB+12+k}, v{vWB+12+k}, v{vWB+14+k}")
    for k in range(2): e(f"v_add_f32 v{vWB+k}, v{vWB+k}, v{vWB+4+k}\n v_add_f32 v{vWB+8+k}, v{vWB+8+k}, v{vWB+12+k}")
    e(f"v_add_f32 v{vT+4}, v{vWB}, v{vWB+8}\n v_add_f32 v{vT+6}, v{vWB+1}, v{vWB+9}")
    e(f"global_store_dwordx4 v{vT+2}, {vr(vT+4,4)}, {sWS} sc1\n {lq}:")
    g.c("zero-fill-done flag: the fill is older than the wq loads every wave waited for before the barrier")
    lz = g.label("Lnf")
    e(f"s_cmp_eq_u32 {SFIN}, 0\n s_cbranch_scc1 {lz}\n s_cmp_lg_u32 {SW}, 2\n s_cbranch_scc1 {lz}")
    e(f"v_mov_b32 v{vT+4}, {ST}\n v_mov_b32 v{vT+5}, {ST}\n v_mov_b32 v{vT+6}, {ST}\n v_mov_b32 v{vT+7}, {ST}")
    e(f"s_lshl_b32 s55, {SB}, 8\n s_add_u32 s55, s55, {WS_ZF}\n v_mov_b32 v{vT+8}, s55\n s_mov_b64 exec, 1")
    e(f"global_store_dwordx4 v{vT+8}, {vr(vT+4,4)}, {sWS} sc1\n s_mov_b64 exec, -1\n {lz}:")
    if P.XMM and P.XMM < 5:
        e(f"s_cmp_ge_u32 {SW}, 4\n s_cbranch_scc1 Lxm2\n s_mov_b32 s3, 60")
        if P.XMM == 1: e("s_mov_b64 exec, 0")
        e("Lxm1:")
        for t in range(4):
            if P.XMM == 3: e("s_nop 15")
            elif P.XMM == 4: e(f"v_add_f32 v{vTB+t}, v{vA}, v{vWB}\n v_add_f32 v{vTB+t+4}, v{vA}, v{vWB}\n v_add_f32 v{vTB+t+8}, v{vA}, v{vWB}\n v_add_f32 v{vTB+t+12}, v{vA}, v{vWB}")
            else: e(f"v_mfma_f32_16x16x32_bf16 {vr(vTB+4*t,4)}, {vr(vA,4)}, {vr(vWB,4)}, 0")
        e("s_sub_u32 s3, s3, 1\n s_cbranch_scc0 Lxm1\n s_mov_b64 exec, -1\n s_nop 7\n Lxm2:")
    if P.DRY:
        ld = g.label("Lnd")
        e(f"s_cmp_lg_u32 {SW}, {P.DRYW}\n s_cbranch_scc1 Ldryret\n s_cmp_eq_u32 {SFIN}, 0\n s_cbranch_scc1 Ldryret")
        e(f"s_mov_b64 {FULL}, 0\n s_mov_b64 exec, 0\n s_branch Lfinal")
        e(f"Ldryret:\n s_mov_b64 {FULL}, -1\n s_mov_b64 exec, -1")
    e(f"s_lshl_b32 s55, {SH}, 1\n s_add_u32 s55, s55, {SB}\n s_lshl_b32 s55, s55, 3\n s_add_u32 s55, s55, {SW}\n s_lshl_b32 s55, s55, 10\n s_add_u32 s55, s55, {WS_QG}")
    e(f"v_add_u32 v{vMISC+2}, s55, v{vL16}\n s_lshl_b32 s55, {SW}, 9\n v_lshl_add_u32 v{vMISC+3}, v{vLANE}, 3, s55")
    g.c("table inputs of this wave: entry k*2048 + (wg*8+w), k = 0..2")
    e(f"s_lshl_b32 s55, s2, 3\n s_add_u32 s55, s55, {SW}\n s_add_u32 s56, s55, {EMIN<<7}\n s_lshl_b32 s56, s56, 16")
    e(f"s_add_u32 s57, s55, {2048 + (EMIN<<7)}\n s_add_u32 s58, s55, {2048 - 3072 + (EMIN<<7) + 0x8000}")
    e(f"s_cmp_ge_u32 s55, 1024\n s_cselect_b32 s57, s58, s57\n s_lshl_b32 s57, s57, 16")
    e(f"s_add_u32 s58, s55, {4096 - 3072 + (EMIN<<7) + 0x8000}\n s_lshl_b32 s58, s58, 16")
    e(f"v_mov_b32 v{vTA}, 0\n v_mov_b32 v{vTA+1}, 0\n v_mov_b32 v{vTA+2}, 0\n v_lshlrev_b32 v{vTL}, 2, v{vLANE}")
    nslots = P.QPOLL_USE - st["nk"]
    tabq = [1]*min(14, nslots) if P.TABPRO else []
    st["tab"] = 14 - len(tabq)
    qload = f"global_load_dwordx4 {vr(vML,4)}, v{vMISC+2}, {sWS} sc1"
    while st["nk"] < P.NPRO:
        if st["nk"] < P.QPOLL_USE + 1: g.cap(P.WPRO)
        kv_issue()
        if P.TABPRO and P.XTAB and tabq:
            e(f"s_mov_b32 s3, {tabq.pop(0)}\n s_call_b64 s[30:31], Ltab")
        if st["nk"] == P.QPOLL_AT and P.XQ: g.vm(qload, ("qg", 0))
        if st["nk"] == P.QPOLL_USE and P.XQ:
            g.wait(("qg", 0)); stamp(g, 8, 3)
            tag_poll([vML+1, vML+3], qload, 1)
            e(f"v_mov_b32 v{vML+1}, v{vML+2}\n ds_write_b64 v{vMISC+3}, {vr(vML,2)} offset:{L_QP}")
    stamp(g, 10, 3)
    e(f"v_lshlrev_b32 v{vT}, 4, v{vC}\n s_waitcnt lgkmcnt(0)" + ("\n s_barrier" if P.XPRO >= 2 else ""))
    QS = vWB
    for half in range(2):
        for w in range(4):
            o = L_QP + (4*half + w)*512
            e(f"ds_read_b128 {vr(QS+8*w,4)}, v{vT} offset:{o}\n ds_read_b128 {vr(QS+8*w+4,4)}, v{vT} offset:{o + 256}")
        for w in range(4):
            e(f"s_waitcnt lgkmcnt({6-2*w})")
            for k in range(8):
                e(f"v_mov_b32 v{vB+k}, v{QS+k}" if half == 0 and w == 0 else f"v_add_f32 v{vB+k}, v{vB+k}, v{QS+8*w+k}")
    for k in range(4): e(f"v_cvt_pk_bf16_f32 v{vQ+k}, v{vB+2*k}, v{vB+2*k+1}")
    e("s_mov_b32 s4, 0xcccccccc\n s_mov_b32 s5, 0xcccccccc\n s_mov_b32 s6, 0xaaaaaaaa\n s_mov_b32 s7, 0xaaaaaaaa")
    stamp(g, 3)
    tab_iters = [4, 4, 3, 3]
    def stepA(i, t):
        e(f"v_add_f32_dpp v{vB + (i & 7)}, v{t}, v{t} row_mirror row_mask:0xf bank_mask:{'0x3' if i < 8 else '0xc'}")
    for G_ in range(4):
        pend = None
        for i in range(16):
            n = 16*G_ + i
            g.wait(("kv", n))
            r = ring(n); t = vDT + (i & 1)
            if P.XCOMP:
                e(f"v_dot2_f32_bf16 v{t}, v{r}, v{vQ}, 0")
                for k in range(1, 4): e(f"v_dot2_f32_bf16 v{t}, v{r+k}, v{vQ+k}, v{t}")
                if pend is not None: stepA(*pend)
            pend = (i, t)
            after_consume(n)
            if P.XMM == 5: spam(24)
            if P.XTAB and st["tab"] and n >= P.TABK0 and (n - P.TABK0) % P.TABKE == 0:
                st["tab"] -= 1; e("s_mov_b32 s3, 1\n s_call_b64 s[30:31], Ltab")
        if G_ == 3: pre_issue(n)
        e("s_nop 2"); stepA(*pend); e("s_nop 1")
        for u in range(4):
            e(f"v_add_f32_dpp v{vT+u}, v{vB+u}, v{vB+u} row_half_mirror row_mask:0xf bank_mask:0x5")
            e(f"v_add_f32_dpp v{vT+u}, v{vB+u+4}, v{vB+u+4} row_half_mirror row_mask:0xf bank_mask:0xa")
        e("s_nop 0")
        for u in range(4): e(f"v_add_f32_dpp v{vT+4+u}, v{vT+u}, v{vT+u} quad_perm:[2,3,0,1] {DPP}")
        e(f"v_cndmask_b32 v{vT}, v{vT+4}, v{vT+6}, s[4:5]\n v_cndmask_b32 v{vT+1}, v{vT+5}, v{vT+7}, s[4:5]\n s_nop 1")
        e(f"v_add_f32_dpp v{vT+2}, v{vT}, v{vT} quad_perm:[1,0,3,2] {DPP}\n v_add_f32_dpp v{vT+3}, v{vT+1}, v{vT+1} quad_perm:[1,0,3,2] {DPP}")
        e(f"v_cndmask_b32 v{vT}, v{vT+2}, v{vT+3}, s[6:7]")
        bf16r(g, vT, vT)
        e(f"v_mul_f32 v{vT}, {f2u(128**-0.5):#x}, v{vT}")
        bf16r(g, vS+G_, vT)
        stamp(g, 4+G_, 1 if G_ < 3 else 0)
    assert st["tab"] == 0 or not P.XTAB
    e(f"v_max_f32 v{vT}, v{vS}, v{vS+1}\n v_max3_f32 v{vT}, v{vS+2}, v{vS+3}, v{vT}\n s_nop 1")
    wave_reduce(g, "v_max_f32", [vT])
    e(f"v_readlane_b32 s52, v{vT}, 63\n s_nop 1")
    for k in range(4): e(f"v_subrev_f32 v{vS+k}, s52, v{vS+k}")
    for k in range(4): e(f"v_mul_f32 v{vS+k}, {f2u(LOG2E):#x}, v{vS+k}")
    for k in range(4): e(f"v_exp_f32 v{vS+k}, v{vS+k}")
    e(f"s_nop 0\n v_add_f32 v{vT}, v{vS}, v{vS+1}\n v_add_f32 v{vT+1}, v{vS+2}, v{vS+3}\n v_add_f32 v{vT}, v{vT}, v{vT+1}")
    for k in range(4): e(f"v_cvt_pk_bf16_f32 v{vS+k}, v{vS+k}, v{vS+k}")
    wave_reduce(g, "v_add_f32", [vT, vTA, vTA+1, vTA+2])
    e(f"v_mov_b32 v{vT+4}, s52\n v_mov_b32 v{vT+5}, {ST}\n v_mov_b32 v{vT+6}, v{vT}\n v_mov_b32 v{vT+7}, {ST}")
    tab_finish(g, vTA, vT+10, vB2)
    e(f"v_mov_b32 v{vT+11}, {ST}\n v_mov_b32 v{vT+13}, {ST}")
    if not P.XML: pass
    elif P.AGG:
        la = g.label("Lag")
        e(f"s_lshl_b32 s55, {SW}, 4\n v_mov_b32 v{vT+8}, s55\n v_mov_b32 v{vT+9}, 1\n v_mov_b32 v{vT+1}, 0")
        e("s_mov_b32 exec_lo, 0\n s_mov_b32 exec_hi, 0x80000000")
        e(f"ds_write_b128 v{vT+8}, {vr(vT+4,4)} offset:{L_AGG}\n ds_write_b128 v{vT+8}, {vr(vT+10,4)} offset:{L_AGG+128}\n s_waitcnt lgkmcnt(0)")
        e(f"ds_add_rtn_u32 v{vT+9}, v{vT+1}, v{vT+9} offset:{L_AGG+256}\n s_mov_b64 exec, -1\n s_waitcnt lgkmcnt(0)")
        e(f"v_readlane_b32 s55, v{vT+9}, 63\n s_nop 3\n s_cmp_lg_u32 s55, 7\n s_cbranch_scc1 {la}")
        e(f"ds_read_b128 {vr(vT+4,4)}, v{vL16} offset:{L_AGG}")
        e(f"s_lshl_b32 s55, s54, 7\n s_add_u32 s55, s55, {WS_ML}\n s_lshl_b32 s53, s2, 7\n s_add_u32 s53, s53, {WS_TAB - 128}")
        e(f"v_mov_b32 v{vT+8}, s55\n v_mov_b32 v{vT+9}, s53\n v_cmp_lt_u32 vcc, 7, v{vLANE}\n s_nop 1\n v_cndmask_b32 v{vT+8}, v{vT+8}, v{vT+9}, vcc\n v_add_u32 v{vT+8}, v{vT+8}, v{vL16}")
        e(f"s_mov_b64 exec, 0xffff\n s_waitcnt lgkmcnt(0)\n global_store_dwordx4 v{vT+8}, {vr(vT+4,4)}, {sWS} sc1\n s_mov_b64 exec, -1\n {la}:")
    else:
        e(f"s_lshl_b32 s55, s54, 3\n s_add_u32 s55, s55, {SW}\n s_lshl_b32 s55, s55, 4\n s_add_u32 s55, s55, {WS_ML}\n v_mov_b32 v{vT+8}, s55")
        e(f"s_lshl_b32 s55, s2, 3\n s_add_u32 s55, s55, {SW}\n s_lshl_b32 s55, s55, 4\n s_add_u32 s55, s55, {WS_TAB}\n v_mov_b32 v{vT+9}, s55")
        e("s_mov_b32 exec_lo, 0\n s_mov_b32 exec_hi, 0x80000000")
        g.vm(f"global_store_dwordx4 v{vT+8}, {vr(vT+4,4)}, {sWS} sc1", ("st", 0))
        g.vm(f"global_store_dwordx4 v{vT+9}, {vr(vT+10,4)}, {sWS} sc1", ("st", 1))
        e("s_mov_b64 exec, -1")
    vMLO, vTBO, vXA = vMISC+3, vMISC+4, vMISC+5
    e(f"s_lshr_b32 s55, s54, 2\n s_lshl_b32 s55, s55, 9\n s_add_u32 s55, s55, {WS_ML}\n v_add_u32 v{vMLO}, s55, v{vL16}")
    e(f"s_lshl_b32 s55, {SB}, 8\n s_add_u32 s55, s55, {WS_ZF}\n v_mov_b32 v{vB}, s55\n v_cmp_lt_u32 vcc, 31, v{vLANE}\n s_nop 1\n v_cndmask_b32 v{vMLO}, v{vMLO}, v{vB}, vcc")
    e(f"s_add_u32 s48, s32, {WS_TAB}\n s_addc_u32 s49, s33, 0\n s_lshl_b32 s50, {SFIN}, 15\n v_lshlrev_b32 v{vTBO}, 4, v0")
    g.c("final stage x values (final workgroups only): columns 3j..3j+2, j = min(tid,213), and column 0")
    e(f"v_min_u32 v{vXA}, 213, v0\n v_mul_u32_u24 v{vXA}, 6, v{vXA}\n s_mul_i32 s55, {SB}, 1280\n v_add_u32 v{vXA}, s55, v{vXA}\n v_mov_b32 v{vXF+3}, s55")
    e(f"s_mov_b32 s44, s8\n s_mov_b32 s45, s9\n s_mul_i32 s46, {SFIN}, 2560")
    lx = g.label("Lxf")
    e(f"s_cmp_eq_u32 {SFIN}, 0\n s_cbranch_scc1 {lx}")
    for k in range(3): e(f"buffer_load_ushort v{vXF+k}, v{vXA}, s[44:47], 0 offen offset:{2*k}")
    e(f"buffer_load_ushort v{vXF+3}, v{vXF+3}, s[44:47], 0 offen\n {lx}:")
    vOPW, vOPR, vOUW = vML+1, vML+2, vML+3
    for i in range(64):
        n = 64 + i
        g.wait(("kv", n))
        if P.XCOMP: rowmac(vACC, vS + i//16, i % 16, ring(n), first=(i == 0))
        if i % 16 == 15: stamp(g, 8 + i//16, 1 if i < 48 else 0)
        after_consume(n)
        tload = "\n".join(f"s_mov_b32 s55, {k*8192}\n buffer_load_dwordx4 {vr(vTB+4*k,4)}, v{vTBO}, s[48:51], s55 offen sc1" for k in range(4))
        if i == P.TAB_AT and P.XML:
            for k in range(4):
                e(f"s_mov_b32 s55, {k*8192}")
                g.vm(f"buffer_load_dwordx4 {vr(vTB+4*k,4)}, v{vTBO}, s[48:51], s55 offen sc1", ("tb", k))
        if i == P.TAB_USE and P.XML:
            g.wait(("tb", 3))
            ls = g.label("Lts")
            e(f"s_cmp_eq_u32 {SFIN}, 0\n s_cbranch_scc1 {ls}")
            tag_poll([vTB+1+2*k for k in range(8)], tload, 2)
            e(f"v_lshlrev_b32 v{vT}, 3, v0")
            for k in range(4):
                e(f"v_mov_b32 v{vTB+4*k+1}, v{vTB+4*k+2}\n ds_write_b64 v{vT}, {vr(vTB+4*k,2)} offset:{L_TAB + k*4096}")
            for k in range(4): e(f"v_lshlrev_b32 v{vXF+k}, 16, v{vXF+k}")
            e(f"{ls}:")
        mload = f"global_load_dwordx4 {vr(vML,4)}, v{vMLO}, {sWS} sc1"
        if i == P.POLL_AT and P.XML: g.vm(mload, ("ml", 0))
        if i == P.POLL_USE:
            pre_issue(n)
            g.wait(("ml", 0))
            if P.XML: tag_poll([vML+1, vML+3], mload, 2)
            e(f"s_mov_b32 exec_lo, 0\n v_mov_b32 v{vML}, s52\n v_mov_b32 v{vML+2}, 0\n s_mov_b32 exec_lo, -1")
            e(f"v_mov_b32 v{vT}, v{vML}\n s_nop 1")
            wave_reduce(g, "v_max_f32", [vT])
            e(f"v_readlane_b32 s53, v{vT}, 63\n s_nop 1")
            e(f"v_subrev_f32 v{vML}, s53, v{vML}\n v_mov_b32 v{vT+1}, s52\n v_subrev_f32 v{vT+1}, s53, v{vT+1}")
            e(f"v_mul_f32 v{vML}, {f2u(LOG2E):#x}, v{vML}\n v_mul_f32 v{vT+1}, {f2u(LOG2E):#x}, v{vT+1}")
            e(f"v_exp_f32 v{vML}, v{vML}\n v_exp_f32 v{vT+1}, v{vT+1}\n s_nop 0\n v_mul_f32 v{vT}, v{vML}, v{vML+2}\n s_nop 1")
            wave_reduce(g, "v_add_f32", [vT])
            e(f"v_readlane_b32 s53, v{vT}, 63\n s_nop 1\n v_rcp_f32 v{vT}, s53\n s_nop 0\n v_mul_f32 v{vML}, v{vT+1}, v{vT}")
            g.c("addresses for the tail")
            e(f"s_lshl_b32 s55, {SW}, 9\n v_add_u32 v{vOPW}, s55, v{vL16}")
            e(f"v_and_b32 v{vT}, 1, v{vC}\n v_lshlrev_b32 v{vT}, 8, v{vT}\n v_bfe_u32 v{vT+1}, v{vC}, 1, 1\n v_lshl_add_u32 v{vT}, v{vT+1}, 4, v{vT}")
            e(f"v_lshl_add_u32 v{vT}, v{vG}, 2, v{vT}\n v_lshrrev_b32 v{vT+1}, 2, v{vC}\n v_lshl_add_u32 v{vT}, v{vT+1}, 10, v{vT}")
            e(f"s_lshl_b32 s55, {SW}, 5\n v_add_u32 v{vOPR}, s55, v{vT}")
            e(f"s_mul_i32 s55, {SW}, 2560\n v_lshlrev_b32 v{vT}, 5, v{vC}\n v_lshl_add_u32 v{vT}, v{vG}, 4, v{vT}\n v_add_u32 v{vOUW}, s55, v{vT}")
            for k in range(2):
                e(f"v_add_u32 v{vT}, {512*k}, v0\n v_lshlrev_b32 v{vB+2+k}, 2, v{vT}\n v_lshrrev_b32 v{vT+1}, 2, v{vT}\n v_and_b32 v{vT}, 3, v{vT}")
                e(f"v_mad_u32_u24 v{vT+1}, v{vT+1}, 3, v{vT}\n v_min_u32 v{vB+k}, 639, v{vT+1}\n v_lshlrev_b32 v{vB+k}, 2, v{vB+k}")
            e(f"s_movk_i32 s55, 639\n v_cmp_lt_u32 s[6:7], s55, v{vT+1}\n s_mov_b32 s4, 0x88888888\n s_mov_b32 s5, 0x88888888")
            g.c("final stage constants")
            vPA, vO0, vO1, vFW, vZ = vMISC+2, vMISC+3, vMISC+4, vMISC+5, vMISC+6
            e(f"v_min_u32 v{vPA}, 213, v0\n v_lshlrev_b32 v{vPA}, 4, v{vPA}\n v_mul_u32_u24 v{vT}, 3, v0")
            e(f"s_movk_i32 s55, 640\n v_cmp_gt_u32 s[56:57], s55, v{vT}\n s_movk_i32 s55, 639\n v_cmp_gt_u32 s[58:59], s55, v{vT}")
            e(f"s_mul_i32 s55, {SB}, 1280\n v_lshl_add_u32 v{vT}, v{vT}, 1, s55\n v_mov_b32 v{vT+1}, 0x7ffffff0")
            e(f"v_cndmask_b32 v{vO0}, v{vT+1}, v{vT}, s[56:57]\n v_cndmask_b32 v{vO1}, v{vT+1}, v{vT}, s[58:59]")
            e(f"s_lshl_b32 s55, {SW}, 3\n v_mov_b32 v{vFW}, s55\n v_mov_b32 v{vZ}, 0")
            e(f"s_lshl_b32 s55, {SB}, 15\n s_add_u32 s55, s55, {WS_ACC}\n s_add_u32 s44, s32, s55\n s_addc_u32 s45, s33, 0\n s_mov_b32 s46, {P.R*REP_STRIDE}")
            e("s_mov_b32 s48, s28\n s_mov_b32 s49, s29\n s_mov_b32 s50, 2560")
    assert st["nwo"] == 20 and st["nk"] == 128, st
    def guarded(text):
        if not P.DRY: e(text); return
        l = g.label("Lg"); e(f"s_cbranch_execz {l}"); e(text); e(f"{l}:")
    oacc = lambda t: vTB+4*t if t < 4 else vB+4
    if P.DIAG == 5: e('s_memtime s[72:73]')
    if not P.XTAIL: e("s_branch Ldone")
    e("s_nop 7")
    e("Ltail:")
    for r in range(4): e(f"v_mul_f32 v{vACC+r}, v{vACC+r}, v{vML}")
    e(f"s_mov_b32 exec_hi, 0\n ds_write_b128 v{vOPW}, {vr(vACC,4)} offset:{L_QP}\n s_mov_b64 exec, -1")
    wow = ""
    if ("wo", 19) in g.fifo:
        wow = f"s_waitcnt vmcnt({len(g.fifo) - 1 - g.fifo.index(('wo', 19))})\n"
    e(wow + "s_waitcnt lgkmcnt(0)\n s_barrier")
    stamp(g, 4, 4)
    e(f"ds_read2_b32 {vr(vT,2)}, v{vOPR} offset0:0 offset1:128")
    e(f"s_waitcnt lgkmcnt(0)\n v_add_f32 v{vT}, v{vT}, v{vT+1}\n s_nop 1")
    e(f"v_add_f32_dpp v{vT}, v{vT}, v{vT} row_ror:4 {DPP}\n s_nop 1\n v_add_f32_dpp v{vT}, v{vT}, v{vT} row_ror:8 {DPP}")
    e(f"v_cvt_pk_bf16_f32 v{vT}, v{vT}, v{vT}\n s_nop 1")
    for ii in range(4):
        for t in range(5): rowmac(oacc(t), vT, ii, vWB+4*(5*ii+t), build=(t == 0), first=(ii == 0))
    stamp(g, 5, 4)
    e("s_nop 3\n s_mov_b32 exec_hi, 0")
    for t in range(5): e(f"ds_write_b128 v{vOUW}, {vr(oacc(t),4)} offset:{L_OUTP + t*512}")
    e("s_mov_b64 exec, -1\n s_waitcnt lgkmcnt(0)\n s_barrier")
    stamp(g, 6, 4)
    if P.DIAG == 4: e("s_waitcnt lgkmcnt(0)")
    base64 = L_OUTP // 256
    GA = vT
    for k in range(2):
        for p in range(4): e(f"ds_read2st64_b32 {vr(GA+8*k+2*p,2)}, v{vB+k} offset0:{base64+20*p} offset1:{base64+20*p+10}")
    for k in range(2):
        r = GA+8*k
        e(f"s_waitcnt lgkmcnt({4-4*k})")
        e(f"v_add_f32 v{r}, v{r}, v{r+1}\n v_add_f32 v{r+2}, v{r+2}, v{r+3}\n v_add_f32 v{r+4}, v{r+4}, v{r+5}\n v_add_f32 v{r+6}, v{r+6}, v{r+7}")
        e(f"v_add_f32 v{r}, v{r}, v{r+2}\n v_add_f32 v{r+4}, v{r+4}, v{r+6}\n v_add_f32 v{r}, v{r}, v{r+4}")
        if k == 1: e(f"v_cndmask_b32 v{r}, v{r}, 0, s[6:7]")
        e(f"v_cndmask_b32 v{r}, v{r}, 1.0, s[4:5]")
        e(f"buffer_atomic_add_f32 v{r}, v{vB+2+k}, s[40:43], 0 offen")
    stamp(g, 12)
    e(f"s_cmp_eq_u32 {SFIN}, 0\n s_cbranch_scc1 Ldone\n s_cmp_ge_u32 {SW}, 4\n s_cbranch_scc1 Lepoch")
    vPA, vO0, vO1, vFW, vZ = vMISC+2, vMISC+3, vMISC+4, vMISC+5, vMISC+6
    PL = vWB
    H, N, Y = vT, vT+4, vT+8
    if P.DIAG == 4: e("s_mov_b32 s94, 0\nLagain:")
    e(f"Lfinal:\n s_mov_b32 s3, {SPIN:#x}\n Lpoll:")
    guarded("\n".join(f"s_movk_i32 s55, {r*REP_STRIDE}\n buffer_load_dwordx4 {vr(PL+8*r,4)}, v{vPA}, s[44:47], s55 offen sc1\n buffer_load_dwordx4 {vr(PL+8*r+4,4)}, v{vZ}, s[44:47], s55 offen sc1" for r in range(P.R)) + "\n s_waitcnt vmcnt(0)")
    cs = [PL+4*k+3 for k in range(2*P.R)]
    e(f"v_min_f32 v{Y}, v{cs[0]}, v{cs[1]}")
    for k in range(2, len(cs), 2): e(f"v_min3_f32 v{Y}, v{cs[k]}, v{cs[k+1]}, v{Y}")
    def tree(dst, regs):
        regs = list(regs)
        while len(regs) > 2:
            for a in range(0, len(regs) - 1, 2): e(f"v_add_f32 v{regs[a]}, v{regs[a]}, v{regs[a+1]}")
            regs = regs[0::2]
        e(f"v_add_f32 v{dst}, v{regs[0]}, v{regs[1]}" if len(regs) == 2 else f"v_mov_b32 v{dst}, v{regs[0]}")
    e(f"v_cmp_gt_f32 vcc, {f2u(128.0/P.R):#x}, v{Y}\n s_cbranch_vccz Lpdone")
    if P.PSLEEP: e(f"v_cmp_gt_f32 vcc, {f2u(128.0/P.R - P.PMISS):#x}, v{Y}\n s_cbranch_vccz Lpns\n s_sleep {P.PSLEEP}\n Lpns:")
    e("s_sub_u32 s3, s3, 1\n s_cbranch_scc0 Lpoll\n Lpdone:")
    if P.DIAG == 4: e("s_mov_b64 s[78:79], s[88:89]\n s_mov_b64 s[80:81], s[82:83]")
    stamp(g, 13)
    for k in range(3): tree(H+k, [PL+8*r+k for r in range(P.R)])
    tree(H+3, [PL+8*r+4 for r in range(P.R)])
    bf16r_n(g, [H, H+1, H+2])
    for k in range(4): e(f"v_add_f32 v{H+k}, v{H+k}, v{vXF+k}")
    bf16r_n(g, [H, H+1, H+2])
    def ln_block(src, dst, piv, slot):
        s1, s2 = vT+12, vT+13; Z = vWB+64
        for k in range(3): e(f"v_sub_f32 v{Y+k}, v{src+k}, v{piv}")
        e(f"v_cndmask_b32 v{Y}, 0, v{Y}, s[56:57]\n v_cndmask_b32 v{Y+1}, 0, v{Y+1}, s[58:59]\n v_cndmask_b32 v{Y+2}, 0, v{Y+2}, s[58:59]")
        e(f"v_add_f32 v{s1}, v{Y}, v{Y+1}\n v_mul_f32 v{s2}, v{Y}, v{Y}\n v_fmac_f32 v{s2}, v{Y+1}, v{Y+1}\n v_add_f32 v{s1}, v{s1}, v{Y+2}\n v_fmac_f32 v{s2}, v{Y+2}, v{Y+2}\n s_nop 0")
        wave_reduce(g, "v_add_f32", [s1, s2])
        g.L.pop()
        e(f"s_mov_b32 exec_lo, 0\n s_and_b32 exec_hi, {FULLHI}, 0x80000000\n ds_write_b64 v{vFW}, {vr(s1,2)} offset:{L_FIN + slot*32}\n s_mov_b64 exec, {FULL}")
        guarded("s_waitcnt lgkmcnt(0)\n s_barrier")
        e(f"ds_read_b128 {vr(Z,4)}, v{vZ} offset:{L_FIN + slot*32}\n ds_read_b128 {vr(Z+4,4)}, v{vZ} offset:{L_FIN + slot*32 + 16}\n s_waitcnt lgkmcnt(0)")
        e(f"v_pk_add_f32 {vr(Z,2)}, {vr(Z,2)}, {vr(Z+2,2)}\n v_pk_add_f32 {vr(Z+4,2)}, {vr(Z+4,2)}, {vr(Z+6,2)}\n v_pk_add_f32 {vr(Z,2)}, {vr(Z,2)}, {vr(Z+4,2)}")
        e(f"v_mul_f32 v{Y}, {f2u(1.0/640):#x}, v{Z}\n v_mul_f32 v{Y+1}, {f2u(1.0/640):#x}, v{Z+1}")
        e(f"v_fma_f32 v{Y+1}, -v{Y}, v{Y}, v{Y+1}\n v_add_f32 v{Y}, v{Y}, v{piv}\n v_max_f32 v{Y+1}, 0, v{Y+1}\n v_mov_b32 v{Y+2}, v{Y}")
        bf16r_n(g, [Y+1, Y])
        e(f"v_add_f32 v{Y+1}, {f2u(1e-5):#x}, v{Y+1}")
        for k in range(3): e(f"v_sub_f32 v{dst+k}, v{src+k}, v{Y}")
        bf16r(g, Y+1, Y+1)
        e(f"v_sqrt_f32 v{Y+1}, v{Y+1}")
        bf16r_n(g, [dst, dst+1, dst+2])
        bf16r(g, Y+1, Y+1)
        e(f"v_rcp_f32 v{Y+1}, v{Y+1}\n v_sub_f32 v{Y+2}, v{Y+2}, v{Y}")
        for k in range(3): e(f"v_mul_f32 v{dst+k}, v{dst+k}, v{Y+1}")
        e(f"v_mul_f32 v{dst+3}, v{Y+2}, v{Y+1}")
        bf16r_n(g, [dst, dst+1, dst+2])
    ln_block(H, N, H+3, 0)
    N2 = vWB+72
    ln_block(N, N2, N+3, 1)
    I = vT+8
    for k in range(3): e(f"v_bfe_u32 v{I+k}, v{N2+k}, 16, 15")
    for k in range(3): e(f"v_subrev_u32 v{I+k}, {EMIN<<7}, v{I+k}\n v_ashrrev_i32 v{N+k}, 31, v{N2+k}")
    e(f"v_max3_u32 v{vT+12}, v{I}, v{I+1}, v{I+2}\n s_movk_i32 s55, 3071")
    for k in range(3): e(f"v_min_u32 v{I+k}, s55, v{I+k}\n v_and_b32 v{N+k}, 3072, v{N+k}")
    e(f"v_cmp_lt_u32 vcc, s55, v{vT+12}" if P.XLIM == 3071 else f"v_cmp_lt_u32 vcc, {P.XLIM}, v{vT+12}")
    for k in range(3): e(f"v_add_u32 v{I+k}, v{I+k}, v{N+k}")
    for k in range(3): e(f"v_and_b32 v{N+k}, 2047, v{I+k}\n v_lshrrev_b32 v{I+k}, 10, v{I+k}")
    for k in range(3): e(f"v_and_b32 v{I+k}, 6, v{I+k}")
    for k in range(3): e(f"v_lshl_add_u32 v{I+k}, v{N+k}, 3, v{I+k}")
    for k in range(3): e(f"ds_read_u16 v{I+k}, v{I+k} offset:{L_TAB}")
    e("s_and_b64 vcc, vcc, s[56:57]\n s_cbranch_scc1 Lslow" if P.XTAB and P.XWO == 1 and P.XCOMP and P.XML and P.XQ else "")
    e("s_waitcnt lgkmcnt(0)\n Lback:")
    for k in range(3): e(f"v_lshlrev_b32 v{I+k}, 16, v{I+k}")
    for k in range(3): e(f"v_add_f32 v{I+k}, v{I+k}, v{H+k}")
    for k in range(3): e(f"v_cvt_pk_bf16_f32 v{I+k}, v{I+k}, v{I+k}")
    guarded(f"buffer_store_short v{I}, v{vO0}, s[48:51], 0 offen\n buffer_store_short v{I+1}, v{vO1}, s[48:51], 0 offen offset:2\n buffer_store_short v{I+2}, v{vO1}, s[48:51], 0 offen offset:4")
    if P.DIAG == 4:
        stamp(g, 10); e("s_waitcnt lgkmcnt(0)\n s_add_u32 s94, s94, 1\n s_cmp_lt_u32 s94, 2\n s_cbranch_scc1 Lagain")
    if P.DRY: e("s_cbranch_execz Ldryret")
    e("s_branch Ldone\n Lepoch:")
    g.c("past the tail barriers every workgroup's tag has been seen, so every workgroup has read the epoch word: advance it")
    e(f"s_cmp_lg_u32 s2, {FINAL_IDS[0]}\n s_cbranch_scc1 Ldone\n s_cmp_lg_u32 {SW}, 4\n s_cbranch_scc1 Ldone")
    e(f"v_mov_b32 v{vT}, {ST}\n s_mov_b64 exec, 1\n global_store_dword v{vZ}, v{vT}, {sWS} offset:{WS_E} sc1\n s_mov_b64 exec, -1")
    e("Ldone:")
    if P.DIAG:
        stamp(g, 14)
        e(f"s_lshl_b32 s55, s2, 3\n s_add_u32 s55, s55, {SW}\n s_lshl_b32 s55, s55, 6\n s_add_u32 s55, s55, {WS_DIAG}\n s_getreg_b32 s3, hwreg(HW_REG_XCC_ID)\n s_waitcnt lgkmcnt(0)")
        e(f"v_mov_b32 v{vT}, s55\n s_mov_b64 exec, 1")
        for k in range(15): e(f"v_mov_b32 v{vR+k}, s{62+2*k}")
        e(f"v_mov_b32 v{vR+15}, s3")
        for k in range(4): e(f"global_store_dwordx4 v{vT}, {vr(vR+4*k,4)}, {sWS} offset:{16*k}")
    e("Lend:\n s_endpgm")
    SV = vR
    e("Lslow:\n s_waitcnt lgkmcnt(0)\n s_mov_b64 s[52:53], vcc")
    for k in range(16): e(f"v_mov_b32 v{SV+k}, v{vT+k}")
    e("Lslow1:\n s_ff1_i32_b64 s55, s[52:53]\n s_bitset0_b64 s[52:53], s55\n s_mov_b32 m0, s55\n s_nop 1")
    for k in range(3): e(f"v_readlane_b32 s{56+k}, v{N2+k}, m0")
    e(f"v_mov_b32 v{vTA}, 0\n v_mov_b32 v{vTA+1}, 0\n v_mov_b32 v{vTA+2}, 0\n v_lshlrev_b32 v{vTL}, 2, v{vLANE}")
    e("s_mov_b32 s3, 14\n s_call_b64 s[30:31], Ltab")
    wave_reduce(g, "v_add_f32", [vTA, vTA+1, vTA+2])
    tab_finish(g, vTA, vT+10, vB2)
    e(f"s_nop 0\n v_readlane_b32 s56, v{vT+10}, 63\n v_readlane_b32 s58, v{vT+12}, 63\n s_nop 3\n s_lshr_b32 s57, s56, 16\n s_and_b32 s56, s56, 0xffff\n s_and_b32 s58, s58, 0xffff")
    for k in range(3): e(f"v_writelane_b32 v{SV+8+k}, s{56+k}, m0")
    e("s_cmp_lg_u64 s[52:53], 0\n s_cbranch_scc1 Lslow1")
    for k in range(16): e(f"v_mov_b32 v{vT+k}, v{SV+k}")
    e("s_branch Lback")
    w1, b1, w2, wl, wh, bl, bh, cc = vT, vT+1, vT+2, vT+3, vT+13, vT+4, vT+5, vT+6
    K0 = (2/3.141592653589793)**0.5; C1 = -2*K0*LOG2E; C3 = C1*0.044715
    e("Ltab:")
    e(f"ds_read_b32 v{w1}, v{vTL} offset:{L_MW}\n ds_read_b32 v{b1}, v{vTL} offset:{L_MW+4096}\n ds_read_b32 v{w2}, v{vTL} offset:{L_MW+8192}")
    e(f"v_add_u32 v{vTL}, 256, v{vTL}\n v_mov_b32 v{cc+1}, {f2u(C1):#x}\n v_mov_b32 v{cc}, {f2u(C3):#x}\n s_waitcnt lgkmcnt(0)")
    e(f"v_lshlrev_b32 v{wl}, 16, v{w1}\n v_and_b32 v{wh}, 0xffff0000, v{w1}\n v_lshlrev_b32 v{bl}, 16, v{b1}\n v_and_b32 v{bh}, 0xffff0000, v{b1}")
    U, Z_, pk = vT+8, vT+10, vT+12
    for k in range(3):
        e(f"v_mul_f32 v{U}, s{56+k}, v{wl}\n v_mul_f32 v{U+1}, s{56+k}, v{wh}\n v_cvt_pk_bf16_f32 v{U}, 0, v{U}\n v_cvt_pk_bf16_f32 v{U+1}, 0, v{U+1}")
        e(f"v_pk_add_f32 {vr(U,2)}, {vr(U,2)}, {vr(bl,2)}\n v_cvt_pk_bf16_f32 v{U}, 0, v{U}\n v_cvt_pk_bf16_f32 v{U+1}, 0, v{U+1}")
        e(f"v_pk_mul_f32 {vr(Z_,2)}, {vr(U,2)}, {vr(U,2)}\n v_fma_f32 v{Z_}, v{Z_}, v{cc}, v{cc+1}\n v_fma_f32 v{Z_+1}, v{Z_+1}, v{cc}, v{cc+1}")
        e(f"v_pk_mul_f32 {vr(Z_,2)}, {vr(Z_,2)}, {vr(U,2)}\n v_exp_f32 v{Z_}, v{Z_}\n v_exp_f32 v{Z_+1}, v{Z_+1}\n s_nop 0")
        e(f"v_add_f32 v{Z_}, 1.0, v{Z_}\n v_add_f32 v{Z_+1}, 1.0, v{Z_+1}\n v_rcp_f32 v{Z_}, v{Z_}\n v_rcp_f32 v{Z_+1}, v{Z_+1}\n s_nop 0")
        e(f"v_pk_mul_f32 {vr(Z_,2)}, {vr(Z_,2)}, {vr(U,2)}\n v_cvt_pk_bf16_f32 v{pk}, v{Z_}, v{Z_+1}\n v_dot2_f32_bf16 v{vTA+k}, v{pk}, v{w2}, v{vTA+k}")
    e("s_sub_u32 s3, s3, 1\n s_cmp_lg_u32 s3, 0\n s_cbranch_scc1 Ltab\n s_nop 2\n s_setpc_b64 s[30:31]")
    return g

HEADER = open("cdna_kernels/" + NAME + ".s.ref").read().split("; Override launch")[0]

def emit():
    g = gen()
    nv = (g.nv + 7)//8*8
    out = HEADER + f"; @launch grid=(256,1,1) block=(512,1,1) lds={LDS_BYTES}\n"
    out += '.amdgcn_target "amdgcn-amd-amdhsa--gfx950"\n.text\n'
    out += f".globl {KN}\n.p2align 8\n.type {KN},@function\n" + "\n".join(g.L) + "\n"
    out += f""".section .rodata,"a"
.p2align 6
.amdhsa_kernel {KN}
  .amdhsa_next_free_vgpr {nv}
  .amdhsa_next_free_sgpr 96
  .amdhsa_accum_offset {nv}
  .amdhsa_group_segment_fixed_size 0
  .amdhsa_kernarg_size 104
  .amdhsa_user_sgpr_count 2
  .amdhsa_user_sgpr_kernarg_segment_ptr 1
  .amdhsa_system_sgpr_workgroup_id_x 1
  .amdhsa_float_denorm_mode_32 3
.end_amdhsa_kernel
"""
    return out, g

if __name__ == "__main__":
    ap = argparse.ArgumentParser()
    ap.add_argument("-o", default="cdna_kernels/" + NAME + ".s")
    ap.add_argument("set", nargs="*")
    a = ap.parse_args()
    for kv in a.set:
        k, v = kv.split("=", 1); old = getattr(P, k)
        setattr(P, k, v.replace("_", " ") if isinstance(old, str) else int(v))
    out, g = emit()
    open(a.o, "w").write(out)
    print("vgprs", g.nv, "lines", len(g.L))
```

```python
import sys, struct, argparse

NAME = "sequential_preLN__mha_block_cached__mixer_token_mlp__decode"
KN = NAME + "_kernel"
def f2u(x): return struct.unpack("<I", struct.pack("<f", x))[0]

class P:
    D = 16
    W = 3
    WODD = 0
    WEND = 3
    ENDAT = 104
    LAG = 8
    CU_N = 1
    CU_D = 2
    PRE = 3
    STRIDE = 5
    ROTJ = 16
    ROTX = 6
    ROT = 4
    R = 4
    POL = "nt"
    EB = 0
    VTOUCH = 0
    STOUCH = 0
    TOUCH = 0
    OTOUCH = 0
    X3 = 1
    CUP = 0
    CUPN = 16
    QALL = 1
    MIXLATE = 1
    K0 = 2
    KFIRST = 6
    KX1 = 0
    KX2 = 2
    KX3 = 4
    NPRO = 24
    WPRO = 5
    QPOLL_AT = 15
    QPOLL_USE = 19
    WO_START = 24
    WO_EVERY = 2
    POLL_AT = 40
    POLL_USE = 52
    TAB_AT = 24
    TAB_USE = 36
    TABK0 = 4
    TABKE = 4
    TPRE = 0
    TABPRO = 1
    AGG = 1
    DRY = 0
    DRYW = 3
    DIAG = 0
    XTAB = 1
    XWO = 1
    XTAIL = 1
    XML = 1
    XQ = 1
    XMM = 0
    XPRO = 9
    APOL = "sc1"
    PPOL = "sc1"
    ZPOL = "sc1"
    QSPOL = "sc1"
    QPW = 0
    PPOLL = 0
    PSLEEP = 0
    PMISS = 2
    XCOMP = 1
    XLIM = 3071

WS_E, WS_ZF, WS_ML, WS_TAB, WS_ACC, WS_QG, WS_DIAG = 0x0, 0x1000, 0x2000, 0x10000, 0x20000, 0x40000, 0x100000
REP_STRIDE, NGRAN = 3584, 214
L_QP, L_MW, L_Q1, L_OUTP, L_TAB, L_FIN = 0, 4096, 16384, 16384, 36864, 53248
L_F = L_FIN + 128
L_AGG = L_FIN + 256
LDS_BYTES = 57344
EMIN = 108
LOG2E = 1.4426950408889634
FINAL_IDS = (0, 34)
DPP = "row_mask:0xf bank_mask:0xf"
SPIN = 0x40000

class G:
    def __init__(s): s.L = []; s.fifo = []; s.lab = 0; s.nv = 0
    def e(s, t):
        for x in t.split("\n"):
            x = x.strip()
            if x: s.L.append(("    " if not x.endswith(":") else "") + x)
    def c(s, t): s.L.append("    ; " + t)
    def label(s, p="L"): s.lab += 1; return f"{p}{s.lab}"
    def v(s, n=1, align=1):
        s.nv = (s.nv + align - 1)//align*align
        r = s.nv; s.nv += n; return r
    def vm(s, text, tag):
        s.e(text); s.fifo.append(tag); assert len(s.fifo) <= 63
    def wait(s, tag):
        if tag not in s.fifo: return
        i = s.fifo.index(tag); n = len(s.fifo) - 1 - i
        s.e(f"s_waitcnt vmcnt({n})"); del s.fifo[:i+1]
    def cap(s, W, extra=0):
        kv = [t for t in s.fifo if t[0] == "kv"]
        if extra and len(kv) >= W:
            l = s.label("Lc"); n = len(s.fifo) - 1 - s.fifo.index(kv[-W])
            s.e(f"s_cbranch_vccnz {l}\n s_waitcnt vmcnt({n})\n {l}:" if False else f"s_bitcmp1_b32 s94, 0\n s_cbranch_scc1 {l}\n s_waitcnt vmcnt({n})\n {l}:")
            W += extra
        if len(kv) >= W: s.wait(kv[-W])

def vr(r, n): return f"v[{r}:{r+n-1}]"

def wave_reduce(g, op, regs, nsteps=6):
    steps = [f"row_ror:8 {DPP}", f"row_ror:4 {DPP}", f"row_ror:2 {DPP}", f"row_ror:1 {DPP}",
             "row_bcast:15 row_mask:0xa bank_mask:0xf", "row_bcast:31 row_mask:0xc bank_mask:0xf"]
    for st in steps[:nsteps]:
        for r in regs: g.e(f"{op}_dpp v{r}, v{r}, v{r} {st}")
        pad = 2 - (len(regs) - 1)
        if pad > 0: g.e(f"s_nop {pad-1}")

def bf16r(g, d, s_):
    g.e(f"v_cvt_pk_bf16_f32 v{d}, 0, v{s_}")
def bf16r_n(g, regs):
    for r in regs: bf16r(g, r, r)

def stamp(g, k, mode=0):
    if P.DIAG and (mode == 0 or mode == P.DIAG): g.e(f"s_memrealtime s[{62+2*k}:{63+2*k}]")

def tab_finish(g, vTA, dst, vB2):
    bf16r_n(g, [vTA, vTA+1, vTA+2])
    for k in range(3): g.e(f"v_add_f32 v{vTA+k}, v{vTA+k}, v{vB2}")
    g.e(f"v_cvt_pk_bf16_f32 v{dst}, v{vTA}, v{vTA+1}\n v_cvt_pk_bf16_f32 v{dst+2}, v{vTA+2}, v{vTA+2}")

def gen():
    g = G(); e = g.e
    D, W = P.D, P.W
    g.v(); vLANE = g.v(); vL16 = g.v(); vOFF = g.v()
    vMK = g.v(4); vA = g.v(8, 2); vQ = g.v(4, 2); vS = g.v(4); vACC = g.v(4, 2)
    vB = g.v(8, 2); vT = g.v(16, 2)
    vTA = g.v(3); vTL = g.v(); vXF = g.v(4); vML = g.v(4, 2); vMISC = g.v(8, 2)
    vB2 = g.v(); vWOO = g.v(); vDT = g.v(2); vTB = g.v(16, 2)
    vR = g.v(4*D, 2); vWB = g.v(80, 2)
    NX = P.NPRO - D
    def ring(i):
        if i < D: return vR + 4*i
        if i < D + NX: return vWB + 80 - 4*NX + 4*(i - D)
        return vR + 4*((i - D - NX) % D)
    def slot_free_after(i):
        if i < D + NX: return -1
        return i - D - NX if i - D - NX < D else i - D
    sX, sK, sV, sWO, sB2, sWS = "s[8:9]", "s[10:11]", "s[12:13]", "s[16:17]", "s[26:27]", "s[32:33]"
    SW, SH, SB, SS, ST, SFIN = "s34", "s35", "s36", "s37", "s38", "s39"
    FULL = "s[60:61]"; FULLHI = "s61"
    vG, vC = vMISC, vMISC+1
    st = {"nk": 0, "nwo": 0, "ab": 0}
    def kv_issue():
        i = st["nk"]; st["nk"] += 1
        g.vm(f"global_load_dwordx4 {vr(ring(i),4)}, v{vOFF}, {sK if i < 64 else sV} nt", ("kv", i))
        e(f"v_add_u32 v{vOFF}, {P.STRIDE*1024}, v{vOFF}\n v_and_b32 v{vOFF}, 0xffff, v{vOFF}")
    def after_consume(n):
        if st["nk"] < 128 and slot_free_after(st["nk"]) <= n and st["nk"] <= n + max(P.LAG, P.NPRO - n*P.CU_N//P.CU_D):
            g.cap(W, P.CUP if st['nk'] < P.NPRO + P.CUPN else 0) if st['nk'] < P.ENDAT else g.cap(P.WEND); kv_issue()
        if n >= P.WO_START and (n - P.WO_START) % P.WO_EVERY == 0 and st["nwo"] < 20:
            k = st["nwo"]; st["nwo"] += 1; t = k % 5
            if P.XWO == 1: g.vm(f"global_load_dwordx4 {vr(vWB+4*k,4)}, v{vWOO}, {sWO} offset:{256*t} {P.POL}", ("wo", k))
            elif P.XWO == 2:
                g.vm(f"global_load_dwordx4 {vr(vWB+4*k,4)}, v{vWOO}, {sWO} offset:{256*t} {P.POL}", ("wo", k))
            elif P.XWO == 3:
                l = g.label("Lw"); e(f"s_bfe_u32 s55, s2, 0x30003\n s_cmp_lg_u32 s55, {SW}\n s_cbranch_scc1 {l}")
                e(f"global_load_dwordx4 {vr(vWB+4*k,4)}, v{vWOO}, {sWO} offset:{256*t} {P.POL}\n {l}:")
            if t == 4: e(f"v_add_u32 v{vWOO}, {4*1280}, v{vWOO}")
    def pre_issue(n):
        for _ in range(P.PRE):
            if st["nk"] < 128 and slot_free_after(st["nk"]) <= n: kv_issue()
    def rowmac(acc, src, lane, data, build=True, first=False):
        if build:
            st["ab"] ^= 1; a = vA + 4*st["ab"]
            for r in range(4): e(f"v_and_b32_dpp v{a+r}, v{src}, v{vMK+r} row_newbcast:{lane} {DPP}")
            e("s_nop 1")
        a = vA + 4*st["ab"]
        e(f"v_mfma_f32_16x16x32_bf16 {vr(acc,4)}, {vr(a,4)}, {vr(data,4)}, {'0' if first else vr(acc,4)}")
    def spam(n):
        l = g.label("Lsp")
        e(f"s_cmp_ge_u32 {SW}, 4\n s_cbranch_scc1 {l}")
        for t in range(n): e(f"v_mfma_f32_16x16x32_bf16 {vr(vTB+8+4*(t&1),4)}, {vr(vMK,4)}, {vr(vMK,4)}, 0")
        e(f"{l}:")
    def ln_finish(M_, V_):
        bf16r_n(g, [M_, V_])
        e(f"v_add_f32 v{V_}, {f2u(1e-5):#x}, v{V_}"); bf16r(g, V_, V_)
        e(f"v_sqrt_f32 v{V_}, v{V_}\n s_nop 0"); bf16r(g, V_, V_)
        e(f"v_rcp_f32 v{V_}, v{V_}\n s_nop 0")
    def tag_poll(regs, reload, sleep):
        lr = g.label("Lr"); lo = g.label("Lo")
        e(f"s_mov_b32 s3, {SPIN:#x}\n {lr}:")
        e(f"v_xor_b32 v{vT}, {ST}, v{regs[0]}")
        for r in regs[1:]: e(f"v_xor_b32 v{vT+1}, {ST}, v{r}\n v_or_b32 v{vT}, v{vT}, v{vT+1}")
        e(f"v_cmp_ne_u32 vcc, 0, v{vT}\n s_cbranch_vccz {lo}\n s_sub_u32 s3, s3, 1\n s_cbranch_scc1 {lo}\n s_sleep {sleep}")
        e(reload); e(f"s_waitcnt vmcnt(0)\n s_branch {lr}\n {lo}:")

    e(f"{KN}:")
    e("s_cmp_ge_u32 s2, 256\n s_cbranch_scc1 Lend")
    stamp(g, 0)
    if P.DIAG == 5: e('s_memtime s[70:71]')
    e("s_load_dwordx16 s[8:23], s[0:1], 0\n s_load_dwordx8 s[24:31], s[0:1], 64\n s_load_dwordx2 s[32:33], s[0:1], 96")
    e(f"v_lshrrev_b32 v{vT}, 6, v0\n v_and_b32 v{vLANE}, 63, v0\n v_readfirstlane_b32 {SW}, v{vT}\n v_lshlrev_b32 v{vL16}, 4, v{vLANE}")
    g.c("id = 8j+x : head = 4x + (j>>3), batch = (j>>2)&1, split = j&3")
    e(f"s_and_b32 s52, s2, 7\n s_lshl_b32 s52, s52, 2\n s_lshr_b32 s53, s2, 6\n s_add_u32 {SH}, s52, s53")
    e(f"s_bfe_u32 {SB}, s2, 0x10005\n s_bfe_u32 {SS}, s2, 0x20003")
    e(f"s_lshl_b32 s52, {SB}, 5\n s_add_u32 s52, s52, {SH}\n s_lshl_b32 s54, s52, 2\n s_add_u32 s54, s54, {SS}")
    e(f"s_lshl_b32 s53, s54, 19\n s_lshl_b32 s55, {SW}, 16\n s_add_u32 s53, s53, s55")
    e(f"s_mul_i32 s55, {SW}, {P.ROT*1024}\n s_lshr_b32 s56, s2, 3\n s_mul_i32 s56, s56, {P.ROTJ*1024}\n s_add_u32 s55, s55, s56")
    e(f"s_and_b32 s56, s2, 7\n s_mul_i32 s56, s56, {P.ROTX*1024}\n s_add_u32 s55, s55, s56\n v_add_u32 v{vOFF}, s55, v{vL16}\n v_and_b32 v{vOFF}, 0xffff, v{vOFF}")
    e(f"s_mov_b32 {SFIN}, 0\n s_cmp_eq_u32 s2, {FINAL_IDS[0]}\n s_cselect_b32 {SFIN}, 1, {SFIN}\n s_cmp_eq_u32 s2, {FINAL_IDS[1]}\n s_cselect_b32 {SFIN}, 1, {SFIN}")
    e(f"v_lshrrev_b32 v{vG}, 4, v{vLANE}\n v_and_b32 v{vC}, 15, v{vLANE}")
    g.c("q work: head id>>3, rows 80*(id&7)..+80; wave w takes row quads w, w+8, w+16 (<20)")
    vWQO, vXQ, vXO = vMISC+2, vMISC+3, vMISC+6
    e(f"s_and_b32 s55, s2, 7\n s_mul_i32 s55, s55, 80\n s_lshl_b32 s56, {SW}, 2\n s_add_u32 s55, s55, s56\n v_add_u32 v{vWQO}, s55, v{vG}")
    e("s_lshl_b32 s59, s55, 13")
    e(f"v_lshrrev_b32 v{vT}, 3, v{vC}\n v_mul_u32_u24 v{vT}, 640, v{vT}\n v_add_lshl_u32 v{vXQ}, v{vT}, v{vWQO}, 1")
    e(f"v_lshlrev_b32 v{vWQO}, 13, v{vWQO}\n v_lshl_add_u32 v{vWQO}, v{vC}, 4, v{vWQO}\n s_lshr_b32 s56, s2, 3\n s_lshl_b32 s56, s56, 8\n v_add_u32 v{vWQO}, s56, v{vWQO}")
    e(f"v_lshrrev_b32 v{vT}, 5, v{vLANE}\n v_mul_u32_u24 v{vT}, 1280, v{vT}\n v_and_b32 v{vXO}, 31, v{vLANE}\n v_lshl_add_u32 v{vXO+1}, v{vXO}, 4, v{vT}\n v_lshl_add_u32 v{vXO}, v{vXO}, 3, v{vT}")
    e(f"s_mov_b32 s50, {640*8192}\n s_mov_b32 s51, 0x20000\n s_mov_b32 s47, 0x20000\n s_mov_b32 s43, 0x20000")
    e(f"s_mov_b32 s57, {32*8192}\n s_mov_b32 s58, {64*8192}\n s_cmp_lt_u32 {SW}, 4\n s_cselect_b32 s58, s58, s50")
    e(f"s_lshl_b32 s55, {SB}, 15\n s_add_u32 s55, s55, {WS_ACC}\n s_mov_b32 s46, {P.R*REP_STRIDE}")
    e("s_waitcnt lgkmcnt(0)")
    stamp(g, 1)
    e("s_add_u32 s10, s10, s53\n s_addc_u32 s11, s11, 0")
    if P.STOUCH:
        e("s_load_dword s95, s[10:11], 0\n s_load_dword s95, s[8:9], 0\n s_load_dword s95, s[14:15], s59\n s_load_dword s95, s[20:21], 0\n s_load_dword s95, s[22:23], 0")
        e("s_load_dword s95, s[24:25], 0\n s_load_dword s95, s[32:33], 0")
        if P.STOUCH > 1: e("s_load_dword s95, s[12:13], s53\n s_load_dword s95, s[16:17], 0\n s_load_dword s95, s[28:29], 0")
    e("s_add_u32 s44, s32, s55\n s_addc_u32 s45, s33, 0")
    lz = g.label("Lnz")
    e(f"s_cmp_eq_u32 {SFIN}, 0\n s_cbranch_scc1 {lz}")
    e(f"v_mov_b32 v{vT+4}, 0\n v_mov_b32 v{vT+5}, 0\n v_mov_b32 v{vT+6}, 0\n v_mov_b32 v{vT+7}, 0\n v_lshlrev_b32 v{vT}, 4, v0")
    for k in range((P.R*REP_STRIDE + 8191)//8192):
        e(f"s_mov_b32 s55, {k*8192}\n buffer_store_dwordx4 {vr(vT+4,4)}, v{vT}, s[44:47], s55 offen {P.ZPOL}")
    e(f"{lz}:")
    for _ in range(P.K0): kv_issue()
    vXD, vWQ, X = vWB, vWB + 12, vWB + 24
    if P.XPRO >= 1:
        if P.X3:
            g.vm(f"global_load_dwordx4 {vr(vXD,4)}, v{vXO+1}, {sX}", ("x", 0))
            g.vm(f"global_load_dwordx4 {vr(vXD+4,4)}, v{vXO+1}, {sX} offset:512", ("x", 1))
            g.vm(f"global_load_dwordx2 {vr(vXD+8,2)}, v{vXO}, {sX} offset:1024", ("x", 4))
        else:
            for k in range(5): g.vm(f"global_load_dwordx2 {vr(vXD+2*k,2)}, v{vXO}, {sX} offset:{256*k}", ("x", k))
        e("s_mov_b32 s48, s14\n s_mov_b32 s49, s15")
        g.vm(f"buffer_load_dwordx4 {vr(vWQ,4)}, v{vWQO}, s[48:51], 0 offen {P.POL}", ("wq", 0))
        g.vm(f"buffer_load_dwordx4 {vr(vWQ+4,4)}, v{vWQO}, s[48:51], s57 offen {P.POL}", ("wq", 1))
        g.vm(f"buffer_load_dwordx4 {vr(vWQ+8,4)}, v{vWQO}, s[48:51], s58 offen {P.POL}", ("wq", 2))
        e("s_mov_b32 s48, s8\n s_mov_b32 s49, s9\n s_mov_b32 s50, 2560")
        g.vm(f"buffer_load_ushort v{vXQ+1}, v{vXQ}, s[48:51], 0 offen offset:64", ("xq", 1))
        g.vm(f"buffer_load_ushort v{vXQ+2}, v{vXQ}, s[48:51], 0 offen offset:128", ("xq", 2))
        g.vm(f"buffer_load_ushort v{vXQ}, v{vXQ}, s[48:51], 0 offen", ("xq", 0))
    vMW = vTB
    def mix_load():
        g.c("mixer weights: 12 chunks of 1KB (array = chunk>>2, zero past 3456 B); wave w takes chunk w and, for w<4, chunk 8+w")
        e(f"s_cmp_lt_u32 {SW}, 4\n s_cselect_b32 s48, s20, s22\n s_cselect_b32 s49, s21, s23\n s_mov_b32 s50, 3456")
        e(f"s_and_b32 s55, {SW}, 3\n s_lshl_b32 s55, s55, 10")
        if P.XPRO >= 3: g.vm(f"buffer_load_dwordx4 {vr(vMW,4)}, v{vL16}, s[48:51], s55 offen {P.POL}", ("mw", 0))
        e(f"s_mov_b32 s48, s24\n s_mov_b32 s49, s25\n s_lshl_b32 s55, {SW}, 10\n v_add_u32 v{vDT}, s55, v{vL16}")
        if P.XPRO >= 3: g.vm(f"buffer_load_dwordx4 {vr(vMW+4,4)}, v{vL16}, s[48:51], s55 offen {P.POL}", ("mw", 1))
        e(f"v_mov_b32 v{vB2}, 0")
        if P.XPRO >= 3: g.vm(f"global_load_ushort v{vB2}, v{vB2}, {sB2}", ("b2", 0))
    def mix_store():
        g.wait(("b2", 0))
        lm = g.label("Lmw")
        e(f"v_lshlrev_b32 v{vB2}, 16, v{vB2}\n ds_write_b128 v{vDT}, {vr(vMW,4)} offset:{L_MW}\n s_cmp_ge_u32 {SW}, 4\n s_cbranch_scc1 {lm}")
        e(f"ds_write_b128 v{vDT}, {vr(vMW+4,4)} offset:{L_MW + 8192}\n {lm}:")
    if not P.MIXLATE: mix_load()
    stamp(g, 4, 6)
    if P.EB and P.XPRO >= 1: e("s_barrier")
    stamp(g, 5, 6)
    while st["nk"] < P.KFIRST: kv_issue()
    stamp(g, 6, 6)
    e(f"s_load_dword {ST}, {sWS}, {WS_E}")
    e("s_add_u32 s12, s12, s53\n s_addc_u32 s13, s13, 0")
    if P.VTOUCH: e(f"s_load_dword s59, {sV}, 0")
    if P.CUP: e(f"s_cmp_lt_u32 {SW}, 2\n s_cselect_b32 s94, 1, 0")
    g.c("operand masks: lane (g,i) owns element i&7 of its 8-element slab")
    e(f"v_bfe_u32 v{vT}, v{vC}, 1, 2\n v_and_b32 v{vT+1}, 1, v{vC}\n v_lshlrev_b32 v{vT+1}, 4, v{vT+1}\n v_mov_b32 v{vT+2}, 0xffff\n v_lshlrev_b32 v{vT+1}, v{vT+1}, v{vT+2}")
    for r in range(4): e(f"v_cmp_eq_u32 vcc, {r}, v{vT}\n s_nop 1\n v_cndmask_b32 v{vMK+r}, 0, v{vT+1}, vcc")
    rep = f"s_mov_b32 s55, {SS}" if P.R == 4 else (f"s_and_b32 s55, {SS}, {P.R-1}" if P.R < 4 else f"s_and_b32 s55, {SH}, {P.R//4-1}\n s_lshl_b32 s55, s55, 2\n s_add_u32 s55, s55, {SS}")
    e(rep)
    e(f"s_mul_i32 s55, s55, {REP_STRIDE}\n s_add_u32 s40, s44, s55\n s_addc_u32 s41, s45, 0\n s_mov_b32 s42, {NGRAN*16}")
    e(f"s_mov_b32 s4, 0\n s_mov_b32 s5, -1\n s_mov_b32 s6, 0xff00ff00\n s_mov_b32 s7, 0xff00ff00\n s_mov_b64 {FULL}, -1")
    e(f"s_lshl_b32 s55, {SH}, 7\n" + ("s_mov_b32 s55, 0\n" if P.XWO == 2 else "") + f"s_lshl_b32 s53, {SW}, 4\n s_add_u32 s55, s55, s53\n v_add_u32 v{vWOO}, s55, v{vG}")
    e(f"v_mul_u32_u24 v{vWOO}, 1280, v{vWOO}\n v_lshl_add_u32 v{vWOO}, v{vC}, 4, v{vWOO}")
    e(f"v_mov_b32 v{vT}, 0\n ds_write_b32 v{vT}, v{vT} offset:{L_AGG+256}")
    if P.XPRO >= 2:
        stamp(g, 8, 6); g.wait(("x", 0)); stamp(g, 9, 6); g.wait(("x", 4)); stamp(g, 4, 3)
        if P.XMM == 5: spam(60)
        for _ in range(P.KX1): kv_issue()
        for k in range(10): e(f"v_lshlrev_b32 v{X+2*k}, 16, v{vXD+k}\n v_and_b32 v{X+2*k+1}, 0xffff0000, v{vXD+k}")
        e(f"v_readlane_b32 s55, v{X}, 0\n v_readlane_b32 s56, v{X}, 32\n s_nop 0\n v_mov_b32 v{vT}, s55\n v_mov_b32 v{vT+1}, s56")
        e(f"v_cndmask_b32 v{vT+2}, v{vT}, v{vT+1}, s[4:5]\n v_cndmask_b32 v{vT+3}, v{vT}, v{vT+1}, s[6:7]")
        for k in range(20): e(f"v_sub_f32 v{X+k}, v{X+k}, v{vT+2}")
        S1, S2 = vT+10, vT+11
        e(f"v_add_f32 v{S1}, v{X}, v{X+1}\n v_mul_f32 v{S2}, v{X}, v{X}\n v_fmac_f32 v{S2}, v{X+1}, v{X+1}")
        for k in range(2, 20): e(f"v_add_f32 v{S1}, v{S1}, v{X+k}\n v_fmac_f32 v{S2}, v{X+k}, v{X+k}")
        e("s_nop 1")
        wave_reduce(g, "v_add_f32", [S1, S2], 5)
        e(f"v_readlane_b32 s55, v{S1}, 31\n v_readlane_b32 s56, v{S1}, 63\n v_readlane_b32 s57, v{S2}, 31\n v_readlane_b32 s58, v{S2}, 63")
        M_, V_ = vT+12, vT+13
        e(f"v_mov_b32 v{vT}, s55\n v_mov_b32 v{vT+1}, s56\n v_mov_b32 v{vT+4}, s57\n v_mov_b32 v{vT+5}, s58")
        e(f"v_cndmask_b32 v{M_}, v{vT}, v{vT+1}, s[6:7]\n v_cndmask_b32 v{V_}, v{vT+4}, v{vT+5}, s[6:7]")
        e(f"v_mul_f32 v{M_}, {f2u(1.0/640):#x}, v{M_}\n v_mul_f32 v{V_}, {f2u(1.0/640):#x}, v{V_}")
        e(f"v_fma_f32 v{V_}, -v{M_}, v{M_}, v{V_}\n v_add_f32 v{M_}, v{vT+3}, v{M_}\n v_max_f32 v{V_}, 0, v{V_}")
        ln_finish(M_, V_)
        g.wait(("xq", 0)); stamp(g, 5, 3)
        for _ in range(P.KX2): kv_issue()
        for k in range(3):
            r = vXQ + k
            e(f"v_lshlrev_b32 v{r}, 16, v{r}\n v_sub_f32 v{r}, v{r}, v{M_}"); bf16r(g, r, r)
            e(f"v_mul_f32 v{r}, v{r}, v{V_}\n v_cvt_pk_bf16_f32 v{r}, v{r}, v{r}")
            a_ = vA + 4*(k & 1)
            for j in range(4): e(f"v_and_b32 v{a_+j}, v{r}, v{vMK+j}")
            e(f"s_nop 1\n v_mfma_f32_16x16x32_bf16 {vr(vACC,4)}, {vr(a_,4)}, {vr(vWQ+4*k,4)}, {vr(vACC,4) if k else '0'}")
        stamp(g, 2)
        if not P.MIXLATE: mix_store()
        e(f"s_lshl_b32 s55, {SW}, 10\n v_add_u32 v{vT}, s55, v{vL16}\n v_lshlrev_b32 v{vT+1}, 3, v0\n s_nop 4")
        e(f"ds_write_b128 v{vT}, {vr(vACC,4)} offset:{L_Q1}")
        for _ in range(P.KX3): kv_issue()
        e("s_waitcnt lgkmcnt(0)\n s_barrier")
    else: e('s_waitcnt lgkmcnt(0)')
    stamp(g, 6, 3)
    e(f"s_mul_i32 {ST}, {ST}, 1664525\n s_add_u32 {ST}, {ST}, 1013904223")
    if P.QALL:
        e(f"s_lshl_b32 s55, {SW}, 7\n v_lshl_add_u32 v{vT+1}, v{vC}, 3, s55\n v_lshl_add_u32 v{vT+1}, v{vG}, 11, v{vT+1}")
        e(f"ds_read_b64 {vr(vWB,2)}, v{vT+1} offset:{L_Q1}\n ds_read_b64 {vr(vWB+2,2)}, v{vT+1} offset:{L_Q1+1024}")
        e(f"s_lshr_b32 s55, s2, 3\n s_lshl_b32 s55, s55, 1\n s_lshr_b32 s56, {SW}, 2\n s_add_u32 s55, s55, s56\n s_lshl_b32 s55, s55, 3\n s_and_b32 s56, s2, 7\n s_add_u32 s55, s55, s56")
        e(f"s_lshl_b32 s55, s55, 10\n s_and_b32 s56, {SW}, 3\n s_lshl_b32 s56, s56, 8\n s_add_u32 s55, s55, s56\n s_add_u32 s55, s55, {WS_QG}")
        e(f"v_lshl_add_u32 v{vT+2}, v{vC}, 4, s55\n v_mov_b32 v{vT+5}, {ST}\n v_mov_b32 v{vT+7}, {ST}\n s_waitcnt lgkmcnt(0)")
        e(f"v_add_f32 v{vT+4}, v{vWB}, v{vWB+2}\n v_add_f32 v{vT+6}, v{vWB+1}, v{vWB+3}\n s_nop 1")
        for stp in ["row_bcast:15 row_mask:0xa bank_mask:0xf"]: pass
        for r in (vT+4, vT+6): e(f"v_mov_b32 v{vWB + (r - vT - 4)//2}, v{r}")
        e("s_nop 1")
        e(f"v_permlane32_swap_b32 v{vT+4}, v{vWB}\n v_permlane32_swap_b32 v{vT+6}, v{vWB+1}\n v_add_f32 v{vT+4}, v{vT+4}, v{vWB}\n v_add_f32 v{vT+6}, v{vT+6}, v{vWB+1}")
        e(f"v_mov_b32 v{vWB}, v{vT+4}\n v_mov_b32 v{vWB+1}, v{vT+6}\n s_nop 1")
        e(f"v_permlane16_swap_b32 v{vT+4}, v{vWB}\n v_permlane16_swap_b32 v{vT+6}, v{vWB+1}\n v_add_f32 v{vT+4}, v{vT+4}, v{vWB}\n v_add_f32 v{vT+6}, v{vT+6}, v{vWB+1}")
        e("s_mov_b64 exec, 0xffff")
        g.vm(f"global_store_dwordx4 v{vT+2}, {vr(vT+4,4)}, {sWS} sc1", ("qs", 0))
        e("s_mov_b64 exec, -1")
    else:
        lq = g.label("Lq")
        e(f"s_cmp_ge_u32 {SW}, {2 if P.XQ in (1,2,4,5) else 0}\n s_cbranch_scc1 {lq}")
        for w in range(8): e(f"ds_read_b64 {vr(vWB+2*w,2)}, v{vT+1} offset:{L_Q1 + w*1024}")
        e(f"s_lshr_b32 s55, s2, 3\n s_lshl_b32 s55, s55, 1\n s_add_u32 s55, s55, {SW}\n s_lshl_b32 s55, s55, 3\n s_and_b32 s56, s2, 7\n s_add_u32 s55, s55, s56")
        e(f"s_lshl_b32 s55, s55, 10\n s_add_u32 s55, s55, {WS_QG}\n v_add_u32 v{vT+2}, s55, v{vL16}\n v_mov_b32 v{vT+5}, {ST}\n v_mov_b32 v{vT+7}, {ST}")
        e("s_waitcnt lgkmcnt(0)")
        for k in range(2):
            e(f"v_add_f32 v{vWB+k}, v{vWB+k}, v{vWB+2+k}\n v_add_f32 v{vWB+4+k}, v{vWB+4+k}, v{vWB+6+k}\n v_add_f32 v{vWB+8+k}, v{vWB+8+k}, v{vWB+10+k}\n v_add_f32 v{vWB+12+k}, v{vWB+12+k}, v{vWB+14+k}")
        for k in range(2): e(f"v_add_f32 v{vWB+k}, v{vWB+k}, v{vWB+4+k}\n v_add_f32 v{vWB+8+k}, v{vWB+8+k}, v{vWB+12+k}")
        e(f"v_add_f32 v{vT+4}, v{vWB}, v{vWB+8}\n v_add_f32 v{vT+6}, v{vWB+1}, v{vWB+9}")
        e(f"global_store_dwordx4 v{vT+2}, {vr(vT+4,4)}, {sWS} {P.QSPOL}\n {lq}:")
    g.c("zero-fill-done flag: the fill is older than the wq loads every wave waited for before the barrier")
    lz = g.label("Lnf")
    e(f"s_cmp_eq_u32 {SFIN}, 0\n s_cbranch_scc1 {lz}\n s_cmp_lg_u32 {SW}, 2\n s_cbranch_scc1 {lz}")
    e(f"v_mov_b32 v{vT+4}, {ST}\n v_mov_b32 v{vT+5}, {ST}\n v_mov_b32 v{vT+6}, {ST}\n v_mov_b32 v{vT+7}, {ST}")
    e(f"s_lshl_b32 s55, {SB}, 8\n s_add_u32 s55, s55, {WS_ZF}\n v_mov_b32 v{vT+8}, s55\n s_mov_b64 exec, 1")
    e(f"global_store_dwordx4 v{vT+8}, {vr(vT+4,4)}, {sWS} sc1\n s_mov_b64 exec, -1\n {lz}:")
    if P.XMM and P.XMM < 5:
        e(f"s_cmp_ge_u32 {SW}, 4\n s_cbranch_scc1 Lxm2\n s_mov_b32 s3, 60")
        if P.XMM == 1: e("s_mov_b64 exec, 0")
        e("Lxm1:")
        for t in range(4):
            if P.XMM == 3: e("s_nop 15")
            elif P.XMM == 4: e(f"v_add_f32 v{vTB+t}, v{vA}, v{vWB}\n v_add_f32 v{vTB+t+4}, v{vA}, v{vWB}\n v_add_f32 v{vTB+t+8}, v{vA}, v{vWB}\n v_add_f32 v{vTB+t+12}, v{vA}, v{vWB}")
            else: e(f"v_mfma_f32_16x16x32_bf16 {vr(vTB+4*t,4)}, {vr(vA,4)}, {vr(vWB,4)}, 0")
        e("s_sub_u32 s3, s3, 1\n s_cbranch_scc0 Lxm1\n s_mov_b64 exec, -1\n s_nop 7\n Lxm2:")
    if P.DRY:
        ld = g.label("Lnd")
        e(f"s_cmp_lg_u32 {SW}, {P.DRYW}\n s_cbranch_scc1 Ldryret\n s_cmp_eq_u32 {SFIN}, 0\n s_cbranch_scc1 Ldryret")
        e(f"s_mov_b64 {FULL}, 0\n s_mov_b64 exec, 0\n s_branch Lfinal")
        e(f"Ldryret:\n s_mov_b64 {FULL}, -1\n s_mov_b64 exec, -1")
    e(f"s_lshl_b32 s55, {SH}, 1\n s_add_u32 s55, s55, {SB}\n s_lshl_b32 s55, s55, 3\n s_add_u32 s55, s55, {SW}\n s_lshl_b32 s55, s55, 10\n s_add_u32 s55, s55, {WS_QG}")
    e(f"v_add_u32 v{vMISC+2}, s55, v{vL16}\n s_lshl_b32 s55, {SW}, 9\n v_lshl_add_u32 v{vMISC+3}, v{vLANE}, 3, s55")
    g.c("table inputs of this wave: entry k*2048 + (wg*8+w), k = 0..2")
    e(f"s_lshl_b32 s55, s2, 3\n s_add_u32 s55, s55, {SW}\n s_add_u32 s56, s55, {EMIN<<7}\n s_lshl_b32 s56, s56, 16")
    e(f"s_add_u32 s57, s55, {2048 + (EMIN<<7)}\n s_add_u32 s58, s55, {2048 - 3072 + (EMIN<<7) + 0x8000}")
    e(f"s_cmp_ge_u32 s55, 1024\n s_cselect_b32 s57, s58, s57\n s_lshl_b32 s57, s57, 16")
    e(f"s_add_u32 s58, s55, {4096 - 3072 + (EMIN<<7) + 0x8000}\n s_lshl_b32 s58, s58, 16")
    e(f"v_mov_b32 v{vTA}, 0\n v_mov_b32 v{vTA+1}, 0\n v_mov_b32 v{vTA+2}, 0\n v_lshlrev_b32 v{vTL}, 2, v{vLANE}")
    if P.MIXLATE: mix_load(); mw_at = st["nk"] + 4; P.TABPRO = 0
    nslots = P.QPOLL_USE - st["nk"]
    tabq = [1]*min(14, nslots) if P.TABPRO else []
    st["tab"] = 14 - len(tabq)
    qload = f"global_load_dwordx4 {vr(vML,4)}, v{vMISC+2}, {sWS} sc1"
    while st["nk"] < P.NPRO:
        if st["nk"] < P.QPOLL_USE + 1: g.cap(P.WPRO)
        kv_issue()
        if P.MIXLATE and st["nk"] == mw_at: mix_store()
        if P.TABPRO and P.XTAB and tabq:
            e(f"s_mov_b32 s3, {tabq.pop(0)}\n s_call_b64 s[30:31], Ltab")
        if st["nk"] == P.QPOLL_AT and P.XQ in (1,3,4,5): g.vm(qload.replace(" sc1", {4: " nt", 5: ""}.get(P.XQ, " sc1")), ("qg", 0))
        if st["nk"] == P.QPOLL_AT and P.XQ >= 6:
            g.vm({6: f"global_load_dwordx4 {vr(vML,4)}, v{vL16}, {sK} sc1", 7: qload.replace(" sc1", " nt"), 8: f"global_load_dwordx4 {vr(vML,4)}, v{vL16}, {sX}",
                  9: f"global_load_dwordx4 {vr(vML,4)}, v{vL16}, {sWS} sc1", 10: f"global_load_dwordx4 {vr(vML,4)}, v{vL16}, {sWO} nt"}[P.XQ], ("qg", 0))
        if st["nk"] == P.QPOLL_USE and P.XQ >= 6: g.wait(("qg", 0))
        if st["nk"] == P.QPOLL_USE and P.XQ in (1,3,4,5):
            g.wait(("qg", 0)); stamp(g, 8, 3)
            if P.XQ != 3: tag_poll([vML+1, vML+3], qload, 1)
            stamp(g, 9, 3)
            e(f"v_mov_b32 v{vML+1}, v{vML+2}\n ds_write_b64 v{vMISC+3}, {vr(vML,2)} offset:{L_QP}")
    stamp(g, 10, 3)
    e(f"v_lshlrev_b32 v{vT}, 4, v{vC}\n s_waitcnt lgkmcnt(0)" + ("\n s_barrier" if P.XPRO >= 2 else ""))
    QS = vWB
    for half in range(2):
        for w in range(4):
            o = L_QP + (4*half + w)*512
            e(f"ds_read_b128 {vr(QS+8*w,4)}, v{vT} offset:{o}\n ds_read_b128 {vr(QS+8*w+4,4)}, v{vT} offset:{o + 256}")
        for w in range(4):
            e(f"s_waitcnt lgkmcnt({6-2*w})")
            for k in range(8):
                e(f"v_mov_b32 v{vB+k}, v{QS+k}" if half == 0 and w == 0 else f"v_add_f32 v{vB+k}, v{vB+k}, v{QS+8*w+k}")
    for k in range(4): e(f"v_cvt_pk_bf16_f32 v{vQ+k}, v{vB+2*k}, v{vB+2*k+1}")
    e("s_mov_b32 s4, 0xcccccccc\n s_mov_b32 s5, 0xcccccccc\n s_mov_b32 s6, 0xaaaaaaaa\n s_mov_b32 s7, 0xaaaaaaaa")
    stamp(g, 3)
    tab_iters = [4, 4, 3, 3]
    def stepA(i, t):
        e(f"v_add_f32_dpp v{vB + (i & 7)}, v{t}, v{t} row_mirror row_mask:0xf bank_mask:{'0x3' if i < 8 else '0xc'}")
    for G_ in range(4):
        pend = None
        for i in range(16):
            n = 16*G_ + i
            g.wait(("kv", n))
            r = ring(n); t = vDT + (i & 1)
            if P.XCOMP:
                e(f"v_dot2_f32_bf16 v{t}, v{r}, v{vQ}, 0")
                for k in range(1, 4): e(f"v_dot2_f32_bf16 v{t}, v{r+k}, v{vQ+k}, v{t}")
                if pend is not None: stepA(*pend)
            pend = (i, t)
            after_consume(n)
            if n == 6 and P.TOUCH:
                l = g.label("Ltc")
                e(f"s_cmp_lg_u32 {SW}, 7\n s_cbranch_scc1 {l}\n s_mul_i32 s55, {SH}, {128*1280}")
                e(f"s_load_dword s95, {sV}, 0\n s_load_dword s95, {sWO}, s55\n s_load_dword s95, s[28:29], 0\n {l}:")
            if P.XMM == 5: spam(24)
            if P.XTAB and st["tab"] and n >= P.TABK0 and (n - P.TABK0) % P.TABKE == 0:
                for _ in range(P.TPRE):
                    if slot_free_after(st["nk"]) <= n: kv_issue()
                st["tab"] -= 1; e("s_mov_b32 s3, 1\n s_call_b64 s[30:31], Ltab")
        if G_ == 3: pre_issue(n)
        e("s_nop 2"); stepA(*pend); e("s_nop 1")
        for u in range(4):
            e(f"v_add_f32_dpp v{vT+u}, v{vB+u}, v{vB+u} row_half_mirror row_mask:0xf bank_mask:0x5")
            e(f"v_add_f32_dpp v{vT+u}, v{vB+u+4}, v{vB+u+4} row_half_mirror row_mask:0xf bank_mask:0xa")
        e("s_nop 0")
        for u in range(4): e(f"v_add_f32_dpp v{vT+4+u}, v{vT+u}, v{vT+u} quad_perm:[2,3,0,1] {DPP}")
        e(f"v_cndmask_b32 v{vT}, v{vT+4}, v{vT+6}, s[4:5]\n v_cndmask_b32 v{vT+1}, v{vT+5}, v{vT+7}, s[4:5]\n s_nop 1")
        e(f"v_add_f32_dpp v{vT+2}, v{vT}, v{vT} quad_perm:[1,0,3,2] {DPP}\n v_add_f32_dpp v{vT+3}, v{vT+1}, v{vT+1} quad_perm:[1,0,3,2] {DPP}")
        e(f"v_cndmask_b32 v{vT}, v{vT+2}, v{vT+3}, s[6:7]")
        bf16r(g, vT, vT)
        e(f"v_mul_f32 v{vT}, {f2u(128**-0.5):#x}, v{vT}")
        bf16r(g, vS+G_, vT)
        stamp(g, 4+G_, 1 if G_ < 3 else 0)
    assert st["tab"] == 0 or not P.XTAB
    e(f"v_max_f32 v{vT}, v{vS}, v{vS+1}\n v_max3_f32 v{vT}, v{vS+2}, v{vS+3}, v{vT}\n s_nop 1")
    wave_reduce(g, "v_max_f32", [vT])
    e(f"v_readlane_b32 s52, v{vT}, 63\n s_nop 1")
    for k in range(4): e(f"v_subrev_f32 v{vS+k}, s52, v{vS+k}")
    for k in range(4): e(f"v_mul_f32 v{vS+k}, {f2u(LOG2E):#x}, v{vS+k}")
    for k in range(4): e(f"v_exp_f32 v{vS+k}, v{vS+k}")
    e(f"s_nop 0\n v_add_f32 v{vT}, v{vS}, v{vS+1}\n v_add_f32 v{vT+1}, v{vS+2}, v{vS+3}\n v_add_f32 v{vT}, v{vT}, v{vT+1}")
    for k in range(4): e(f"v_cvt_pk_bf16_f32 v{vS+k}, v{vS+k}, v{vS+k}")
    wave_reduce(g, "v_add_f32", [vT, vTA, vTA+1, vTA+2])
    e(f"v_mov_b32 v{vT+4}, s52\n v_mov_b32 v{vT+5}, {ST}\n v_mov_b32 v{vT+6}, v{vT}\n v_mov_b32 v{vT+7}, {ST}")
    tab_finish(g, vTA, vT+10, vB2)
    e(f"v_mov_b32 v{vT+11}, {ST}\n v_mov_b32 v{vT+13}, {ST}")
    if not P.XML: pass
    elif P.AGG:
        la = g.label("Lag")
        e(f"s_lshl_b32 s55, {SW}, 4\n v_mov_b32 v{vT+8}, s55\n v_mov_b32 v{vT+9}, 1\n v_mov_b32 v{vT+1}, 0")
        e("s_mov_b32 exec_lo, 0\n s_mov_b32 exec_hi, 0x80000000")
        e(f"ds_write_b128 v{vT+8}, {vr(vT+4,4)} offset:{L_AGG}\n ds_write_b128 v{vT+8}, {vr(vT+10,4)} offset:{L_AGG+128}\n s_waitcnt lgkmcnt(0)")
        e(f"ds_add_rtn_u32 v{vT+9}, v{vT+1}, v{vT+9} offset:{L_AGG+256}\n s_mov_b64 exec, -1\n s_waitcnt lgkmcnt(0)")
        e(f"v_readlane_b32 s55, v{vT+9}, 63\n s_nop 3\n s_cmp_lg_u32 s55, 7\n s_cbranch_scc1 {la}")
        e(f"ds_read_b128 {vr(vT+4,4)}, v{vL16} offset:{L_AGG}")
        e(f"s_lshl_b32 s55, s54, 7\n s_add_u32 s55, s55, {WS_ML}\n s_lshl_b32 s53, s2, 7\n s_add_u32 s53, s53, {WS_TAB - 128}")
        e(f"v_mov_b32 v{vT+8}, s55\n v_mov_b32 v{vT+9}, s53\n v_cmp_lt_u32 vcc, 7, v{vLANE}\n s_nop 1\n v_cndmask_b32 v{vT+8}, v{vT+8}, v{vT+9}, vcc\n v_add_u32 v{vT+8}, v{vT+8}, v{vL16}")
        e(f"s_mov_b64 exec, 0xffff\n s_waitcnt lgkmcnt(0)\n global_store_dwordx4 v{vT+8}, {vr(vT+4,4)}, {sWS} sc1\n s_mov_b64 exec, -1\n {la}:")
    else:
        e(f"s_lshl_b32 s55, s54, 3\n s_add_u32 s55, s55, {SW}\n s_lshl_b32 s55, s55, 4\n s_add_u32 s55, s55, {WS_ML}\n v_mov_b32 v{vT+8}, s55")
        e(f"s_lshl_b32 s55, s2, 3\n s_add_u32 s55, s55, {SW}\n s_lshl_b32 s55, s55, 4\n s_add_u32 s55, s55, {WS_TAB}\n v_mov_b32 v{vT+9}, s55")
        e("s_mov_b32 exec_lo, 0\n s_mov_b32 exec_hi, 0x80000000")
        g.vm(f"global_store_dwordx4 v{vT+8}, {vr(vT+4,4)}, {sWS} sc1", ("st", 0))
        g.vm(f"global_store_dwordx4 v{vT+9}, {vr(vT+10,4)}, {sWS} sc1", ("st", 1))
        e("s_mov_b64 exec, -1")
    vMLO, vTBO, vXA = vMISC+3, vMISC+4, vMISC+5
    e(f"s_lshr_b32 s55, s54, 2\n s_lshl_b32 s55, s55, 9\n s_add_u32 s55, s55, {WS_ML}\n v_add_u32 v{vMLO}, s55, v{vL16}")
    e(f"s_lshl_b32 s55, {SB}, 8\n s_add_u32 s55, s55, {WS_ZF}\n v_mov_b32 v{vB}, s55\n v_cmp_lt_u32 vcc, 31, v{vLANE}\n s_nop 1\n v_cndmask_b32 v{vMLO}, v{vMLO}, v{vB}, vcc")
    e(f"s_add_u32 s48, s32, {WS_TAB}\n s_addc_u32 s49, s33, 0\n s_lshl_b32 s50, {SFIN}, 15\n v_lshlrev_b32 v{vTBO}, 4, v0")
    g.c("final stage x values (final workgroups only): columns 3j..3j+2, j = min(tid,213), and column 0")
    e(f"v_min_u32 v{vXA}, 213, v0\n v_mul_u32_u24 v{vXA}, 6, v{vXA}\n s_mul_i32 s55, {SB}, 1280\n v_add_u32 v{vXA}, s55, v{vXA}\n v_mov_b32 v{vXF+3}, s55")
    e(f"s_mov_b32 s44, s8\n s_mov_b32 s45, s9\n s_mul_i32 s46, {SFIN}, 2560")
    lx = g.label("Lxf")
    e(f"s_cmp_eq_u32 {SFIN}, 0\n s_cbranch_scc1 {lx}")
    for k in range(3): e(f"buffer_load_ushort v{vXF+k}, v{vXA}, s[44:47], 0 offen offset:{2*k}")
    if P.OTOUCH: e(f"global_load_dword v{vT}, v{vXF+3}, s[28:29]")
    e(f"buffer_load_ushort v{vXF+3}, v{vXF+3}, s[44:47], 0 offen\n {lx}:")
    vOPW, vOPR, vOUW = vML+1, vML+2, vML+3
    for i in range(64):
        n = 64 + i
        g.wait(("kv", n))
        if P.XCOMP: rowmac(vACC, vS + i//16, i % 16, ring(n), first=(i == 0))
        if i % 16 == 15: stamp(g, 8 + i//16, 1 if i < 48 else 0)
        after_consume(n)
        tload = "\n".join(f"s_mov_b32 s55, {k*8192}\n buffer_load_dwordx4 {vr(vTB+4*k,4)}, v{vTBO}, s[48:51], s55 offen sc1" for k in range(4))
        if i == P.TAB_AT and P.XML in (1,4):
            for k in range(4):
                e(f"s_mov_b32 s55, {k*8192}")
                g.vm(f"buffer_load_dwordx4 {vr(vTB+4*k,4)}, v{vTBO}, s[48:51], s55 offen sc1", ("tb", k))
        if i == P.TAB_USE and P.XML in (1,4):
            g.wait(("tb", 3))
            ls = g.label("Lts")
            e(f"s_cmp_eq_u32 {SFIN}, 0\n s_cbranch_scc1 {ls}")
            tag_poll([vTB+1+2*k for k in range(8)], tload, 2)
            e(f"v_lshlrev_b32 v{vT}, 3, v0")
            for k in range(4):
                e(f"v_mov_b32 v{vTB+4*k+1}, v{vTB+4*k+2}\n ds_write_b64 v{vT}, {vr(vTB+4*k,2)} offset:{L_TAB + k*4096}")
            for k in range(4): e(f"v_lshlrev_b32 v{vXF+k}, 16, v{vXF+k}")
            e(f"{ls}:")
        mload = f"global_load_dwordx4 {vr(vML,4)}, v{vMLO}, {sWS} sc1"
        if i == P.POLL_AT and P.XML in (1,3):
            lw = g.label("Lw0"); e(f"s_cmp_lg_u32 {SW}, 0\n s_cbranch_scc1 {lw}\n {mload}\n {lw}:"); st["mark"] = ("kv", st["nk"])
        if i == P.POLL_USE:
            pre_issue(n)
            g.c("wave 0: global max / sum of this (batch, head) -> scale factors of the workgroup's 8 waves")
            assert P.XML not in (1,3) or (st["mark"] not in g.fifo and st["mark"][1] < st["nk"])
            lw = g.label("Lw0"); e(f"s_cmp_lg_u32 {SW}, 0\n s_cbranch_scc1 {lw}")
            if P.XML in (1,3): tag_poll([vML+1, vML+3], mload, 2)
            e(f"s_mov_b32 exec_lo, 0\n v_mov_b32 v{vML}, s52\n v_mov_b32 v{vML+2}, 0\n s_mov_b32 exec_lo, -1")
            e(f"v_mov_b32 v{vT}, v{vML}\n s_nop 1")
            wave_reduce(g, "v_max_f32", [vT])
            e(f"v_readlane_b32 s53, v{vT}, 63\n s_nop 1")
            e(f"v_subrev_f32 v{vML}, s53, v{vML}\n v_mul_f32 v{vML}, {f2u(LOG2E):#x}, v{vML}\n v_exp_f32 v{vML}, v{vML}\n s_nop 0\n v_mul_f32 v{vT}, v{vML}, v{vML+2}\n s_nop 1")
            wave_reduce(g, "v_add_f32", [vT])
            e(f"v_readlane_b32 s53, v{vT}, 63\n s_nop 1\n v_rcp_f32 v{vT}, s53\n s_lshl_b32 s55, {SS}, 3\n v_mul_f32 v{vML}, v{vML}, v{vT}")
            e(f"v_subrev_u32 v{vT}, s55, v{vLANE}\n v_lshlrev_b32 v{vT}, 2, v{vT}\n s_lshl_b64 exec, 0xff, s55")
            e(f"ds_write_b32 v{vT}, v{vML} offset:{L_F}\n s_mov_b64 exec, -1\n {lw}:")
            e(f"v_lshrrev_b32 v{vML}, 2, v{vC}\n v_lshlrev_b32 v{vML}, 3, v{vML}")
            g.c("addresses for the tail")
            e(f"s_lshl_b32 s55, {SW}, 9\n v_add_u32 v{vOPW}, s55, v{vL16}")
            e(f"v_and_b32 v{vT}, 1, v{vC}\n v_lshlrev_b32 v{vT}, 8, v{vT}\n v_bfe_u32 v{vT+1}, v{vC}, 1, 1\n v_lshl_add_u32 v{vT}, v{vT+1}, 4, v{vT}")
            e(f"v_lshl_add_u32 v{vT}, v{vG}, 2, v{vT}\n v_lshrrev_b32 v{vT+1}, 2, v{vC}\n v_lshl_add_u32 v{vT}, v{vT+1}, 10, v{vT}")
            e(f"s_lshl_b32 s55, {SW}, 5\n v_add_u32 v{vOPR}, s55, v{vT}")
            e(f"s_mul_i32 s55, {SW}, 2560\n v_lshlrev_b32 v{vT}, 5, v{vC}\n v_lshl_add_u32 v{vT}, v{vG}, 4, v{vT}\n v_add_u32 v{vOUW}, s55, v{vT}")
            for k in range(2):
                e(f"v_add_u32 v{vT}, {512*k}, v0\n v_lshlrev_b32 v{vB+2+k}, 2, v{vT}\n v_lshrrev_b32 v{vT+1}, 2, v{vT}\n v_and_b32 v{vT}, 3, v{vT}")
                e(f"v_mad_u32_u24 v{vT+1}, v{vT+1}, 3, v{vT}\n v_min_u32 v{vB+k}, 639, v{vT+1}\n v_lshlrev_b32 v{vB+k}, 2, v{vB+k}")
            e(f"s_movk_i32 s55, 639\n v_cmp_lt_u32 s[6:7], s55, v{vT+1}\n s_mov_b32 s4, 0x88888888\n s_mov_b32 s5, 0x88888888")
            g.c("final stage constants")
            vPA, vO0, vO1, vFW, vZ = vMISC+2, vMISC+3, vMISC+4, vMISC+5, vMISC+6
            e(f"v_min_u32 v{vPA}, 213, v0\n v_lshlrev_b32 v{vPA}, 4, v{vPA}\n v_mul_u32_u24 v{vT}, 3, v0")
            e(f"s_movk_i32 s55, 640\n v_cmp_gt_u32 s[56:57], s55, v{vT}\n s_movk_i32 s55, 639\n v_cmp_gt_u32 s[58:59], s55, v{vT}")
            e(f"s_mul_i32 s55, {SB}, 1280\n v_lshl_add_u32 v{vT}, v{vT}, 1, s55\n v_mov_b32 v{vT+1}, 0x7ffffff0")
            e(f"v_cndmask_b32 v{vO0}, v{vT+1}, v{vT}, s[56:57]\n v_cndmask_b32 v{vO1}, v{vT+1}, v{vT}, s[58:59]")
            e(f"s_lshl_b32 s55, {SW}, 3\n v_mov_b32 v{vFW}, s55\n v_mov_b32 v{vZ}, 0")
            e(f"s_lshl_b32 s55, {SB}, 15\n s_add_u32 s55, s55, {WS_ACC}\n s_add_u32 s44, s32, s55\n s_addc_u32 s45, s33, 0\n s_mov_b32 s46, {P.R*REP_STRIDE}")
            e("s_mov_b32 s48, s28\n s_mov_b32 s49, s29\n s_mov_b32 s50, 2560")
    assert st["nwo"] == 20 and st["nk"] == 128, st
    def guarded(text):
        if not P.DRY: e(text); return
        l = g.label("Lg"); e(f"s_cbranch_execz {l}"); e(text); e(f"{l}:")
    oacc = lambda t: vTB+4*t if t < 4 else vB+4
    if P.DIAG == 5: e('s_memtime s[72:73]')
    if not P.XTAIL: e("s_branch Ldone")
    e("s_nop 6")
    e("Ltail:")
    e(f"s_mov_b32 exec_hi, 0\n ds_write_b128 v{vOPW}, {vr(vACC,4)} offset:{L_QP}\n s_mov_b64 exec, -1")
    wow = ""
    if ("wo", 19) in g.fifo:
        wow = f"s_waitcnt vmcnt({len(g.fifo) - 1 - g.fifo.index(('wo', 19))})\n"
    e(wow + "s_waitcnt lgkmcnt(0)\n s_barrier")
    stamp(g, 4, 4)
    e(f"ds_read2_b32 {vr(vT,2)}, v{vOPR} offset0:0 offset1:128\n ds_read_b64 {vr(vT+2,2)}, v{vML} offset:{L_F}")
    e(f"s_waitcnt lgkmcnt(0)\n v_mul_f32 v{vT}, v{vT}, v{vT+2}\n v_fmac_f32 v{vT}, v{vT+1}, v{vT+3}\n s_nop 1")
    e(f"v_add_f32_dpp v{vT}, v{vT}, v{vT} row_ror:4 {DPP}\n s_nop 1\n v_add_f32_dpp v{vT}, v{vT}, v{vT} row_ror:8 {DPP}")
    e(f"v_cvt_pk_bf16_f32 v{vT}, v{vT}, v{vT}\n s_nop 1")
    for ii in range(4):
        for t in range(5): rowmac(oacc(t), vT, ii, vWB+4*(5*ii+t), build=(t == 0), first=(ii == 0))
    stamp(g, 5, 4)
    e("s_nop 3\n s_mov_b32 exec_hi, 0")
    for t in range(5): e(f"ds_write_b128 v{vOUW}, {vr(oacc(t),4)} offset:{L_OUTP + t*512}")
    e("s_mov_b64 exec, -1\n s_waitcnt lgkmcnt(0)\n s_barrier")
    stamp(g, 6, 4)
    if P.DIAG == 4: e("s_waitcnt lgkmcnt(0)")
    base64 = L_OUTP // 256
    GA = vT
    for k in range(2):
        for p in range(4): e(f"ds_read2st64_b32 {vr(GA+8*k+2*p,2)}, v{vB+k} offset0:{base64+20*p} offset1:{base64+20*p+10}")
    for k in range(2):
        r = GA+8*k
        e(f"s_waitcnt lgkmcnt({4-4*k})")
        e(f"v_add_f32 v{r}, v{r}, v{r+1}\n v_add_f32 v{r+2}, v{r+2}, v{r+3}\n v_add_f32 v{r+4}, v{r+4}, v{r+5}\n v_add_f32 v{r+6}, v{r+6}, v{r+7}")
        e(f"v_add_f32 v{r}, v{r}, v{r+2}\n v_add_f32 v{r+4}, v{r+4}, v{r+6}\n v_add_f32 v{r}, v{r}, v{r+4}")
        if k == 1: e(f"v_cndmask_b32 v{r}, v{r}, 0, s[6:7]")
        e(f"v_cndmask_b32 v{r}, v{r}, 1.0, s[4:5]")
        e(f"buffer_atomic_add_f32 v{r}, v{vB+2+k}, s[40:43], 0 offen {P.APOL}")
    stamp(g, 12)
    e(f"s_cmp_eq_u32 {SFIN}, 0\n s_cbranch_scc1 Ldone\n s_cmp_ge_u32 {SW}, 4\n s_cbranch_scc1 Lepoch")
    vPA, vO0, vO1, vFW, vZ = vMISC+2, vMISC+3, vMISC+4, vMISC+5, vMISC+6
    PL = vWB
    H, N, Y = vT, vT+4, vT+8
    if P.DIAG == 4: e("s_mov_b32 s94, 0\nLagain:")
    def tree(dst, regs):
        regs = list(regs)
        while len(regs) > 2:
            for a in range(0, len(regs) - 1, 2): e(f"v_add_f32 v{regs[a]}, v{regs[a]}, v{regs[a+1]}")
            regs = regs[0::2]
        e(f"v_add_f32 v{dst}, v{regs[0]}, v{regs[1]}" if len(regs) == 2 else f"v_mov_b32 v{dst}, v{regs[0]}")
    def pissue(B): return "\n".join(f"s_movk_i32 s55, {r*REP_STRIDE}\n buffer_load_dwordx4 {vr(B+8*r,4)}, v{vPA}, s[44:47], s55 offen {P.PPOL}\n buffer_load_dwordx4 {vr(B+8*r+4,4)}, v{vZ}, s[44:47], s55 offen {P.PPOL}" for r in range(P.R))
    def pcheck(B):
        cs = [B+4*k+3 for k in range(2*P.R)]
        e(f"v_min_f32 v{Y}, v{cs[0]}, v{cs[1]}")
        for k in range(2, len(cs), 2): e(f"v_min3_f32 v{Y}, v{cs[k]}, v{cs[k+1]}, v{Y}")
        e(f"v_cmp_gt_f32 vcc, {f2u(128.0/P.R):#x}, v{Y}")
        for k in range(3): tree(H+k, [B+8*r+k for r in range(P.R)])
        tree(H+3, [B+8*r+4 for r in range(P.R)])
        e("s_cbranch_vccz Lpdone")
    e(f"Lfinal:\n s_mov_b32 s3, {SPIN:#x}")
    if P.PPOLL:
        PB = vR
        e(pissue(PL)); e(f"s_sleep {P.PPOLL}"); e(pissue(PB))
        e(f"Lpoll:\n s_waitcnt vmcnt({2*P.R})"); pcheck(PL); e(pissue(PL))
        e(f"s_waitcnt vmcnt({2*P.R})"); pcheck(PB); e(pissue(PB))
    else:
        e("Lpoll:"); guarded(pissue(PL) + "\n s_waitcnt vmcnt(0)"); pcheck(PL)
    e("s_sub_u32 s3, s3, 1\n s_cbranch_scc0 Lpoll\n Lpdone:")
    if P.DIAG == 4: e("s_mov_b64 s[78:79], s[88:89]\n s_mov_b64 s[80:81], s[82:83]")
    stamp(g, 13)
    bf16r_n(g, [H, H+1, H+2])
    for k in range(4): e(f"v_add_f32 v{H+k}, v{H+k}, v{vXF+k}")
    bf16r_n(g, [H, H+1, H+2])
    def ln_block(src, dst, piv, slot):
        s1, s2 = vT+12, vT+13; Z = vWB+64
        for k in range(3): e(f"v_sub_f32 v{Y+k}, v{src+k}, v{piv}")
        e(f"v_cndmask_b32 v{Y}, 0, v{Y}, s[56:57]\n v_cndmask_b32 v{Y+1}, 0, v{Y+1}, s[58:59]\n v_cndmask_b32 v{Y+2}, 0, v{Y+2}, s[58:59]")
        e(f"v_add_f32 v{s1}, v{Y}, v{Y+1}\n v_mul_f32 v{s2}, v{Y}, v{Y}\n v_fmac_f32 v{s2}, v{Y+1}, v{Y+1}\n v_add_f32 v{s1}, v{s1}, v{Y+2}\n v_fmac_f32 v{s2}, v{Y+2}, v{Y+2}\n s_nop 0")
        wave_reduce(g, "v_add_f32", [s1, s2])
        g.L.pop()
        e(f"s_mov_b32 exec_lo, 0\n s_and_b32 exec_hi, {FULLHI}, 0x80000000\n ds_write_b64 v{vFW}, {vr(s1,2)} offset:{L_FIN + slot*32}\n s_mov_b64 exec, {FULL}")
        guarded("s_waitcnt lgkmcnt(0)\n s_barrier")
        e(f"ds_read_b128 {vr(Z,4)}, v{vZ} offset:{L_FIN + slot*32}\n ds_read_b128 {vr(Z+4,4)}, v{vZ} offset:{L_FIN + slot*32 + 16}\n s_waitcnt lgkmcnt(0)")
        e(f"v_pk_add_f32 {vr(Z,2)}, {vr(Z,2)}, {vr(Z+2,2)}\n v_pk_add_f32 {vr(Z+4,2)}, {vr(Z+4,2)}, {vr(Z+6,2)}\n v_pk_add_f32 {vr(Z,2)}, {vr(Z,2)}, {vr(Z+4,2)}")
        e(f"v_mul_f32 v{Y}, {f2u(1.0/640):#x}, v{Z}\n v_mul_f32 v{Y+1}, {f2u(1.0/640):#x}, v{Z+1}")
        e(f"v_fma_f32 v{Y+1}, -v{Y}, v{Y}, v{Y+1}\n v_add_f32 v{Y}, v{Y}, v{piv}\n v_max_f32 v{Y+1}, 0, v{Y+1}\n v_mov_b32 v{Y+2}, v{Y}")
        bf16r_n(g, [Y+1, Y])
        e(f"v_add_f32 v{Y+1}, {f2u(1e-5):#x}, v{Y+1}")
        for k in range(3): e(f"v_sub_f32 v{dst+k}, v{src+k}, v{Y}")
        bf16r(g, Y+1, Y+1)
        e(f"v_sqrt_f32 v{Y+1}, v{Y+1}")
        bf16r_n(g, [dst, dst+1, dst+2])
        bf16r(g, Y+1, Y+1)
        e(f"v_rcp_f32 v{Y+1}, v{Y+1}\n v_sub_f32 v{Y+2}, v{Y+2}, v{Y}")
        for k in range(3): e(f"v_mul_f32 v{dst+k}, v{dst+k}, v{Y+1}")
        e(f"v_mul_f32 v{dst+3}, v{Y+2}, v{Y+1}")
        bf16r_n(g, [dst, dst+1, dst+2])
    ln_block(H, N, H+3, 0)
    N2 = vWB+72
    ln_block(N, N2, N+3, 1)
    I = vT+8
    for k in range(3): e(f"v_bfe_u32 v{I+k}, v{N2+k}, 16, 15")
    for k in range(3): e(f"v_subrev_u32 v{I+k}, {EMIN<<7}, v{I+k}\n v_ashrrev_i32 v{N+k}, 31, v{N2+k}")
    e(f"v_max3_u32 v{vT+12}, v{I}, v{I+1}, v{I+2}\n s_movk_i32 s55, 3071")
    for k in range(3): e(f"v_min_u32 v{I+k}, s55, v{I+k}\n v_and_b32 v{N+k}, 3072, v{N+k}")
    e(f"v_cmp_lt_u32 vcc, s55, v{vT+12}" if P.XLIM == 3071 else f"v_cmp_lt_u32 vcc, {P.XLIM}, v{vT+12}")
    for k in range(3): e(f"v_add_u32 v{I+k}, v{I+k}, v{N+k}")
    for k in range(3): e(f"v_and_b32 v{N+k}, 2047, v{I+k}\n v_lshrrev_b32 v{I+k}, 10, v{I+k}")
    for k in range(3): e(f"v_and_b32 v{I+k}, 6, v{I+k}")
    for k in range(3): e(f"v_lshl_add_u32 v{I+k}, v{N+k}, 3, v{I+k}")
    for k in range(3): e(f"ds_read_u16 v{I+k}, v{I+k} offset:{L_TAB}")
    e("s_and_b64 vcc, vcc, s[56:57]\n s_cbranch_scc1 Lslow" if P.XTAB and P.XWO == 1 and P.XCOMP and P.XML == 1 and P.XQ in (1,4,5) else "")
    e("s_waitcnt lgkmcnt(0)\n Lback:")
    for k in range(3): e(f"v_lshlrev_b32 v{I+k}, 16, v{I+k}")
    for k in range(3): e(f"v_add_f32 v{I+k}, v{I+k}, v{H+k}")
    for k in range(3): e(f"v_cvt_pk_bf16_f32 v{I+k}, v{I+k}, v{I+k}")
    guarded(f"buffer_store_short v{I}, v{vO0}, s[48:51], 0 offen\n buffer_store_short v{I+1}, v{vO1}, s[48:51], 0 offen offset:2\n buffer_store_short v{I+2}, v{vO1}, s[48:51], 0 offen offset:4")
    if P.DIAG == 4:
        stamp(g, 10); e("s_waitcnt lgkmcnt(0)\n s_add_u32 s94, s94, 1\n s_cmp_lt_u32 s94, 2\n s_cbranch_scc1 Lagain")
    if P.DRY: e("s_cbranch_execz Ldryret")
    e("s_branch Ldone\n Lepoch:")
    g.c("past the tail barriers every workgroup's tag has been seen, so every workgroup has read the epoch word: advance it")
    e(f"s_cmp_lg_u32 s2, {FINAL_IDS[0]}\n s_cbranch_scc1 Ldone\n s_cmp_lg_u32 {SW}, 4\n s_cbranch_scc1 Ldone")
    e(f"v_mov_b32 v{vT}, {ST}\n s_mov_b64 exec, 1\n global_store_dword v{vZ}, v{vT}, {sWS} offset:{WS_E} sc1\n s_mov_b64 exec, -1")
    e("Ldone:")
    if P.DIAG:
        stamp(g, 14)
        e(f"s_lshl_b32 s55, s2, 3\n s_add_u32 s55, s55, {SW}\n s_lshl_b32 s55, s55, 6\n s_add_u32 s55, s55, {WS_DIAG}\n s_getreg_b32 s3, hwreg(HW_REG_XCC_ID)\n s_waitcnt vmcnt(0) lgkmcnt(0)")
        e(f"v_mov_b32 v{vT}, s55\n s_mov_b64 exec, 1")
        for k in range(15): e(f"v_mov_b32 v{vR+k}, s{62+2*k}")
        e(f"v_mov_b32 v{vR+15}, s3")
        for k in range(4): e(f"global_store_dwordx4 v{vT}, {vr(vR+4*k,4)}, {sWS} offset:{16*k}")
    e("Lend:\n s_endpgm")
    SV = vR
    e("Lslow:\n s_waitcnt vmcnt(0) lgkmcnt(0)\n s_mov_b64 s[52:53], vcc")
    for k in range(16): e(f"v_mov_b32 v{SV+k}, v{vT+k}")
    e("Lslow1:\n s_ff1_i32_b64 s55, s[52:53]\n s_bitset0_b64 s[52:53], s55\n s_mov_b32 m0, s55\n s_nop 1")
    for k in range(3): e(f"v_readlane_b32 s{56+k}, v{N2+k}, m0")
    e(f"v_mov_b32 v{vTA}, 0\n v_mov_b32 v{vTA+1}, 0\n v_mov_b32 v{vTA+2}, 0\n v_lshlrev_b32 v{vTL}, 2, v{vLANE}")
    e("s_mov_b32 s3, 14\n s_call_b64 s[30:31], Ltab")
    wave_reduce(g, "v_add_f32", [vTA, vTA+1, vTA+2])
    tab_finish(g, vTA, vT+10, vB2)
    e(f"s_nop 0\n v_readlane_b32 s56, v{vT+10}, 63\n v_readlane_b32 s58, v{vT+12}, 63\n s_nop 3\n s_lshr_b32 s57, s56, 16\n s_and_b32 s56, s56, 0xffff\n s_and_b32 s58, s58, 0xffff")
    for k in range(3): e(f"v_writelane_b32 v{SV+8+k}, s{56+k}, m0")
    e("s_cmp_lg_u64 s[52:53], 0\n s_cbranch_scc1 Lslow1")
    for k in range(16): e(f"v_mov_b32 v{vT+k}, v{SV+k}")
    e("s_branch Lback")
    w1, b1, w2, wl, wh, bl, bh, cc = vT, vT+1, vT+2, vT+3, vT+13, vT+4, vT+5, vT+6
    K0 = (2/3.141592653589793)**0.5; C1 = -2*K0*LOG2E; C3 = C1*0.044715
    e("Ltab:")
    e(f"ds_read_b32 v{w1}, v{vTL} offset:{L_MW}\n ds_read_b32 v{b1}, v{vTL} offset:{L_MW+4096}\n ds_read_b32 v{w2}, v{vTL} offset:{L_MW+8192}")
    e(f"v_add_u32 v{vTL}, 256, v{vTL}\n v_mov_b32 v{cc+1}, {f2u(C1):#x}\n v_mov_b32 v{cc}, {f2u(C3):#x}\n s_waitcnt lgkmcnt(0)")
    e(f"v_lshlrev_b32 v{wl}, 16, v{w1}\n v_and_b32 v{wh}, 0xffff0000, v{w1}\n v_lshlrev_b32 v{bl}, 16, v{b1}\n v_and_b32 v{bh}, 0xffff0000, v{b1}")
    U, Z_, pk = vT+8, vT+10, vT+12
    for k in range(3):
        e(f"v_mul_f32 v{U}, s{56+k}, v{wl}\n v_mul_f32 v{U+1}, s{56+k}, v{wh}\n v_cvt_pk_bf16_f32 v{U}, 0, v{U}\n v_cvt_pk_bf16_f32 v{U+1}, 0, v{U+1}")
        e(f"v_pk_add_f32 {vr(U,2)}, {vr(U,2)}, {vr(bl,2)}\n v_cvt_pk_bf16_f32 v{U}, 0, v{U}\n v_cvt_pk_bf16_f32 v{U+1}, 0, v{U+1}")
        e(f"v_pk_mul_f32 {vr(Z_,2)}, {vr(U,2)}, {vr(U,2)}\n v_fma_f32 v{Z_}, v{Z_}, v{cc}, v{cc+1}\n v_fma_f32 v{Z_+1}, v{Z_+1}, v{cc}, v{cc+1}")
        e(f"v_pk_mul_f32 {vr(Z_,2)}, {vr(Z_,2)}, {vr(U,2)}\n v_exp_f32 v{Z_}, v{Z_}\n v_exp_f32 v{Z_+1}, v{Z_+1}\n s_nop 0")
        e(f"v_add_f32 v{Z_}, 1.0, v{Z_}\n v_add_f32 v{Z_+1}, 1.0, v{Z_+1}\n v_rcp_f32 v{Z_}, v{Z_}\n v_rcp_f32 v{Z_+1}, v{Z_+1}\n s_nop 0")
        e(f"v_pk_mul_f32 {vr(Z_,2)}, {vr(Z_,2)}, {vr(U,2)}\n v_cvt_pk_bf16_f32 v{pk}, v{Z_}, v{Z_+1}\n v_dot2_f32_bf16 v{vTA+k}, v{pk}, v{w2}, v{vTA+k}")
    e("s_sub_u32 s3, s3, 1\n s_cmp_lg_u32 s3, 0\n s_cbranch_scc1 Ltab\n s_nop 2\n s_setpc_b64 s[30:31]")
    return g

HEADER = open("cdna_kernels/" + NAME + ".s.ref").read().split("; Override launch")[0]

DOC = """;
; One launch, 256 workgroups x 8 waves (one per CU). Workgroup = (batch, head, quarter of the keys).
;  1. q: workgroup id computes 80 rows of LN(x) @ wq for head id>>3 (both batches, one MFMA per 4 rows) and hands the
;     partial sums to the 8 workgroups of that head; K loads are already streaming meanwhile.
;  4. (o partial) @ wo from registers, added into counted f32 accumulators; one workgroup per batch finishes:
;  Hand-over words carry a tag derived from the epoch word in d_ws, which only tells this launch's words from older ones.
"""

def emit():
    g = gen()
    nv = (g.nv + 7)//8*8
    out = HEADER + f"; @launch grid=(256,1,1) block=(512,1,1) lds={LDS_BYTES}\n"
    out += DOC
    out += '.amdgcn_target "amdgcn-amd-amdhsa--gfx950"\n.text\n'
    out += f".globl {KN}\n.p2align 8\n.type {KN},@function\n" + "\n".join(g.L) + "\n"
    out += f""".section .rodata,"a"
.p2align 6
.amdhsa_kernel {KN}
  .amdhsa_next_free_vgpr {nv}
  .amdhsa_next_free_sgpr 96
  .amdhsa_accum_offset {nv}
  .amdhsa_group_segment_fixed_size 0
  .amdhsa_kernarg_size 104
  .amdhsa_user_sgpr_count 2
  .amdhsa_user_sgpr_kernarg_segment_ptr 1
  .amdhsa_system_sgpr_workgroup_id_x 1
  .amdhsa_float_denorm_mode_32 3
.end_amdhsa_kernel
"""
    return out, g

if __name__ == "__main__":
    ap = argparse.ArgumentParser()
    ap.add_argument("-o", default="cdna_kernels/" + NAME + ".s")
    ap.add_argument("set", nargs="*")
    a = ap.parse_args()
    for kv in a.set:
        k, v = kv.split("=", 1); old = getattr(P, k)
        setattr(P, k, v.replace("_", " ") if isinstance(old, str) else int(v))
    out, g = emit()
    open(a.o, "w").write(out)
    print("vgprs", g.nv, "lines", len(g.L))
```

```python
import sys, struct, argparse

NAME = "sequential_preLN__mha_block_cached__mixer_token_mlp__decode"
KN = NAME + "_kernel"
def f2u(x): return struct.unpack("<I", struct.pack("<f", x))[0]

class P:
    D = 20
    NPRO = 40
    W = 6
    WEND = 5
    ENDAT = 136
    WPRO = 7
    LAG = 16
    CU_N = 1
    CU_D = 2
    PRE = 4
    STRIDE = 5
    ROT = 8
    ROTJ = 16
    ROTX = 6
    R = 4
    POL = "nt"
    K0 = 4
    KFIRST = 12
    KX1 = 0
    KX2 = 4
    KX3 = 8
    QPOLL_AT = 29
    QPOLL_USE = 35
    WO_START = 48
    WO_EVERY = 2
    TABK0 = 40
    TABKE = 6
    TPRE = 1
    TAB_AT = 48
    TAB_USE = 72
    POLL_AT = 80
    POLL_USE = 104
    DIAG = 0
    XLIM = 3071
    XMM = 0

WS_E, WS_ZF, WS_ML, WS_TAB, WS_ACC, WS_QG, WS_DIAG = 0x0, 0x1000, 0x2000, 0x10000, 0x20000, 0x40000, 0x100000
REP_STRIDE, NGRAN = 3584, 214
L_QP, L_MW, L_Q1, L_OUTP, L_TAB, L_FIN = 0, 4096, 16384, 16384, 36864, 53248
L_F = L_FIN + 128
L_AGG = L_FIN + 256
LDS_BYTES = 57344
EMIN = 108
LOG2E = 1.4426950408889634
FINAL_IDS = (0, 34)
DPP = "row_mask:0xf bank_mask:0xf"
SPIN = 0x40000
NL = 128

class G:
    def __init__(s): s.L = []; s.fifo = []; s.lab = 0; s.nv = 0
    def e(s, t):
        for x in t.split("\n"):
            x = x.strip()
            if x: s.L.append(("    " if not x.endswith(":") else "") + x)
    def c(s, t): s.L.append("    ; " + t)
    def label(s, p="L"): s.lab += 1; return f"{p}{s.lab}"
    def v(s, n=1, align=1):
        s.nv = (s.nv + align - 1)//align*align
        r = s.nv; s.nv += n; return r
    def vm(s, text, tag):
        s.e(text); s.fifo.append(tag); assert len(s.fifo) <= 63
    def wait(s, tag):
        if tag not in s.fifo: return
        i = s.fifo.index(tag); n = len(s.fifo) - 1 - i
        s.e(f"s_waitcnt vmcnt({n})"); del s.fifo[:i+1]
    def cap(s, W):
        kv = [t for t in s.fifo if t[0] == "kv"]
        if len(kv) >= W: s.wait(kv[-W])

def vr(r, n): return f"v[{r}:{r+n-1}]"
def ar(r, n): return f"a[{r}:{r+n-1}]"

def wave_reduce(g, op, regs, nsteps=6):
    steps = [f"row_ror:8 {DPP}", f"row_ror:4 {DPP}", f"row_ror:2 {DPP}", f"row_ror:1 {DPP}",
             "row_bcast:15 row_mask:0xa bank_mask:0xf", "row_bcast:31 row_mask:0xc bank_mask:0xf"]
    for st in steps[:nsteps]:
        for r in regs: g.e(f"{op}_dpp v{r}, v{r}, v{r} {st}")
        pad = 2 - (len(regs) - 1)
        if pad > 0: g.e(f"s_nop {pad-1}")

def bf16r(g, d, s_): g.e(f"v_cvt_pk_bf16_f32 v{d}, 0, v{s_}")
def bf16r_n(g, regs):
    for r in regs: bf16r(g, r, r)

def stamp(g, k, mode=0):
    if P.DIAG and (mode == 0 or mode == P.DIAG): g.e(f"s_memrealtime s[{66+2*k}:{67+2*k}]")

def tab_finish(g, src, dst, vB2):
    bf16r_n(g, [src, src+1, src+2])
    for k in range(3): g.e(f"v_add_f32 v{src+k}, v{src+k}, v{vB2}")
    g.e(f"v_cvt_pk_bf16_f32 v{dst}, v{src}, v{src+1}\n v_cvt_pk_bf16_f32 v{dst+2}, v{src+2}, v{src+2}")

def gen():
    g = G(); e = g.e
    D = P.D; NX = P.NPRO - D; assert NX <= 20
    g.v(); vLANE = g.v(); vL16 = g.v(); vOFF = g.v()
    vMK = g.v(4); vA = g.v(8, 2); vQ = g.v(4, 2); vS = g.v(8, 2); vACC = g.v(4, 2)
    vB = g.v(8, 2); vT = g.v(16, 2); vML = g.v(8, 2); vMISC = g.v(8, 2); vGA = g.v(8)
    vTA = g.v(6); vTL = g.v(); vB2 = g.v(); vXF = g.v(4); vWOO = g.v(); vDT = g.v(2)
    vR = g.v(4*D, 2); vX = g.v(80, 2)
    def ring(i):
        if i < D: return vR + 4*i
        if i < D + NX: return vX + 4*(i - D)
        return vR + 4*((i - D - NX) % D)
    def slot_free_after(i):
        if i < D + NX: return -1
        return i - D - NX if i - D - NX < D else i - D
    sX, sK, sV, sWO, sB2, sWS = "s[8:9]", "s[10:11]", "s[12:13]", "s[16:17]", "s[26:27]", "s[32:33]"
    SW, SH, SB, SS, ST, SFIN = "s34", "s35", "s36", "s37", "s38", "s39"
    vG, vC = vMISC, vMISC+1
    st = {"nk": 0, "nwo": 0, "ab": 0, "tab": 14}
    def kv_issue():
        i = st["nk"]; st["nk"] += 1
        g.vm(f"global_load_dwordx4 {vr(ring(i),4)}, v{vOFF}, {sK if i < NL else sV} nt", ("kv", i))
        e(f"v_add_u32 v{vOFF}, {P.STRIDE*1024}, v{vOFF}\n v_and_b32 v{vOFF}, {NL*1024-1:#x}, v{vOFF}")
    def after_consume(n):
        if st["nk"] < 2*NL and slot_free_after(st["nk"]) <= n and st["nk"] <= n + max(P.LAG, P.NPRO - n*P.CU_N//P.CU_D):
            g.cap(P.W if st["nk"] < P.ENDAT else P.WEND); kv_issue()
        if n >= P.WO_START and (n - P.WO_START) % P.WO_EVERY == 0 and st["nwo"] < 40:
            k = st["nwo"]; st["nwo"] += 1; t = k % 5
            g.vm(f"global_load_dwordx4 {ar(4*k,4)}, v{vWOO}, {sWO} offset:{256*t} {P.POL}", ("wo", k))
            if t == 4: e(f"v_add_u32 v{vWOO}, {4*1280}, v{vWOO}")
    def pre_issue(n, cnt):
        for _ in range(cnt):
            if st["nk"] < 2*NL and slot_free_after(st["nk"]) <= n: kv_issue()
    def rowmac(acc, src, lane, data, build=True, first=False):
        if build:
            st["ab"] ^= 1; a = vA + 4*st["ab"]
            for r in range(4): e(f"v_and_b32_dpp v{a+r}, v{src}, v{vMK+r} row_newbcast:{lane} {DPP}")
            e("s_nop 1")
        a = vA + 4*st["ab"]
        e(f"v_mfma_f32_16x16x32_bf16 {vr(acc,4)}, {vr(a,4)}, {data}, {'0' if first else vr(acc,4)}")
    def tag_poll(regs, reload, sleep):
        lr = g.label("Lr"); lo = g.label("Lo")
        e(f"s_mov_b32 s3, {SPIN:#x}\n {lr}:\n v_xor_b32 v{vT}, {ST}, v{regs[0]}")
        for r in regs[1:]: e(f"v_xor_b32 v{vT+1}, {ST}, v{r}\n v_or_b32 v{vT}, v{vT}, v{vT+1}")
        e(f"v_cmp_ne_u32 vcc, 0, v{vT}\n s_cbranch_vccz {lo}\n s_sub_u32 s3, s3, 1\n s_cbranch_scc1 {lo}\n s_sleep {sleep}")
        e(reload); e(f"s_waitcnt vmcnt(0)\n s_branch {lr}\n {lo}:")

    e(f"{KN}:\n s_cmp_ge_u32 s2, 256\n s_cbranch_scc1 Lend")
    stamp(g, 0)
    e("s_load_dwordx16 s[8:23], s[0:1], 0\n s_load_dwordx8 s[24:31], s[0:1], 64\n s_load_dwordx2 s[32:33], s[0:1], 96")
    e(f"v_lshrrev_b32 v{vT}, 6, v0\n v_and_b32 v{vLANE}, 63, v0\n v_readfirstlane_b32 {SW}, v{vT}\n v_lshlrev_b32 v{vL16}, 4, v{vLANE}")
    g.c("id = 8j+x : head = 4x + (j>>3), batch = (j>>2)&1, split = j&3")
    e(f"s_and_b32 s52, s2, 7\n s_lshl_b32 s52, s52, 2\n s_lshr_b32 s53, s2, 6\n s_add_u32 {SH}, s52, s53")
    e(f"s_bfe_u32 {SB}, s2, 0x10005\n s_bfe_u32 {SS}, s2, 0x20003")
    e(f"s_lshl_b32 s52, {SB}, 5\n s_add_u32 s52, s52, {SH}\n s_lshl_b32 s54, s52, 2\n s_add_u32 s54, s54, {SS}")
    e(f"s_lshl_b32 s53, s54, 19\n s_lshl_b32 s55, {SW}, 17\n s_add_u32 s53, s53, s55")
    e(f"s_mul_i32 s55, {SW}, {P.ROT*1024}\n s_lshr_b32 s56, s2, 3\n s_mul_i32 s56, s56, {P.ROTJ*1024}\n s_add_u32 s55, s55, s56")
    e(f"s_and_b32 s56, s2, 7\n s_mul_i32 s56, s56, {P.ROTX*1024}\n s_add_u32 s55, s55, s56\n v_add_u32 v{vOFF}, s55, v{vL16}\n v_and_b32 v{vOFF}, {NL*1024-1:#x}, v{vOFF}")
    e(f"s_mov_b32 {SFIN}, 0\n s_cmp_eq_u32 s2, {FINAL_IDS[0]}\n s_cselect_b32 {SFIN}, 1, {SFIN}\n s_cmp_eq_u32 s2, {FINAL_IDS[1]}\n s_cselect_b32 {SFIN}, 1, {SFIN}")
    e(f"v_lshrrev_b32 v{vG}, 4, v{vLANE}\n v_and_b32 v{vC}, 15, v{vLANE}")
    g.c("q work: head id>>3, rows 80*(id&7)..+80; wave w takes row quads w, w+4, .. w+16")
    vWQO, vXO, vXQ = vMISC+2, vMISC+3, vGA
    e(f"s_and_b32 s55, s2, 7\n s_mul_i32 s55, s55, 80\n s_lshl_b32 s56, {SW}, 2\n s_add_u32 s55, s55, s56\n v_add_u32 v{vWQO}, s55, v{vG}")
    e(f"v_lshrrev_b32 v{vT}, 3, v{vC}\n v_mul_u32_u24 v{vT}, 640, v{vT}\n v_add_lshl_u32 v{vXQ}, v{vT}, v{vWQO}, 1")
    e(f"v_lshlrev_b32 v{vWQO}, 13, v{vWQO}\n v_lshl_add_u32 v{vWQO}, v{vC}, 4, v{vWQO}\n s_lshr_b32 s56, s2, 3\n s_lshl_b32 s56, s56, 8\n v_add_u32 v{vWQO}, s56, v{vWQO}")
    e(f"v_lshrrev_b32 v{vT}, 5, v{vLANE}\n v_mul_u32_u24 v{vT}, 1280, v{vT}\n v_and_b32 v{vXO}, 31, v{vLANE}\n v_lshl_add_u32 v{vXO+1}, v{vXO}, 4, v{vT}\n v_lshl_add_u32 v{vXO}, v{vXO}, 3, v{vT}")
    e(f"s_mov_b32 s51, 0x20000\n s_mov_b32 s47, 0x20000\n s_mov_b32 s43, 0x20000")
    e(f"s_lshl_b32 s55, {SB}, 15\n s_add_u32 s55, s55, {WS_ACC}\n s_mov_b32 s46, {P.R*REP_STRIDE}")
    e("s_waitcnt lgkmcnt(0)")
    stamp(g, 1)
    e("s_add_u32 s10, s10, s53\n s_addc_u32 s11, s11, 0\n s_add_u32 s44, s32, s55\n s_addc_u32 s45, s33, 0")
    lz = g.label("Lnz")
    e(f"s_cmp_eq_u32 {SFIN}, 0\n s_cbranch_scc1 {lz}")
    e(f"v_mov_b32 v{vT+4}, 0\n v_mov_b32 v{vT+5}, 0\n v_mov_b32 v{vT+6}, 0\n v_mov_b32 v{vT+7}, 0\n v_lshlrev_b32 v{vT}, 4, v0")
    for k in range((P.R*REP_STRIDE + 4095)//4096):
        e(f"s_movk_i32 s55, {k*4096}\n buffer_store_dwordx4 {vr(vT+4,4)}, v{vT}, s[44:47], s55 offen sc1")
    e(f"{lz}:")
    for _ in range(P.K0): kv_issue()
    vXD, vWQ, X = vX + 28, vX + 40, vX + 60
    assert P.KFIRST + P.KX1 + P.KX2 <= D + 7
    g.vm(f"global_load_dwordx4 {vr(vXD,4)}, v{vXO+1}, {sX}", ("x", 0))
    g.vm(f"global_load_dwordx4 {vr(vXD+4,4)}, v{vXO+1}, {sX} offset:512", ("x", 1))
    g.vm(f"global_load_dwordx2 {vr(vXD+8,2)}, v{vXO}, {sX} offset:1024", ("x", 2))
    for k in range(5):
        g.vm(f"global_load_dwordx4 {vr(vWQ+4*k,4)}, v{vWQO}, s[14:15] {P.POL}", ("wq", k))
        if k < 4: e(f"v_add_u32 v{vWQO}, {16*8192:#x}, v{vWQO}")
    for k in [1, 2, 3, 4, 0]: g.vm(f"global_load_ushort v{vXQ+k}, v{vXQ}, {sX} offset:{32*k}", ("xq", k))
    while st["nk"] < P.KFIRST: kv_issue()
    e(f"s_load_dword {ST}, {sWS}, {WS_E}\n s_add_u32 s12, s12, s53\n s_addc_u32 s13, s13, 0")
    g.c("operand masks: lane (g,i) owns element i&7 of its 8-element slab")
    e(f"v_bfe_u32 v{vT}, v{vC}, 1, 2\n v_and_b32 v{vT+1}, 1, v{vC}\n v_lshlrev_b32 v{vT+1}, 4, v{vT+1}\n v_mov_b32 v{vT+2}, 0xffff\n v_lshlrev_b32 v{vT+1}, v{vT+1}, v{vT+2}")
    for r in range(4): e(f"v_cmp_eq_u32 vcc, {r}, v{vT}\n s_nop 1\n v_cndmask_b32 v{vMK+r}, 0, v{vT+1}, vcc")
    assert P.R == 4
    e(f"s_mul_i32 s55, {SS}, {REP_STRIDE}\n s_add_u32 s40, s44, s55\n s_addc_u32 s41, s45, 0\n s_mov_b32 s42, {NGRAN*16}")
    e("s_mov_b32 s4, 0\n s_mov_b32 s5, -1\n s_mov_b32 s6, 0xff00ff00\n s_mov_b32 s7, 0xff00ff00")
    e(f"s_lshl_b32 s55, {SH}, 7\n s_lshl_b32 s53, {SW}, 5\n s_add_u32 s55, s55, s53\n v_add_u32 v{vWOO}, s55, v{vG}")
    e(f"v_mul_u32_u24 v{vWOO}, 1280, v{vWOO}\n v_lshl_add_u32 v{vWOO}, v{vC}, 4, v{vWOO}")
    e(f"v_mov_b32 v{vT}, 0\n ds_write_b32 v{vT}, v{vT} offset:{L_AGG+256}")
    g.c("LN(x) statistics for both batches (lanes 0-31 batch 0, lanes 32-63 batch 1)")
    g.wait(("x", 2)); stamp(g, 4, 3)
    for _ in range(P.KX1): kv_issue()
    for k in range(10): e(f"v_lshlrev_b32 v{X+2*k}, 16, v{vXD+k}\n v_and_b32 v{X+2*k+1}, 0xffff0000, v{vXD+k}")
    e(f"v_readlane_b32 s55, v{X}, 0\n v_readlane_b32 s56, v{X}, 32\n s_nop 0\n v_mov_b32 v{vT}, s55\n v_mov_b32 v{vT+1}, s56")
    e(f"v_cndmask_b32 v{vT+2}, v{vT}, v{vT+1}, s[4:5]\n v_cndmask_b32 v{vT+3}, v{vT}, v{vT+1}, s[6:7]")
    for k in range(20): e(f"v_sub_f32 v{X+k}, v{X+k}, v{vT+2}")
    S1, S2, M_, V_ = vT+10, vT+11, vT+12, vT+13
    e(f"v_add_f32 v{S1}, v{X}, v{X+1}\n v_mul_f32 v{S2}, v{X}, v{X}\n v_fmac_f32 v{S2}, v{X+1}, v{X+1}")
    for k in range(2, 20): e(f"v_add_f32 v{S1}, v{S1}, v{X+k}\n v_fmac_f32 v{S2}, v{X+k}, v{X+k}")
    e("s_nop 1")
    wave_reduce(g, "v_add_f32", [S1, S2], 5)
    e(f"v_readlane_b32 s55, v{S1}, 31\n v_readlane_b32 s56, v{S1}, 63\n v_readlane_b32 s57, v{S2}, 31\n v_readlane_b32 s58, v{S2}, 63")
    e(f"v_mov_b32 v{vT}, s55\n v_mov_b32 v{vT+1}, s56\n v_mov_b32 v{vT+4}, s57\n v_mov_b32 v{vT+5}, s58")
    e(f"v_cndmask_b32 v{M_}, v{vT}, v{vT+1}, s[6:7]\n v_cndmask_b32 v{V_}, v{vT+4}, v{vT+5}, s[6:7]")
    e(f"v_mul_f32 v{M_}, {f2u(1.0/640):#x}, v{M_}\n v_mul_f32 v{V_}, {f2u(1.0/640):#x}, v{V_}")
    e(f"v_fma_f32 v{V_}, -v{M_}, v{M_}, v{V_}\n v_add_f32 v{M_}, v{vT+3}, v{M_}\n v_max_f32 v{V_}, 0, v{V_}")
    bf16r_n(g, [M_, V_])
    e(f"v_add_f32 v{V_}, {f2u(1e-5):#x}, v{V_}"); bf16r(g, V_, V_)
    e(f"v_sqrt_f32 v{V_}, v{V_}\n s_nop 0"); bf16r(g, V_, V_)
    e(f"v_rcp_f32 v{V_}, v{V_}\n s_nop 0")
    g.wait(("xq", 0)); stamp(g, 5, 3)
    for _ in range(P.KX2): kv_issue()
    for k in range(5):
        r = vXQ + k
        e(f"v_lshlrev_b32 v{r}, 16, v{r}\n v_sub_f32 v{r}, v{r}, v{M_}"); bf16r(g, r, r)
        e(f"v_mul_f32 v{r}, v{r}, v{V_}\n v_cvt_pk_bf16_f32 v{r}, v{r}, v{r}")
        a_ = vA + 4*(k & 1)
        for j in range(4): e(f"v_and_b32 v{a_+j}, v{r}, v{vMK+j}")
        e(f"s_nop 1\n v_mfma_f32_16x16x32_bf16 {vr(vACC,4)}, {vr(a_,4)}, {vr(vWQ+4*k,4)}, {vr(vACC,4) if k else '0'}")
    stamp(g, 2)
    e(f"s_lshl_b32 s55, {SW}, 10\n v_add_u32 v{vT}, s55, v{vL16}\n v_and_b32 v{vT+3}, 31, v{vLANE}\n v_lshrrev_b32 v{vT+2}, 5, v{vLANE}")
    e(f"s_lshl_b32 s55, {SW}, 8\n v_lshl_add_u32 v{vT+1}, v{vT+3}, 3, s55\n v_lshl_add_u32 v{vT+1}, v{vT+2}, 11, v{vT+1}\n s_nop 0")
    e(f"ds_write_b128 v{vT}, {vr(vACC,4)} offset:{L_Q1}")
    for _ in range(P.KX3): kv_issue()
    e("s_waitcnt lgkmcnt(0)\n s_barrier")
    stamp(g, 6, 3)
    e(f"s_mul_i32 {ST}, {ST}, 1664525\n s_add_u32 {ST}, {ST}, 1013904223")
    g.c("sum the four partials; every wave hands over 64 of the 256 values: QG[id>>3][batch][id&7]")
    e(f"ds_read_b64 {vr(vT+8,2)}, v{vT+1} offset:{L_Q1}\n ds_read_b64 {vr(vT+10,2)}, v{vT+1} offset:{L_Q1+1024}")
    e(f"s_lshr_b32 s55, s2, 3\n s_lshl_b32 s55, s55, 1\n s_lshr_b32 s56, {SW}, 1\n s_add_u32 s55, s55, s56\n s_lshl_b32 s55, s55, 3\n s_and_b32 s56, s2, 7\n s_add_u32 s55, s55, s56")
    e(f"s_lshl_b32 s55, s55, 10\n s_and_b32 s56, {SW}, 1\n s_lshl_b32 s56, s56, 9\n s_add_u32 s55, s55, s56\n s_add_u32 s55, s55, {WS_QG}")
    e(f"v_lshl_add_u32 v{vT+2}, v{vT+3}, 4, s55\n v_mov_b32 v{vT+5}, {ST}\n v_mov_b32 v{vT+7}, {ST}\n s_waitcnt lgkmcnt(0)")
    e(f"v_add_f32 v{vT+4}, v{vT+8}, v{vT+10}\n v_add_f32 v{vT+6}, v{vT+9}, v{vT+11}\n v_mov_b32 v{vT+8}, v{vT+4}\n v_mov_b32 v{vT+9}, v{vT+6}\n s_nop 1")
    e(f"v_permlane32_swap_b32 v{vT+4}, v{vT+8}\n v_permlane32_swap_b32 v{vT+6}, v{vT+9}\n v_add_f32 v{vT+4}, v{vT+4}, v{vT+8}\n v_add_f32 v{vT+6}, v{vT+6}, v{vT+9}")
    e("s_mov_b32 exec_hi, 0")
    g.vm(f"global_store_dwordx4 v{vT+2}, {vr(vT+4,4)}, {sWS} sc1", ("qs", 0))
    e("s_mov_b32 exec_hi, -1")
    g.c("zero-fill-done flag: the fill is older than the wq loads every wave waited for before the barrier")
    lz = g.label("Lnf")
    e(f"s_cmp_eq_u32 {SFIN}, 0\n s_cbranch_scc1 {lz}\n s_cmp_lg_u32 {SW}, 2\n s_cbranch_scc1 {lz}")
    e(f"v_mov_b32 v{vT+8}, {ST}\n v_mov_b32 v{vT+9}, {ST}\n v_mov_b32 v{vT+10}, {ST}\n v_mov_b32 v{vT+11}, {ST}")
    e(f"s_lshl_b32 s55, {SB}, 8\n s_add_u32 s55, s55, {WS_ZF}\n v_mov_b32 v{vT+12}, s55\n s_mov_b64 exec, 1")
    e(f"global_store_dwordx4 v{vT+12}, {vr(vT+8,4)}, {sWS} sc1\n s_mov_b64 exec, -1\n {lz}:")
    g.c("mixer weights: wave w stages 1KB chunk w of w1, b1, w2 (zero past 3456 B)")
    MW = [vS, vS+4, vQ]
    e(f"s_mov_b32 s50, 3456\n s_lshl_b32 s55, {SW}, 10\n v_add_u32 v{vDT}, s55, v{vL16}")
    for a, sp in enumerate([20, 22, 24]):
        e(f"s_mov_b32 s48, s{sp}\n s_mov_b32 s49, s{sp+1}")
        g.vm(f"buffer_load_dwordx4 {vr(MW[a],4)}, v{vL16}, s[48:51], s55 offen {P.POL}", ("mw", a))
    e(f"v_mov_b32 v{vB2}, 0")
    g.vm(f"global_load_ushort v{vB2}, v{vB2}, {sB2}", ("b2", 0))
    vQGO, vQLO = vMISC+2, vMISC+3
    e(f"s_lshl_b32 s55, {SH}, 1\n s_add_u32 s55, s55, {SB}\n s_lshl_b32 s55, s55, 2\n s_add_u32 s55, s55, {SW}\n s_lshl_b32 s55, s55, 11\n s_add_u32 s55, s55, {WS_QG}")
    e(f"v_add_u32 v{vQGO}, s55, v{vL16}\n s_lshl_b32 s55, {SW}, 10\n v_lshl_add_u32 v{vQLO}, v{vLANE}, 3, s55")
    g.c("table inputs of this wave: entries k*2048 + (wg*8 + 2w + u), k = 0..2, u = 0..1")
    e(f"s_lshl_b32 s55, s2, 2\n s_add_u32 s55, s55, {SW}\n s_lshl_b32 s55, s55, 1\n s_add_u32 s56, s55, {EMIN<<7}\n s_lshl_b32 s56, s56, 16")
    e(f"s_add_u32 s57, s55, {2048 + (EMIN<<7)}\n s_add_u32 s58, s55, {2048 - 3072 + (EMIN<<7) + 0x8000}")
    e(f"s_cmp_ge_u32 s55, 1024\n s_cselect_b32 s57, s58, s57\n s_lshl_b32 s57, s57, 16")
    e(f"s_add_u32 s58, s55, {4096 - 3072 + (EMIN<<7) + 0x8000}\n s_lshl_b32 s58, s58, 16")
    e("s_add_u32 s59, s56, 0x10000\n s_add_u32 s60, s57, 0x10000\n s_add_u32 s61, s58, 0x10000")
    for k in range(6): e(f"v_mov_b32 v{vTA+k}, 0")
    e(f"v_lshlrev_b32 v{vTL}, 2, v{vLANE}")
    mw_at = st["nk"] + 3
    qload = [f"global_load_dwordx4 {vr(vML+4*u,4)}, v{vQGO}, {sWS} offset:{1024*u} sc1" for u in range(2)]
    while st["nk"] < P.NPRO:
        if st["nk"] <= P.QPOLL_USE: g.cap(P.WPRO)
        kv_issue()
        if st["nk"] == mw_at:
            g.wait(("b2", 0))
            e(f"v_lshlrev_b32 v{vB2}, 16, v{vB2}")
            for a in range(3): e(f"ds_write_b128 v{vDT}, {vr(MW[a],4)} offset:{L_MW + 4096*a}")
        if st["nk"] == P.QPOLL_AT:
            for u in range(2): g.vm(qload[u], ("qg", u))
        if st["nk"] == P.QPOLL_USE:
            g.wait(("qg", 1)); stamp(g, 8, 3)
            tag_poll([vML+1, vML+3, vML+5, vML+7], "\n".join(qload), 1)
            stamp(g, 9, 3)
            for u in range(2): e(f"v_mov_b32 v{vML+4*u+1}, v{vML+4*u+2}\n ds_write_b64 v{vQLO}, {vr(vML+4*u,2)} offset:{L_QP + 512*u}")
    assert mw_at <= P.NPRO and mw_at - 3 < P.QPOLL_AT < P.QPOLL_USE <= P.NPRO
    stamp(g, 10, 3)
    e(f"v_lshlrev_b32 v{vDT}, 4, v{vC}\n s_waitcnt lgkmcnt(0)\n s_barrier")
    for rnd in range(4):
        for w in range(2):
            o = L_QP + (2*rnd + w)*512
            e(f"ds_read_b128 {vr(vT+8*w,4)}, v{vDT} offset:{o}\n ds_read_b128 {vr(vT+8*w+4,4)}, v{vDT} offset:{o + 256}")
        for w in range(2):
            e(f"s_waitcnt lgkmcnt({2-2*w})")
            for k in range(8): e(f"v_mov_b32 v{vB+k}, v{vT+k}" if rnd == 0 and w == 0 else f"v_add_f32 v{vB+k}, v{vB+k}, v{vT+8*w+k}")
    for k in range(4): e(f"v_cvt_pk_bf16_f32 v{vQ+k}, v{vB+2*k}, v{vB+2*k+1}")
    e("s_mov_b32 s4, 0xcccccccc\n s_mov_b32 s5, 0xcccccccc\n s_mov_b32 s6, 0xaaaaaaaa\n s_mov_b32 s7, 0xaaaaaaaa")
    stamp(g, 3)
    def stepA(i, t): e(f"v_add_f32_dpp v{vB + (i & 7)}, v{t}, v{t} row_mirror row_mask:0xf bank_mask:{'0x3' if i < 8 else '0xc'}")
    for G_ in range(8):
        pend = None
        for i in range(16):
            n = 16*G_ + i
            g.wait(("kv", n))
            r = ring(n); t = vDT + (i & 1)
            e(f"v_dot2_f32_bf16 v{t}, v{r}, v{vQ}, 0")
            for k in range(1, 4): e(f"v_dot2_f32_bf16 v{t}, v{r+k}, v{vQ+k}, v{t}")
            if pend is not None: stepA(*pend)
            pend = (i, t)
            after_consume(n)
            if st["tab"] and n >= P.TABK0 and (n - P.TABK0) % P.TABKE == 0:
                pre_issue(n, P.TPRE)
                st["tab"] -= 1; e("s_mov_b32 s3, 1\n s_call_b64 s[30:31], Ltab")
        if G_ == 7: pre_issue(n, P.PRE)
        e("s_nop 2"); stepA(*pend); e("s_nop 1")
        for u in range(4):
            e(f"v_add_f32_dpp v{vT+u}, v{vB+u}, v{vB+u} row_half_mirror row_mask:0xf bank_mask:0x5")
            e(f"v_add_f32_dpp v{vT+u}, v{vB+u+4}, v{vB+u+4} row_half_mirror row_mask:0xf bank_mask:0xa")
        e("s_nop 0")
        for u in range(4): e(f"v_add_f32_dpp v{vT+4+u}, v{vT+u}, v{vT+u} quad_perm:[2,3,0,1] {DPP}")
        e(f"v_cndmask_b32 v{vT}, v{vT+4}, v{vT+6}, s[4:5]\n v_cndmask_b32 v{vT+1}, v{vT+5}, v{vT+7}, s[4:5]\n s_nop 1")
        e(f"v_add_f32_dpp v{vT+2}, v{vT}, v{vT} quad_perm:[1,0,3,2] {DPP}\n v_add_f32_dpp v{vT+3}, v{vT+1}, v{vT+1} quad_perm:[1,0,3,2] {DPP}")
        e(f"v_cndmask_b32 v{vT}, v{vT+2}, v{vT+3}, s[6:7]")
        bf16r(g, vT, vT)
        e(f"v_mul_f32 v{vT}, {f2u(128**-0.5):#x}, v{vT}")
        bf16r(g, vS+G_, vT)
        if G_ & 1: stamp(g, 4+G_//2, 1 if G_ < 7 else 0)
    assert st["tab"] == 0
    e(f"v_max3_f32 v{vT}, v{vS}, v{vS+1}, v{vS+2}\n v_max3_f32 v{vT+1}, v{vS+3}, v{vS+4}, v{vS+5}\n v_max3_f32 v{vT}, v{vS+6}, v{vS+7}, v{vT}\n v_max_f32 v{vT}, v{vT}, v{vT+1}\n s_nop 1")
    wave_reduce(g, "v_max_f32", [vT])
    e(f"v_readlane_b32 s52, v{vT}, 63\n s_nop 1")
    for k in range(8): e(f"v_subrev_f32 v{vS+k}, s52, v{vS+k}")
    for k in range(8): e(f"v_mul_f32 v{vS+k}, {f2u(LOG2E):#x}, v{vS+k}")
    for k in range(8): e(f"v_exp_f32 v{vS+k}, v{vS+k}")
    e(f"v_add_f32 v{vT}, v{vS}, v{vS+1}\n v_add_f32 v{vT+1}, v{vS+2}, v{vS+3}\n v_add_f32 v{vT+2}, v{vS+4}, v{vS+5}\n v_add_f32 v{vT+3}, v{vS+6}, v{vS+7}")
    e(f"v_add_f32 v{vT}, v{vT}, v{vT+1}\n v_add_f32 v{vT+2}, v{vT+2}, v{vT+3}\n v_add_f32 v{vT}, v{vT}, v{vT+2}")
    for k in range(8): e(f"v_cvt_pk_bf16_f32 v{vS+k}, v{vS+k}, v{vS+k}")
    wave_reduce(g, "v_add_f32", [vT] + [vTA+k for k in range(6)])
    e(f"v_mov_b32 v{vT+4}, s52\n v_mov_b32 v{vT+5}, {ST}\n v_mov_b32 v{vT+6}, v{vT}\n v_mov_b32 v{vT+7}, {ST}")
    tab_finish(g, vTA, vT+8, vB2); tab_finish(g, vTA+3, vT+12, vB2)
    for r in (9, 11, 13, 15): e(f"v_mov_b32 v{vT+r}, {ST}")
    la = g.label("Lag")
    e(f"s_lshl_b32 s55, {SW}, 4\n v_mov_b32 v{vT}, s55\n v_lshlrev_b32 v{vT+1}, 1, v{vT}\n v_mov_b32 v{vT+2}, 1\n v_mov_b32 v{vT+3}, 0")
    e("s_mov_b32 exec_lo, 0\n s_mov_b32 exec_hi, 0x80000000")
    e(f"ds_write_b128 v{vT}, {vr(vT+4,4)} offset:{L_AGG}\n ds_write_b128 v{vT+1}, {vr(vT+8,4)} offset:{L_AGG+64}\n ds_write_b128 v{vT+1}, {vr(vT+12,4)} offset:{L_AGG+80}\n s_waitcnt lgkmcnt(0)")
    e(f"ds_add_rtn_u32 v{vT+2}, v{vT+3}, v{vT+2} offset:{L_AGG+256}\n s_mov_b64 exec, -1\n s_waitcnt lgkmcnt(0)")
    e(f"v_readlane_b32 s55, v{vT+2}, 63\n s_nop 3\n s_cmp_lg_u32 s55, 3\n s_cbranch_scc1 {la}")
    e(f"ds_read_b128 {vr(vT+4,4)}, v{vL16} offset:{L_AGG}")
    e(f"s_lshl_b32 s55, s54, 6\n s_add_u32 s55, s55, {WS_ML}\n s_lshl_b32 s53, s2, 7\n s_add_u32 s53, s53, {WS_TAB - 64}")
    e(f"v_mov_b32 v{vT+8}, s55\n v_mov_b32 v{vT+9}, s53\n v_cmp_lt_u32 vcc, 3, v{vLANE}\n s_nop 1\n v_cndmask_b32 v{vT+8}, v{vT+8}, v{vT+9}, vcc\n v_add_u32 v{vT+8}, v{vT+8}, v{vL16}")
    e(f"s_mov_b64 exec, 0xfff\n s_waitcnt lgkmcnt(0)\n global_store_dwordx4 v{vT+8}, {vr(vT+4,4)}, {sWS} sc1\n s_mov_b64 exec, -1\n {la}:")
    vMLO, vTBO, vXA = vMISC+3, vMISC+4, vMISC+5
    e(f"s_lshr_b32 s55, s54, 2\n s_lshl_b32 s55, s55, 8\n s_add_u32 s55, s55, {WS_ML}\n v_add_u32 v{vMLO}, s55, v{vL16}")
    e(f"s_lshl_b32 s55, {SB}, 8\n s_add_u32 s55, s55, {WS_ZF}\n v_mov_b32 v{vB}, s55\n v_cmp_lt_u32 vcc, 15, v{vLANE}\n s_nop 1\n v_cndmask_b32 v{vMLO}, v{vMLO}, v{vB}, vcc")
    e(f"s_add_u32 s48, s32, {WS_TAB}\n s_addc_u32 s49, s33, 0\n s_lshl_b32 s50, {SFIN}, 15\n v_lshlrev_b32 v{vTBO}, 4, v0")
    g.c("final stage x values (final workgroups only): columns 3j..3j+2, j = min(tid,213), and column 0")
    e(f"v_min_u32 v{vXA}, 213, v0\n v_mul_u32_u24 v{vXA}, 6, v{vXA}\n s_mul_i32 s55, {SB}, 1280\n v_add_u32 v{vXA}, s55, v{vXA}\n v_mov_b32 v{vXF+3}, s55")
    e(f"s_mov_b32 s44, s8\n s_mov_b32 s45, s9\n s_movk_i32 s46, 2560")
    lx = g.label("Lxf")
    e(f"s_cmp_eq_u32 {SFIN}, 0\n s_cbranch_scc1 {lx}")
    for k in range(3): e(f"buffer_load_ushort v{vXF+k}, v{vXA}, s[44:47], 0 offen offset:{2*k}")
    e(f"buffer_load_ushort v{vXF+3}, v{vXF+3}, s[44:47], 0 offen\n {lx}:")
    vFA, vOPW, vOPR, vOUW = vML+4, vML+5, vML+6, vML+7
    vPA, vO0, vO1, vFW, vZ = vMISC+2, vMISC+3, vMISC+4, vMISC+5, vMISC+6
    vTB = vX
    tl = [f"s_movk_i32 s55, {k*4096}\n buffer_load_dwordx4 {vr(vTB+4*k,4)}, v{vTBO}, s[48:51], s55 offen sc1" for k in range(8)]
    mload = f"global_load_dwordx4 {vr(vML,4)}, v{vMLO}, {sWS} sc1"
    for i in range(NL):
        n = NL + i
        g.wait(("kv", n))
        rowmac(vACC, vS + i//16, i % 16, vr(ring(n),4), first=(i == 0))
        if i % 32 == 31: stamp(g, 8 + i//32, 1 if i < 96 else 0)
        after_consume(n)
        if i == P.TAB_AT:
            ls = g.label("Ltl"); e(f"s_cmp_eq_u32 {SFIN}, 0\n s_cbranch_scc1 {ls}"); e("\n".join(tl)); e(f"{ls}:"); st["tmark"] = ("kv", st["nk"])
        if i == P.TAB_USE:
            assert st["tmark"] not in g.fifo and st["tmark"][1] < st["nk"]
            ls = g.label("Lts")
            e(f"s_cmp_eq_u32 {SFIN}, 0\n s_cbranch_scc1 {ls}")
            tag_poll([vTB+1+2*k for k in range(16)], "\n".join(tl), 2)
            e(f"v_lshlrev_b32 v{vT}, 3, v0")
            for k in range(8): e(f"v_mov_b32 v{vTB+4*k+1}, v{vTB+4*k+2}\n ds_write_b64 v{vT}, {vr(vTB+4*k,2)} offset:{L_TAB + k*2048}")
            for k in range(4): e(f"v_lshlrev_b32 v{vXF+k}, 16, v{vXF+k}")
            e(f"{ls}:")
        if i == P.POLL_AT:
            lw = g.label("Lw0"); e(f"s_cmp_lg_u32 {SW}, 0\n s_cbranch_scc1 {lw}\n {mload}\n {lw}:"); st["mark"] = ("kv", st["nk"])
        if i == P.POLL_USE:
            pre_issue(n, P.PRE)
            g.c("wave 0: true max / sum of this (batch, head) -> scale factors of the workgroup's waves")
            assert st["mark"] not in g.fifo and st["mark"][1] < st["nk"]
            lw = g.label("Lw0"); e(f"s_cmp_lg_u32 {SW}, 0\n s_cbranch_scc1 {lw}")
            tag_poll([vML+1, vML+3], mload, 2)
            e(f"s_mov_b32 exec_lo, 0xffff0000\n v_mov_b32 v{vML}, s52\n v_mov_b32 v{vML+2}, 0\n s_mov_b32 exec_lo, -1")
            e(f"v_mov_b32 v{vT}, v{vML}\n s_nop 1")
            wave_reduce(g, "v_max_f32", [vT])
            e(f"v_readlane_b32 s53, v{vT}, 63\n s_nop 1")
            e(f"v_subrev_f32 v{vML}, s53, v{vML}\n v_mul_f32 v{vML}, {f2u(LOG2E):#x}, v{vML}\n v_exp_f32 v{vML}, v{vML}\n s_nop 0\n v_mul_f32 v{vT}, v{vML}, v{vML+2}\n s_nop 1")
            wave_reduce(g, "v_add_f32", [vT])
            e(f"v_readlane_b32 s53, v{vT}, 63\n s_nop 1\n v_rcp_f32 v{vT}, s53\n s_lshl_b32 s55, {SS}, 2\n v_mul_f32 v{vML}, v{vML}, v{vT}")
            e(f"v_subrev_u32 v{vT}, s55, v{vLANE}\n v_lshlrev_b32 v{vT}, 2, v{vT}\n s_lshl_b64 exec, 15, s55")
            e(f"ds_write_b32 v{vT}, v{vML} offset:{L_F}\n s_mov_b64 exec, -1\n {lw}:")
            g.c("addresses for the tail")
            e(f"v_lshrrev_b32 v{vFA}, 3, v{vC}\n v_lshlrev_b32 v{vT+1}, 10, v{vFA}\n v_lshlrev_b32 v{vFA}, 3, v{vFA}")
            e(f"s_lshl_b32 s55, {SW}, 9\n v_add_u32 v{vOPW}, s55, v{vL16}")
            e(f"v_and_b32 v{vT}, 1, v{vC}\n v_lshl_add_u32 v{vT+1}, v{vT}, 8, v{vT+1}\n v_bfe_u32 v{vT+2}, v{vC}, 1, 2\n v_lshl_add_u32 v{vT+1}, v{vT+2}, 4, v{vT+1}")
            e(f"v_lshl_add_u32 v{vT+1}, v{vG}, 2, v{vT+1}\n s_lshl_b32 s55, {SW}, 6\n v_add_u32 v{vOPR}, s55, v{vT+1}")
            e(f"s_mul_i32 s55, {SW}, 2560\n v_lshlrev_b32 v{vT}, 5, v{vC}\n v_lshl_add_u32 v{vT}, v{vG}, 4, v{vT}\n v_add_u32 v{vOUW}, s55, v{vT}")
            for k in range(4):
                e(f"v_add_u32 v{vT}, {256*k}, v0\n v_lshlrev_b32 v{vGA+4+k}, 2, v{vT}\n v_lshrrev_b32 v{vT+1}, 2, v{vT}\n v_and_b32 v{vT}, 3, v{vT}")
                e(f"v_mad_u32_u24 v{vT+1}, v{vT+1}, 3, v{vT}\n v_min_u32 v{vGA+k}, 639, v{vT+1}\n v_lshlrev_b32 v{vGA+k}, 2, v{vGA+k}")
            e(f"s_movk_i32 s55, 639\n v_cmp_lt_u32 s[6:7], s55, v{vT+1}\n s_mov_b32 s4, 0x88888888\n s_mov_b32 s5, 0x88888888")
            g.c("final stage constants")
            e(f"v_min_u32 v{vPA}, 213, v0\n v_lshlrev_b32 v{vPA}, 4, v{vPA}\n v_mul_u32_u24 v{vT}, 3, v0")
            e(f"s_movk_i32 s55, 640\n v_cmp_gt_u32 s[56:57], s55, v{vT}\n s_movk_i32 s55, 639\n v_cmp_gt_u32 s[58:59], s55, v{vT}")
            e(f"s_mul_i32 s55, {SB}, 1280\n v_lshl_add_u32 v{vT}, v{vT}, 1, s55\n v_mov_b32 v{vT+1}, 0x7ffffff0")
            e(f"v_cndmask_b32 v{vO0}, v{vT+1}, v{vT}, s[56:57]\n v_cndmask_b32 v{vO1}, v{vT+1}, v{vT}, s[58:59]")
            e(f"s_lshl_b32 s55, {SW}, 3\n v_mov_b32 v{vFW}, s55\n v_mov_b32 v{vZ}, 0")
            e(f"s_lshl_b32 s55, {SB}, 15\n s_add_u32 s55, s55, {WS_ACC}\n s_add_u32 s44, s32, s55\n s_addc_u32 s45, s33, 0\n s_mov_b32 s46, {P.R*REP_STRIDE}")
            e("s_mov_b32 s48, s28\n s_mov_b32 s49, s29\n s_mov_b32 s50, 2560")
    assert st["nwo"] == 40 and st["nk"] == 2*NL and P.TAB_USE < P.POLL_USE and P.WO_START >= 0, st
    oacc = lambda t: vX + 4*t
    e("s_nop 6\n s_mov_b32 exec_hi, 0")
    e(f"ds_write_b128 v{vOPW}, {vr(vACC,4)} offset:{L_QP}\n s_mov_b64 exec, -1")
    g.wait(("wo", 39))
    e("s_waitcnt lgkmcnt(0)\n s_barrier")
    e(f"ds_read2_b32 {vr(vT,2)}, v{vOPR} offset0:0 offset1:128\n ds_read_b64 {vr(vT+2,2)}, v{vFA} offset:{L_F}")
    e(f"s_waitcnt lgkmcnt(0)\n v_mul_f32 v{vT}, v{vT}, v{vT+2}\n v_fmac_f32 v{vT}, v{vT+1}, v{vT+3}\n s_nop 1")
    e(f"v_add_f32_dpp v{vT}, v{vT}, v{vT} row_ror:8 {DPP}\n v_cvt_pk_bf16_f32 v{vT}, v{vT}, v{vT}\n s_nop 1")
    def abuild(ii):
        a = vA + 4*(ii & 1)
        for r in range(4): e(f"v_and_b32_dpp v{a+r}, v{vT}, v{vMK+r} row_newbcast:{ii} {DPP}")
    abuild(0); e("s_nop 1")
    for ii in range(8):
        a = vA + 4*(ii & 1)
        for t in range(5):
            e(f"v_mfma_f32_16x16x32_bf16 {vr(oacc(t),4)}, {vr(a,4)}, {ar(4*(5*ii+t),4)}, {'0' if ii == 0 else vr(oacc(t),4)}")
            if t == 1 and ii < 7: abuild(ii+1)
    e("s_nop 3\n s_mov_b32 exec_hi, 0")
    for t in range(5): e(f"ds_write_b128 v{vOUW}, {vr(oacc(t),4)} offset:{L_OUTP + t*512}")
    e("s_mov_b64 exec, -1\n s_waitcnt lgkmcnt(0)\n s_barrier")
    base64 = L_OUTP // 256
    for k in range(4):
        for p in range(2): e(f"ds_read2st64_b32 {vr(vT+4*k+2*p,2)}, v{vGA+k} offset0:{base64+20*p} offset1:{base64+20*p+10}")
    for k in range(4):
        r = vT+4*k
        e(f"s_waitcnt lgkmcnt({6-2*k})\n v_add_f32 v{r}, v{r}, v{r+1}\n v_add_f32 v{r+2}, v{r+2}, v{r+3}\n v_add_f32 v{r}, v{r}, v{r+2}")
        if k == 3: e(f"v_cndmask_b32 v{r}, v{r}, 0, s[6:7]")
        e(f"v_cndmask_b32 v{r}, v{r}, 1.0, s[4:5]\n buffer_atomic_add_f32 v{r}, v{vGA+4+k}, s[40:43], 0 offen sc1")
    stamp(g, 12)
    e(f"s_cmp_eq_u32 {SFIN}, 0\n s_cbranch_scc1 Ldone")
    PL = vX; H, N, Y = vT, vT+4, vT+8; N2 = vX+72
    le = g.label("Lep")
    g.c("past the tail barriers every workgroup's tag has been seen, so every workgroup has read the epoch word: advance it")
    e(f"s_cmp_lg_u32 s2, {FINAL_IDS[0]}\n s_cbranch_scc1 {le}\n s_cmp_lg_u32 {SW}, 3\n s_cbranch_scc1 {le}")
    e(f"v_mov_b32 v{vB}, {ST}\n s_mov_b64 exec, 1\n global_store_dword v{vZ}, v{vB}, {sWS} offset:{WS_E} sc1\n s_mov_b64 exec, -1\n {le}:")
    def tree(dst, regs):
        regs = list(regs)
        while len(regs) > 2:
            for a in range(0, len(regs) - 1, 2): e(f"v_add_f32 v{regs[a]}, v{regs[a]}, v{regs[a+1]}")
            regs = regs[0::2]
        e(f"v_add_f32 v{dst}, v{regs[0]}, v{regs[1]}")
    e(f"s_mov_b32 s3, {SPIN:#x}\n Lpoll:")
    for r in range(P.R):
        e(f"s_movk_i32 s55, {r*REP_STRIDE}\n buffer_load_dwordx4 {vr(PL+8*r,4)}, v{vPA}, s[44:47], s55 offen sc1\n buffer_load_dwordx4 {vr(PL+8*r+4,4)}, v{vZ}, s[44:47], s55 offen sc1")
    e("s_waitcnt vmcnt(0)")
    cs = [PL+4*k+3 for k in range(2*P.R)]
    e(f"v_min_f32 v{Y}, v{cs[0]}, v{cs[1]}")
    for k in range(2, len(cs), 2): e(f"v_min3_f32 v{Y}, v{cs[k]}, v{cs[k+1]}, v{Y}")
    e(f"v_cmp_gt_f32 vcc, {f2u(128.0/P.R):#x}, v{Y}")
    for k in range(3): tree(H+k, [PL+8*r+k for r in range(P.R)])
    tree(H+3, [PL+8*r+4 for r in range(P.R)])
    e("s_cbranch_vccz Lpdone\n s_sub_u32 s3, s3, 1\n s_cbranch_scc0 Lpoll\n Lpdone:")
    stamp(g, 13)
    bf16r_n(g, [H, H+1, H+2])
    for k in range(4): e(f"v_add_f32 v{H+k}, v{H+k}, v{vXF+k}")
    bf16r_n(g, [H, H+1, H+2])
    def ln_block(src, dst, piv, slot):
        s1, s2 = vT+12, vT+13; Z = vX+64
        for k in range(3): e(f"v_sub_f32 v{Y+k}, v{src+k}, v{piv}")
        e(f"v_cndmask_b32 v{Y}, 0, v{Y}, s[56:57]\n v_cndmask_b32 v{Y+1}, 0, v{Y+1}, s[58:59]\n v_cndmask_b32 v{Y+2}, 0, v{Y+2}, s[58:59]")
        e(f"v_add_f32 v{s1}, v{Y}, v{Y+1}\n v_mul_f32 v{s2}, v{Y}, v{Y}\n v_fmac_f32 v{s2}, v{Y+1}, v{Y+1}\n v_add_f32 v{s1}, v{s1}, v{Y+2}\n v_fmac_f32 v{s2}, v{Y+2}, v{Y+2}\n s_nop 0")
        wave_reduce(g, "v_add_f32", [s1, s2]); g.L.pop()
        e(f"s_mov_b32 exec_lo, 0\n s_mov_b32 exec_hi, 0x80000000\n ds_write_b64 v{vFW}, {vr(s1,2)} offset:{L_FIN + slot*32}\n s_mov_b64 exec, -1")
        e("s_waitcnt lgkmcnt(0)\n s_barrier")
        e(f"ds_read_b128 {vr(Z,4)}, v{vZ} offset:{L_FIN + slot*32}\n ds_read_b128 {vr(Z+4,4)}, v{vZ} offset:{L_FIN + slot*32 + 16}\n s_waitcnt lgkmcnt(0)")
        e(f"v_pk_add_f32 {vr(Z,2)}, {vr(Z,2)}, {vr(Z+2,2)}\n v_pk_add_f32 {vr(Z+4,2)}, {vr(Z+4,2)}, {vr(Z+6,2)}\n v_pk_add_f32 {vr(Z,2)}, {vr(Z,2)}, {vr(Z+4,2)}")
        e(f"v_mul_f32 v{Y}, {f2u(1.0/640):#x}, v{Z}\n v_mul_f32 v{Y+1}, {f2u(1.0/640):#x}, v{Z+1}")
        e(f"v_fma_f32 v{Y+1}, -v{Y}, v{Y}, v{Y+1}\n v_add_f32 v{Y}, v{Y}, v{piv}\n v_max_f32 v{Y+1}, 0, v{Y+1}\n v_mov_b32 v{Y+2}, v{Y}")
        bf16r_n(g, [Y+1, Y])
        e(f"v_add_f32 v{Y+1}, {f2u(1e-5):#x}, v{Y+1}")
        for k in range(3): e(f"v_sub_f32 v{dst+k}, v{src+k}, v{Y}")
        bf16r(g, Y+1, Y+1)
        e(f"v_sqrt_f32 v{Y+1}, v{Y+1}")
        bf16r_n(g, [dst, dst+1, dst+2])
        bf16r(g, Y+1, Y+1)
        e(f"v_rcp_f32 v{Y+1}, v{Y+1}\n v_sub_f32 v{Y+2}, v{Y+2}, v{Y}")
        for k in range(3): e(f"v_mul_f32 v{dst+k}, v{dst+k}, v{Y+1}")
        e(f"v_mul_f32 v{dst+3}, v{Y+2}, v{Y+1}")
        bf16r_n(g, [dst, dst+1, dst+2])
    ln_block(H, N, H+3, 0)
    ln_block(N, N2, N+3, 1)
    I = vT+8
    for k in range(3): e(f"v_bfe_u32 v{I+k}, v{N2+k}, 16, 15")
    for k in range(3): e(f"v_subrev_u32 v{I+k}, {EMIN<<7}, v{I+k}\n v_ashrrev_i32 v{N+k}, 31, v{N2+k}")
    e(f"v_max3_u32 v{vT+12}, v{I}, v{I+1}, v{I+2}\n s_movk_i32 s55, 3071")
    for k in range(3): e(f"v_min_u32 v{I+k}, s55, v{I+k}\n v_and_b32 v{N+k}, 3072, v{N+k}")
    e(f"v_cmp_lt_u32 vcc, s55, v{vT+12}" if P.XLIM == 3071 else f"v_cmp_lt_u32 vcc, {P.XLIM}, v{vT+12}")
    for k in range(3): e(f"v_add_u32 v{I+k}, v{I+k}, v{N+k}")
    for k in range(3): e(f"v_and_b32 v{N+k}, 2047, v{I+k}\n v_lshrrev_b32 v{I+k}, 10, v{I+k}")
    for k in range(3): e(f"v_and_b32 v{I+k}, 6, v{I+k}")
    for k in range(3): e(f"v_lshl_add_u32 v{I+k}, v{N+k}, 3, v{I+k}")
    for k in range(3): e(f"ds_read_u16 v{I+k}, v{I+k} offset:{L_TAB}")
    e("s_and_b64 vcc, vcc, s[56:57]\n s_cbranch_scc1 Lslow\n s_waitcnt lgkmcnt(0)\n Lback:")
    for k in range(3): e(f"v_lshlrev_b32 v{I+k}, 16, v{I+k}")
    for k in range(3): e(f"v_add_f32 v{I+k}, v{I+k}, v{H+k}")
    for k in range(3): e(f"v_cvt_pk_bf16_f32 v{I+k}, v{I+k}, v{I+k}")
    e(f"buffer_store_short v{I}, v{vO0}, s[48:51], 0 offen\n buffer_store_short v{I+1}, v{vO1}, s[48:51], 0 offen offset:2\n buffer_store_short v{I+2}, v{vO1}, s[48:51], 0 offen offset:4")
    e("Ldone:")
    if P.DIAG:
        stamp(g, 14)
        e(f"s_lshl_b32 s55, s2, 3\n s_add_u32 s55, s55, {SW}\n s_lshl_b32 s55, s55, 6\n s_add_u32 s55, s55, {WS_DIAG}\n s_getreg_b32 s3, hwreg(HW_REG_XCC_ID)\n s_waitcnt vmcnt(0) lgkmcnt(0)")
        e(f"v_mov_b32 v{vT}, s55\n s_mov_b64 exec, 1")
        for k in range(15): e(f"v_mov_b32 v{vR+k}, s{66+2*k}")
        e(f"v_mov_b32 v{vR+15}, s3")
        for k in range(4): e(f"global_store_dwordx4 v{vT}, {vr(vR+4*k,4)}, {sWS} offset:{16*k}")
    e("Lend:\n s_endpgm")
    SV = vR
    e("Lslow:\n s_waitcnt lgkmcnt(0)\n s_mov_b64 s[52:53], vcc")
    for k in range(16): e(f"v_mov_b32 v{SV+k}, v{vT+k}")
    e("Lslow1:\n s_ff1_i32_b64 s55, s[52:53]\n s_bitset0_b64 s[52:53], s55\n s_mov_b32 m0, s55\n s_nop 1")
    for k in range(3): e(f"v_readlane_b32 s{56+k}, v{N2+k}, m0\n v_readlane_b32 s{59+k}, v{N2+k}, m0")
    for k in range(6): e(f"v_mov_b32 v{vTA+k}, 0")
    e(f"v_lshlrev_b32 v{vTL}, 2, v{vLANE}\n s_mov_b32 s3, 14\n s_call_b64 s[30:31], Ltab")
    wave_reduce(g, "v_add_f32", [vTA, vTA+1, vTA+2])
    tab_finish(g, vTA, vT+10, vB2)
    e(f"s_nop 0\n v_readlane_b32 s56, v{vT+10}, 63\n v_readlane_b32 s58, v{vT+12}, 63\n s_nop 3\n s_lshr_b32 s57, s56, 16\n s_and_b32 s56, s56, 0xffff\n s_and_b32 s58, s58, 0xffff")
    for k in range(3): e(f"v_writelane_b32 v{SV+8+k}, s{56+k}, m0")
    e("s_cmp_lg_u64 s[52:53], 0\n s_cbranch_scc1 Lslow1")
    for k in range(16): e(f"v_mov_b32 v{vT+k}, v{SV+k}")
    e("s_branch Lback")
    w1, b1, w2, wl, wh, bl, cc = vT, vT+1, vT+2, vT+3, vT+13, vT+4, vT+6
    K0 = (2/3.141592653589793)**0.5; C1 = -2*K0*LOG2E; C3 = C1*0.044715
    e("Ltab:")
    e(f"ds_read_b32 v{w1}, v{vTL} offset:{L_MW}\n ds_read_b32 v{b1}, v{vTL} offset:{L_MW+4096}\n ds_read_b32 v{w2}, v{vTL} offset:{L_MW+8192}")
    e(f"v_add_u32 v{vTL}, 256, v{vTL}\n v_mov_b32 v{cc+1}, {f2u(C1):#x}\n v_mov_b32 v{cc}, {f2u(C3):#x}\n s_waitcnt lgkmcnt(0)")
    e(f"v_lshlrev_b32 v{wl}, 16, v{w1}\n v_and_b32 v{wh}, 0xffff0000, v{w1}\n v_lshlrev_b32 v{bl}, 16, v{b1}\n v_and_b32 v{bl+1}, 0xffff0000, v{b1}")
    sets = [(vT+8, vT+10, vT+12), (vT+14, vT, vT+12)]
    for k0 in range(0, 6, 2):
        S_ = [(sets[j][0], sets[j][1], 56+k0+j, vTA+k0+j) for j in range(2)]
        for U, Z, s_, _ in S_: e(f"v_mul_f32 v{U}, s{s_}, v{wl}\n v_mul_f32 v{U+1}, s{s_}, v{wh}")
        for U, Z, s_, _ in S_: e(f"v_cvt_pk_bf16_f32 v{U}, 0, v{U}\n v_cvt_pk_bf16_f32 v{U+1}, 0, v{U+1}")
        for U, Z, s_, _ in S_: e(f"v_pk_add_f32 {vr(U,2)}, {vr(U,2)}, {vr(bl,2)}")
        for U, Z, s_, _ in S_: e(f"v_cvt_pk_bf16_f32 v{U}, 0, v{U}\n v_cvt_pk_bf16_f32 v{U+1}, 0, v{U+1}")
        for U, Z, s_, _ in S_: e(f"v_pk_mul_f32 {vr(Z,2)}, {vr(U,2)}, {vr(U,2)}")
        for U, Z, s_, _ in S_: e(f"v_fma_f32 v{Z}, v{Z}, v{cc}, v{cc+1}\n v_fma_f32 v{Z+1}, v{Z+1}, v{cc}, v{cc+1}")
        for U, Z, s_, _ in S_: e(f"v_pk_mul_f32 {vr(Z,2)}, {vr(Z,2)}, {vr(U,2)}")
        for U, Z, s_, _ in S_: e(f"v_exp_f32 v{Z}, v{Z}\n v_exp_f32 v{Z+1}, v{Z+1}")
        for U, Z, s_, _ in S_: e(f"v_add_f32 v{Z}, 1.0, v{Z}\n v_add_f32 v{Z+1}, 1.0, v{Z+1}")
        for U, Z, s_, _ in S_: e(f"v_rcp_f32 v{Z}, v{Z}\n v_rcp_f32 v{Z+1}, v{Z+1}")
        for U, Z, s_, _ in S_: e(f"v_pk_mul_f32 {vr(Z,2)}, {vr(Z,2)}, {vr(U,2)}")
        for U, Z, s_, acc in S_: e(f"v_cvt_pk_bf16_f32 v{U}, v{Z}, v{Z+1}")
        for U, Z, s_, acc in S_: e(f"v_dot2_f32_bf16 v{acc}, v{U}, v{w2}, v{acc}")
    e("s_sub_u32 s3, s3, 1\n s_cmp_lg_u32 s3, 0\n s_cbranch_scc1 Ltab\n s_nop 2\n s_setpc_b64 s[30:31]")
    return g

HEADER = open("cdna_kernels/" + NAME + ".s.ref").read().split("; Override launch")[0]
DOC = """;
"""

def emit():
    g = gen()
    acc = (g.nv + 3)//4*4; assert acc <= 256
    out = HEADER + f"; @launch grid=(256,1,1) block=(256,1,1) lds={LDS_BYTES}\n" + DOC
    out += '.amdgcn_target "amdgcn-amd-amdhsa--gfx950"\n.text\n'
    out += f".globl {KN}\n.p2align 8\n.type {KN},@function\n" + "\n".join(g.L) + "\n"
    out += f""".section .rodata,"a"
.p2align 6
.amdhsa_kernel {KN}
  .amdhsa_next_free_vgpr {acc + 160}
  .amdhsa_next_free_sgpr 96
  .amdhsa_accum_offset {acc}
  .amdhsa_group_segment_fixed_size 0
  .amdhsa_kernarg_size 104
  .amdhsa_user_sgpr_count 2
  .amdhsa_user_sgpr_kernarg_segment_ptr 1
  .amdhsa_system_sgpr_workgroup_id_x 1
  .amdhsa_float_denorm_mode_32 3
.end_amdhsa_kernel
"""
    return out, g

if __name__ == "__main__":
    ap = argparse.ArgumentParser()
    ap.add_argument("-o", default="cdna_kernels/" + NAME + ".s")
    ap.add_argument("set", nargs="*")
    a = ap.parse_args()
    for kv in a.set:
        k, v = kv.split("=", 1); old = getattr(P, k)
        setattr(P, k, v.replace("_", " ") if isinstance(old, str) else int(v))
    out, g = emit()
    open(a.o, "w").write(out)
    print("vgprs", g.nv, "lines", len(g.L))
```

```python
import sys, struct, argparse

NAME = "sequential_preLN__mha_block_cached__mixer_token_mlp__decode"
KN = NAME + "_kernel"
def f2u(x): return struct.unpack("<I", struct.pack("<f", x))[0]

class P:
    D = 20
    NPRO = 40
    W = 6
    WEND = 5
    ENDAT = 136
    WPRO = 7
    LAG = 16
    CU_N = 1
    CU_D = 2
    PRE = 4
    STRIDE = 5
    ROT = 8
    ROTJ = 16
    ROTX = 6
    R = 4
    POL = "nt"
    K0 = 4
    KFIRST = 12
    KX1 = 0
    KX2 = 4
    KX3 = 8
    QPOLL_AT = 29
    QPOLL_USE = 35
    WO_START = 48
    WO_EVERY = 2
    TABK0 = 2
    TABKE = 3
    TPRE = 0
    TAB_AT = 48
    TAB_USE = 72
    POLL_AT = 80
    POLL_USE = 104
    DIAG = 0
    XLIM = 3071
    XMM = 0

WS_E, WS_ZF, WS_ML, WS_TAB, WS_ACC, WS_QG, WS_DIAG = 0x0, 0x1000, 0x2000, 0x10000, 0x20000, 0x40000, 0x100000
REP_STRIDE, NGRAN = 3584, 214
L_QP, L_MW, L_Q1, L_OUTP, L_TAB, L_FIN = 0, 4096, 16384, 16384, 36864, 53248
L_F = L_FIN + 128
L_AGG = L_FIN + 256
LDS_BYTES = 57344
EMIN = 108
LOG2E = 1.4426950408889634
FINAL_IDS = (0, 34)
DPP = "row_mask:0xf bank_mask:0xf"
SPIN = 0x40000
NL = 128

class G:
    def __init__(s): s.L = []; s.fifo = []; s.lab = 0; s.nv = 0
    def e(s, t):
        for x in t.split("\n"):
            x = x.strip()
            if x: s.L.append(("    " if not x.endswith(":") else "") + x)
    def c(s, t): s.L.append("    ; " + t)
    def label(s, p="L"): s.lab += 1; return f"{p}{s.lab}"
    def v(s, n=1, align=1):
        s.nv = (s.nv + align - 1)//align*align
        r = s.nv; s.nv += n; return r
    def vm(s, text, tag):
        s.e(text); s.fifo.append(tag); assert len(s.fifo) <= 63
    def wait(s, tag):
        if tag not in s.fifo: return
        i = s.fifo.index(tag); n = len(s.fifo) - 1 - i
        s.e(f"s_waitcnt vmcnt({n})"); del s.fifo[:i+1]
    def cap(s, W):
        kv = [t for t in s.fifo if t[0] == "kv"]
        if len(kv) >= W: s.wait(kv[-W])

def vr(r, n): return f"v[{r}:{r+n-1}]"
def ar(r, n): return f"a[{r}:{r+n-1}]"

def wave_reduce(g, op, regs, nsteps=6):
    steps = [f"row_ror:8 {DPP}", f"row_ror:4 {DPP}", f"row_ror:2 {DPP}", f"row_ror:1 {DPP}",
             "row_bcast:15 row_mask:0xa bank_mask:0xf", "row_bcast:31 row_mask:0xc bank_mask:0xf"]
    for st in steps[:nsteps]:
        for r in regs: g.e(f"{op}_dpp v{r}, v{r}, v{r} {st}")
        pad = 2 - (len(regs) - 1)
        if pad > 0: g.e(f"s_nop {pad-1}")

def bf16r(g, d, s_): g.e(f"v_cvt_pk_bf16_f32 v{d}, 0, v{s_}")
def bf16r_n(g, regs):
    for r in regs: bf16r(g, r, r)

def stamp(g, k, mode=0):
    if P.DIAG and (mode == 0 or mode == P.DIAG): g.e(f"s_memrealtime s[{66+2*k}:{67+2*k}]")

def tab_finish(g, src, dst, vB2):
    bf16r_n(g, [src, src+1, src+2])
    for k in range(3): g.e(f"v_add_f32 v{src+k}, v{src+k}, v{vB2}")
    g.e(f"v_cvt_pk_bf16_f32 v{dst}, v{src}, v{src+1}\n v_cvt_pk_bf16_f32 v{dst+2}, v{src+2}, v{src+2}")

def gen():
    g = G(); e = g.e
    D = P.D; NX = P.NPRO - D; assert NX <= 20
    g.v(); vLANE = g.v(); vL16 = g.v(); vOFF = g.v()
    vMK = g.v(4); vA = g.v(8, 2); vQ = g.v(4, 2); vS = g.v(8, 2); vACC = g.v(4, 2)
    vB = g.v(8, 2); vT = g.v(16, 2); vML = g.v(8, 2); vMISC = g.v(8, 2); vGA = g.v(8, 2); vGAp = vGA + 4
    vTA = g.v(6); vTL = g.v(); vB2 = g.v(); vXF = g.v(4); vWOO = g.v(); vDT = g.v(2)
    vR = g.v(4*D, 2); vX = g.v(80, 2)
    def ring(i):
        if i < D: return vR + 4*i
        if i < D + NX: return vX + 4*(i - D)
        return vR + 4*((i - D - NX) % D)
    def slot_free_after(i):
        if i < D + NX: return -1
        return i - D - NX if i - D - NX < D else i - D
    sX, sK, sV, sWO, sB2, sWS = "s[8:9]", "s[10:11]", "s[12:13]", "s[16:17]", "s[26:27]", "s[32:33]"
    SW, SH, SB, SS, ST, SFIN = "s34", "s35", "s36", "s37", "s38", "s39"
    vG, vC = vMISC, vMISC+1
    st = {"nk": 0, "nwo": 0, "ab": 0, "tab": 42}
    def kv_issue():
        i = st["nk"]; st["nk"] += 1
        g.vm(f"global_load_dwordx4 {vr(ring(i),4)}, v{vOFF}, {sK if i < NL else sV} nt", ("kv", i))
        e(f"v_add_u32 v{vOFF}, {P.STRIDE*1024}, v{vOFF}\n v_and_b32 v{vOFF}, {NL*1024-1:#x}, v{vOFF}")
    def after_consume(n):
        if st["nk"] < 2*NL and slot_free_after(st["nk"]) <= n and st["nk"] <= n + max(P.LAG, P.NPRO - n*P.CU_N//P.CU_D):
            g.cap(P.W if st["nk"] < P.ENDAT else P.WEND); kv_issue()
        if n >= P.WO_START and (n - P.WO_START) % P.WO_EVERY == 0 and st["nwo"] < 40:
            k = st["nwo"]; st["nwo"] += 1; t = k % 5
            g.vm(f"global_load_dwordx4 {ar(4*k,4)}, v{vWOO}, {sWO} offset:{256*t} {P.POL}", ("wo", k))
            if t == 4: e(f"v_add_u32 v{vWOO}, {4*1280}, v{vWOO}")
    def pre_issue(n, cnt):
        for _ in range(cnt):
            if st["nk"] < 2*NL and slot_free_after(st["nk"]) <= n: kv_issue()
    def rowmac(acc, src, lane, data, build=True, first=False):
        if build:
            st["ab"] ^= 1; a = vA + 4*st["ab"]
            for r in range(4): e(f"v_and_b32_dpp v{a+r}, v{src}, v{vMK+r} row_newbcast:{lane} {DPP}")
            e("s_nop 1")
        a = vA + 4*st["ab"]
        e(f"v_mfma_f32_16x16x32_bf16 {vr(acc,4)}, {vr(a,4)}, {data}, {'0' if first else vr(acc,4)}")
    def tag_poll(regs, reload, sleep):
        lr = g.label("Lr"); lo = g.label("Lo")
        e(f"s_mov_b32 s3, {SPIN:#x}\n {lr}:\n v_xor_b32 v{vT}, {ST}, v{regs[0]}")
        for r in regs[1:]: e(f"v_xor_b32 v{vT+1}, {ST}, v{r}\n v_or_b32 v{vT}, v{vT}, v{vT+1}")
        e(f"v_cmp_ne_u32 vcc, 0, v{vT}\n s_cbranch_vccz {lo}\n s_sub_u32 s3, s3, 1\n s_cbranch_scc1 {lo}\n s_sleep {sleep}")
        e(reload); e(f"s_waitcnt vmcnt(0)\n s_branch {lr}\n {lo}:")

    e(f"{KN}:\n s_cmp_ge_u32 s2, 256\n s_cbranch_scc1 Lend")
    stamp(g, 0)
    e("s_load_dwordx16 s[8:23], s[0:1], 0\n s_load_dwordx8 s[24:31], s[0:1], 64\n s_load_dwordx2 s[32:33], s[0:1], 96")
    e(f"v_lshrrev_b32 v{vT}, 6, v0\n v_and_b32 v{vLANE}, 63, v0\n v_readfirstlane_b32 {SW}, v{vT}\n v_lshlrev_b32 v{vL16}, 4, v{vLANE}")
    g.c("id = 8j+x : head = 4x + (j>>3), batch = (j>>2)&1, split = j&3")
    e(f"s_and_b32 s52, s2, 7\n s_lshl_b32 s52, s52, 2\n s_lshr_b32 s53, s2, 6\n s_add_u32 {SH}, s52, s53")
    e(f"s_bfe_u32 {SB}, s2, 0x10005\n s_bfe_u32 {SS}, s2, 0x20003")
    e(f"s_lshl_b32 s52, {SB}, 5\n s_add_u32 s52, s52, {SH}\n s_lshl_b32 s54, s52, 2\n s_add_u32 s54, s54, {SS}")
    e(f"s_lshl_b32 s53, s54, 19\n s_lshl_b32 s55, {SW}, 17\n s_add_u32 s53, s53, s55")
    e(f"s_mul_i32 s55, {SW}, {P.ROT*1024}\n s_lshr_b32 s56, s2, 3\n s_mul_i32 s56, s56, {P.ROTJ*1024}\n s_add_u32 s55, s55, s56")
    e(f"s_and_b32 s56, s2, 7\n s_mul_i32 s56, s56, {P.ROTX*1024}\n s_add_u32 s55, s55, s56\n v_add_u32 v{vOFF}, s55, v{vL16}\n v_and_b32 v{vOFF}, {NL*1024-1:#x}, v{vOFF}")
    e(f"s_mov_b32 {SFIN}, 0\n s_cmp_eq_u32 s2, {FINAL_IDS[0]}\n s_cselect_b32 {SFIN}, 1, {SFIN}\n s_cmp_eq_u32 s2, {FINAL_IDS[1]}\n s_cselect_b32 {SFIN}, 1, {SFIN}")
    e(f"v_lshrrev_b32 v{vG}, 4, v{vLANE}\n v_and_b32 v{vC}, 15, v{vLANE}")
    g.c("q work: head id>>3, rows 80*(id&7)..+80; wave w takes row quads w, w+4, .. w+16")
    vWQO, vXO, vXQ = vMISC+2, vMISC+3, vGA
    e(f"s_and_b32 s55, s2, 7\n s_mul_i32 s55, s55, 80\n s_lshl_b32 s56, {SW}, 2\n s_add_u32 s55, s55, s56\n v_add_u32 v{vWQO}, s55, v{vG}")
    e(f"v_lshrrev_b32 v{vT}, 3, v{vC}\n v_mul_u32_u24 v{vT}, 640, v{vT}\n v_add_lshl_u32 v{vXQ}, v{vT}, v{vWQO}, 1")
    e(f"v_lshlrev_b32 v{vWQO}, 13, v{vWQO}\n v_lshl_add_u32 v{vWQO}, v{vC}, 4, v{vWQO}\n s_lshr_b32 s56, s2, 3\n s_lshl_b32 s56, s56, 8\n v_add_u32 v{vWQO}, s56, v{vWQO}")
    e(f"v_lshrrev_b32 v{vT}, 5, v{vLANE}\n v_mul_u32_u24 v{vT}, 1280, v{vT}\n v_and_b32 v{vXO}, 31, v{vLANE}\n v_lshl_add_u32 v{vXO+1}, v{vXO}, 4, v{vT}\n v_lshl_add_u32 v{vXO}, v{vXO}, 3, v{vT}")
    e(f"s_mov_b32 s51, 0x20000\n s_mov_b32 s47, 0x20000\n s_mov_b32 s43, 0x20000")
    e(f"s_lshl_b32 s55, {SB}, 15\n s_add_u32 s55, s55, {WS_ACC}\n s_mov_b32 s46, {P.R*REP_STRIDE}")
    e("s_waitcnt lgkmcnt(0)")
    stamp(g, 1)
    e("s_add_u32 s10, s10, s53\n s_addc_u32 s11, s11, 0\n s_add_u32 s44, s32, s55\n s_addc_u32 s45, s33, 0")
    lz = g.label("Lnz")
    e(f"s_cmp_eq_u32 {SFIN}, 0\n s_cbranch_scc1 {lz}")
    e(f"v_mov_b32 v{vT+4}, 0\n v_mov_b32 v{vT+5}, 0\n v_mov_b32 v{vT+6}, 0\n v_mov_b32 v{vT+7}, 0\n v_lshlrev_b32 v{vT}, 4, v0")
    for k in range((P.R*REP_STRIDE + 4095)//4096):
        e(f"s_movk_i32 s55, {k*4096}\n buffer_store_dwordx4 {vr(vT+4,4)}, v{vT}, s[44:47], s55 offen sc1")
    e(f"{lz}:")
    for _ in range(P.K0): kv_issue()
    vXD, vWQ, X = vX + 28, vX + 40, vX + 60
    assert P.KFIRST + P.KX1 + P.KX2 <= D + 7
    g.vm(f"global_load_dwordx4 {vr(vXD,4)}, v{vXO+1}, {sX}", ("x", 0))
    g.vm(f"global_load_dwordx4 {vr(vXD+4,4)}, v{vXO+1}, {sX} offset:512", ("x", 1))
    g.vm(f"global_load_dwordx2 {vr(vXD+8,2)}, v{vXO}, {sX} offset:1024", ("x", 2))
    for k in range(5):
        g.vm(f"global_load_dwordx4 {vr(vWQ+4*k,4)}, v{vWQO}, s[14:15] {P.POL}", ("wq", k))
        if k < 4: e(f"v_add_u32 v{vWQO}, {16*8192:#x}, v{vWQO}")
    for k in [1, 2, 3, 4, 0]: g.vm(f"global_load_ushort v{vXQ+k}, v{vXQ}, {sX} offset:{32*k}", ("xq", k))
    while st["nk"] < P.KFIRST: kv_issue()
    e(f"s_load_dword {ST}, {sWS}, {WS_E}\n s_add_u32 s12, s12, s53\n s_addc_u32 s13, s13, 0")
    g.c("operand masks: lane (g,i) owns element i&7 of its 8-element slab")
    e(f"v_bfe_u32 v{vT}, v{vC}, 1, 2\n v_and_b32 v{vT+1}, 1, v{vC}\n v_lshlrev_b32 v{vT+1}, 4, v{vT+1}\n v_mov_b32 v{vT+2}, 0xffff\n v_lshlrev_b32 v{vT+1}, v{vT+1}, v{vT+2}")
    for r in range(4): e(f"v_cmp_eq_u32 vcc, {r}, v{vT}\n s_nop 1\n v_cndmask_b32 v{vMK+r}, 0, v{vT+1}, vcc")
    assert P.R == 4
    e(f"s_mul_i32 s55, {SS}, {REP_STRIDE}\n s_add_u32 s40, s44, s55\n s_addc_u32 s41, s45, 0\n s_mov_b32 s42, {NGRAN*16}")
    e("s_mov_b32 s4, 0\n s_mov_b32 s5, -1\n s_mov_b32 s6, 0xff00ff00\n s_mov_b32 s7, 0xff00ff00")
    e(f"s_lshl_b32 s55, {SH}, 7\n s_lshl_b32 s53, {SW}, 5\n s_add_u32 s55, s55, s53\n v_add_u32 v{vWOO}, s55, v{vG}")
    e(f"v_mul_u32_u24 v{vWOO}, 1280, v{vWOO}\n v_lshl_add_u32 v{vWOO}, v{vC}, 4, v{vWOO}")
    e(f"v_mov_b32 v{vT}, 0\n ds_write_b32 v{vT}, v{vT} offset:{L_AGG+256}")
    g.c("LN(x) statistics for both batches (lanes 0-31 batch 0, lanes 32-63 batch 1)")
    g.wait(("x", 2)); stamp(g, 4, 3)
    for _ in range(P.KX1): kv_issue()
    for k in range(10): e(f"v_lshlrev_b32 v{X+2*k}, 16, v{vXD+k}\n v_and_b32 v{X+2*k+1}, 0xffff0000, v{vXD+k}")
    e(f"v_readlane_b32 s55, v{X}, 0\n v_readlane_b32 s56, v{X}, 32\n s_nop 0\n v_mov_b32 v{vT}, s55\n v_mov_b32 v{vT+1}, s56")
    e(f"v_cndmask_b32 v{vT+2}, v{vT}, v{vT+1}, s[4:5]\n v_cndmask_b32 v{vT+3}, v{vT}, v{vT+1}, s[6:7]")
    for k in range(20): e(f"v_sub_f32 v{X+k}, v{X+k}, v{vT+2}")
    S1, S2, M_, V_ = vT+10, vT+11, vT+12, vT+13
    e(f"v_add_f32 v{S1}, v{X}, v{X+1}\n v_mul_f32 v{S2}, v{X}, v{X}\n v_fmac_f32 v{S2}, v{X+1}, v{X+1}")
    for k in range(2, 20): e(f"v_add_f32 v{S1}, v{S1}, v{X+k}\n v_fmac_f32 v{S2}, v{X+k}, v{X+k}")
    e("s_nop 1")
    wave_reduce(g, "v_add_f32", [S1, S2], 5)
    e(f"v_readlane_b32 s55, v{S1}, 31\n v_readlane_b32 s56, v{S1}, 63\n v_readlane_b32 s57, v{S2}, 31\n v_readlane_b32 s58, v{S2}, 63")
    e(f"v_mov_b32 v{vT}, s55\n v_mov_b32 v{vT+1}, s56\n v_mov_b32 v{vT+4}, s57\n v_mov_b32 v{vT+5}, s58")
    e(f"v_cndmask_b32 v{M_}, v{vT}, v{vT+1}, s[6:7]\n v_cndmask_b32 v{V_}, v{vT+4}, v{vT+5}, s[6:7]")
    e(f"v_mul_f32 v{M_}, {f2u(1.0/640):#x}, v{M_}\n v_mul_f32 v{V_}, {f2u(1.0/640):#x}, v{V_}")
    e(f"v_fma_f32 v{V_}, -v{M_}, v{M_}, v{V_}\n v_add_f32 v{M_}, v{vT+3}, v{M_}\n v_max_f32 v{V_}, 0, v{V_}")
    bf16r_n(g, [M_, V_])
    e(f"v_add_f32 v{V_}, {f2u(1e-5):#x}, v{V_}"); bf16r(g, V_, V_)
    e(f"v_sqrt_f32 v{V_}, v{V_}\n s_nop 0"); bf16r(g, V_, V_)
    e(f"v_rcp_f32 v{V_}, v{V_}\n s_nop 0")
    g.wait(("xq", 0)); stamp(g, 5, 3)
    for _ in range(P.KX2): kv_issue()
    for k in range(5):
        r = vXQ + k
        e(f"v_lshlrev_b32 v{r}, 16, v{r}\n v_sub_f32 v{r}, v{r}, v{M_}"); bf16r(g, r, r)
        e(f"v_mul_f32 v{r}, v{r}, v{V_}\n v_cvt_pk_bf16_f32 v{r}, v{r}, v{r}")
        a_ = vA + 4*(k & 1)
        for j in range(4): e(f"v_and_b32 v{a_+j}, v{r}, v{vMK+j}")
        e(f"s_nop 1\n v_mfma_f32_16x16x32_bf16 {vr(vACC,4)}, {vr(a_,4)}, {vr(vWQ+4*k,4)}, {vr(vACC,4) if k else '0'}")
    stamp(g, 2)
    e(f"s_lshl_b32 s55, {SW}, 10\n v_add_u32 v{vT}, s55, v{vL16}\n v_and_b32 v{vT+3}, 31, v{vLANE}\n v_lshrrev_b32 v{vT+2}, 5, v{vLANE}")
    e(f"s_lshl_b32 s55, {SW}, 8\n v_lshl_add_u32 v{vT+1}, v{vT+3}, 3, s55\n v_lshl_add_u32 v{vT+1}, v{vT+2}, 11, v{vT+1}\n s_nop 0")
    e(f"ds_write_b128 v{vT}, {vr(vACC,4)} offset:{L_Q1}")
    for _ in range(P.KX3): kv_issue()
    e("s_waitcnt lgkmcnt(0)\n s_barrier")
    stamp(g, 6, 3)
    e(f"s_mul_i32 {ST}, {ST}, 1664525\n s_add_u32 {ST}, {ST}, 1013904223")
    g.c("sum the four partials; every wave hands over 64 of the 256 values: QG[id>>3][batch][id&7]")
    e(f"ds_read_b64 {vr(vT+8,2)}, v{vT+1} offset:{L_Q1}\n ds_read_b64 {vr(vT+10,2)}, v{vT+1} offset:{L_Q1+1024}")
    e(f"s_lshr_b32 s55, s2, 3\n s_lshl_b32 s55, s55, 1\n s_lshr_b32 s56, {SW}, 1\n s_add_u32 s55, s55, s56\n s_lshl_b32 s55, s55, 3\n s_and_b32 s56, s2, 7\n s_add_u32 s55, s55, s56")
    e(f"s_lshl_b32 s55, s55, 10\n s_and_b32 s56, {SW}, 1\n s_lshl_b32 s56, s56, 9\n s_add_u32 s55, s55, s56\n s_add_u32 s55, s55, {WS_QG}")
    e(f"v_lshl_add_u32 v{vT+2}, v{vT+3}, 4, s55\n v_mov_b32 v{vT+5}, {ST}\n v_mov_b32 v{vT+7}, {ST}\n s_waitcnt lgkmcnt(0)")
    e(f"v_add_f32 v{vT+4}, v{vT+8}, v{vT+10}\n v_add_f32 v{vT+6}, v{vT+9}, v{vT+11}\n v_mov_b32 v{vT+8}, v{vT+4}\n v_mov_b32 v{vT+9}, v{vT+6}\n s_nop 1")
    e(f"v_permlane32_swap_b32 v{vT+4}, v{vT+8}\n v_permlane32_swap_b32 v{vT+6}, v{vT+9}\n v_add_f32 v{vT+4}, v{vT+4}, v{vT+8}\n v_add_f32 v{vT+6}, v{vT+6}, v{vT+9}")
    e("s_mov_b32 exec_hi, 0")
    g.vm(f"global_store_dwordx4 v{vT+2}, {vr(vT+4,4)}, {sWS} sc1", ("qs", 0))
    e("s_mov_b32 exec_hi, -1")
    g.c("zero-fill-done flag: the fill is older than the wq loads every wave waited for before the barrier")
    lz = g.label("Lnf")
    e(f"s_cmp_eq_u32 {SFIN}, 0\n s_cbranch_scc1 {lz}\n s_cmp_lg_u32 {SW}, 2\n s_cbranch_scc1 {lz}")
    e(f"v_mov_b32 v{vT+8}, {ST}\n v_mov_b32 v{vT+9}, {ST}\n v_mov_b32 v{vT+10}, {ST}\n v_mov_b32 v{vT+11}, {ST}")
    e(f"s_lshl_b32 s55, {SB}, 8\n s_add_u32 s55, s55, {WS_ZF}\n v_mov_b32 v{vT+12}, s55\n s_mov_b64 exec, 1")
    e(f"global_store_dwordx4 v{vT+12}, {vr(vT+8,4)}, {sWS} sc1\n s_mov_b64 exec, -1\n {lz}:")
    g.c("mixer weights: wave w stages 1KB chunk w of w1, b1, w2 (zero past 3456 B)")
    MW = [vS, vS+4, vQ]
    e(f"s_mov_b32 s50, 3456\n s_lshl_b32 s55, {SW}, 10\n v_add_u32 v{vDT}, s55, v{vL16}")
    for a, sp in enumerate([20, 22, 24]):
        e(f"s_mov_b32 s48, s{sp}\n s_mov_b32 s49, s{sp+1}")
        g.vm(f"buffer_load_dwordx4 {vr(MW[a],4)}, v{vL16}, s[48:51], s55 offen {P.POL}", ("mw", a))
    e(f"v_mov_b32 v{vB2}, 0")
    g.vm(f"global_load_ushort v{vB2}, v{vB2}, {sB2}", ("b2", 0))
    vQGO, vQLO = vMISC+2, vMISC+3
    e(f"s_lshl_b32 s55, {SH}, 1\n s_add_u32 s55, s55, {SB}\n s_lshl_b32 s55, s55, 2\n s_add_u32 s55, s55, {SW}\n s_lshl_b32 s55, s55, 11\n s_add_u32 s55, s55, {WS_QG}")
    e(f"v_add_u32 v{vQGO}, s55, v{vL16}\n s_lshl_b32 s55, {SW}, 10\n v_lshl_add_u32 v{vQLO}, v{vLANE}, 3, s55")
    g.c("table inputs of this wave: entries k*2048 + (wg*8 + 2w + u), k = 0..2, u = 0..1")
    e(f"s_lshl_b32 s55, s2, 2\n s_add_u32 s55, s55, {SW}\n s_lshl_b32 s55, s55, 1\n s_add_u32 s56, s55, {EMIN<<7}\n s_lshl_b32 s56, s56, 16")
    e(f"s_add_u32 s57, s55, {2048 + (EMIN<<7)}\n s_add_u32 s58, s55, {2048 - 3072 + (EMIN<<7) + 0x8000}")
    e(f"s_cmp_ge_u32 s55, 1024\n s_cselect_b32 s57, s58, s57\n s_lshl_b32 s57, s57, 16")
    e(f"s_add_u32 s58, s55, {4096 - 3072 + (EMIN<<7) + 0x8000}\n s_lshl_b32 s58, s58, 16")
    e("s_add_u32 s59, s56, 0x10000\n s_add_u32 s60, s57, 0x10000\n s_add_u32 s61, s58, 0x10000")
    for k in range(6): e(f"v_mov_b32 v{vTA+k}, 0")
    e(f"v_lshlrev_b32 v{vTL}, 2, v{vLANE}")
    mw_at = st["nk"] + 3
    qload = [f"global_load_dwordx4 {vr(vML+4*u,4)}, v{vQGO}, {sWS} offset:{1024*u} sc1" for u in range(2)]
    while st["nk"] < P.NPRO:
        if st["nk"] <= P.QPOLL_USE: g.cap(P.WPRO)
        kv_issue()
        if st["nk"] == mw_at:
            g.wait(("b2", 0))
            e(f"v_lshlrev_b32 v{vB2}, 16, v{vB2}")
            for a in range(3): e(f"ds_write_b128 v{vDT}, {vr(MW[a],4)} offset:{L_MW + 4096*a}")
        if st["nk"] == P.QPOLL_AT:
            for u in range(2): g.vm(qload[u], ("qg", u))
        if st["nk"] == P.QPOLL_USE:
            g.wait(("qg", 1)); stamp(g, 8, 3)
            tag_poll([vML+1, vML+3, vML+5, vML+7], "\n".join(qload), 1)
            stamp(g, 9, 3)
            for u in range(2): e(f"v_mov_b32 v{vML+4*u+1}, v{vML+4*u+2}\n ds_write_b64 v{vQLO}, {vr(vML+4*u,2)} offset:{L_QP + 512*u}")
    assert mw_at <= P.NPRO and mw_at - 3 < P.QPOLL_AT < P.QPOLL_USE <= P.NPRO
    stamp(g, 10, 3)
    e(f"v_lshlrev_b32 v{vDT}, 4, v{vC}\n s_waitcnt lgkmcnt(0)\n s_barrier")
    for rnd in range(4):
        for w in range(2):
            o = L_QP + (2*rnd + w)*512
            e(f"ds_read_b128 {vr(vT+8*w,4)}, v{vDT} offset:{o}\n ds_read_b128 {vr(vT+8*w+4,4)}, v{vDT} offset:{o + 256}")
        for w in range(2):
            e(f"s_waitcnt lgkmcnt({2-2*w})")
            for k in range(8): e(f"v_mov_b32 v{vB+k}, v{vT+k}" if rnd == 0 and w == 0 else f"v_add_f32 v{vB+k}, v{vB+k}, v{vT+8*w+k}")
    for k in range(4): e(f"v_cvt_pk_bf16_f32 v{vQ+k}, v{vB+2*k}, v{vB+2*k+1}")
    e("s_mov_b32 s4, 0xcccccccc\n s_mov_b32 s5, 0xcccccccc\n s_mov_b32 s6, 0xaaaaaaaa\n s_mov_b32 s7, 0xaaaaaaaa")
    stamp(g, 3)
    def stepA(i, t): e(f"v_add_f32_dpp v{vB + (i & 7)}, v{t}, v{t} row_mirror row_mask:0xf bank_mask:{'0x3' if i < 8 else '0xc'}")
    for G_ in range(8):
        pend = None
        for i in range(16):
            n = 16*G_ + i
            g.wait(("kv", n))
            r = ring(n); t = vDT + (i & 1)
            e(f"v_dot2_f32_bf16 v{t}, v{r}, v{vQ}, 0")
            for k in range(1, 4): e(f"v_dot2_f32_bf16 v{t}, v{r+k}, v{vQ+k}, v{t}")
            if pend is not None: stepA(*pend)
            pend = (i, t)
            after_consume(n)
            if st["tab"] and n >= P.TABK0 and (n - P.TABK0) % P.TABKE == 0:
                pre_issue(n, P.TPRE)
                e(f"s_call_b64 s[30:31], Ltab{'ABC'[(42 - st['tab']) % 3]}"); st["tab"] -= 1
        if G_ == 7: pre_issue(n, P.PRE)
        e("s_nop 2"); stepA(*pend); e("s_nop 1")
        for u in range(4):
            e(f"v_add_f32_dpp v{vT+u}, v{vB+u}, v{vB+u} row_half_mirror row_mask:0xf bank_mask:0x5")
            e(f"v_add_f32_dpp v{vT+u}, v{vB+u+4}, v{vB+u+4} row_half_mirror row_mask:0xf bank_mask:0xa")
        e("s_nop 0")
        for u in range(4): e(f"v_add_f32_dpp v{vT+4+u}, v{vT+u}, v{vT+u} quad_perm:[2,3,0,1] {DPP}")
        e(f"v_cndmask_b32 v{vT}, v{vT+4}, v{vT+6}, s[4:5]\n v_cndmask_b32 v{vT+1}, v{vT+5}, v{vT+7}, s[4:5]\n s_nop 1")
        e(f"v_add_f32_dpp v{vT+2}, v{vT}, v{vT} quad_perm:[1,0,3,2] {DPP}\n v_add_f32_dpp v{vT+3}, v{vT+1}, v{vT+1} quad_perm:[1,0,3,2] {DPP}")
        e(f"v_cndmask_b32 v{vT}, v{vT+2}, v{vT+3}, s[6:7]")
        bf16r(g, vT, vT)
        e(f"v_mul_f32 v{vT}, {f2u(128**-0.5):#x}, v{vT}")
        bf16r(g, vS+G_, vT)
        if G_ & 1: stamp(g, 4+G_//2, 1 if G_ < 7 else 0)
    assert st["tab"] == 0
    e(f"v_max3_f32 v{vT}, v{vS}, v{vS+1}, v{vS+2}\n v_max3_f32 v{vT+1}, v{vS+3}, v{vS+4}, v{vS+5}\n v_max3_f32 v{vT}, v{vS+6}, v{vS+7}, v{vT}\n v_max_f32 v{vT}, v{vT}, v{vT+1}\n s_nop 1")
    wave_reduce(g, "v_max_f32", [vT])
    e(f"v_readlane_b32 s52, v{vT}, 63\n s_nop 1")
    for k in range(8): e(f"v_subrev_f32 v{vS+k}, s52, v{vS+k}")
    for k in range(8): e(f"v_mul_f32 v{vS+k}, {f2u(LOG2E):#x}, v{vS+k}")
    for k in range(8): e(f"v_exp_f32 v{vS+k}, v{vS+k}")
    e(f"v_add_f32 v{vT}, v{vS}, v{vS+1}\n v_add_f32 v{vT+1}, v{vS+2}, v{vS+3}\n v_add_f32 v{vT+2}, v{vS+4}, v{vS+5}\n v_add_f32 v{vT+3}, v{vS+6}, v{vS+7}")
    e(f"v_add_f32 v{vT}, v{vT}, v{vT+1}\n v_add_f32 v{vT+2}, v{vT+2}, v{vT+3}\n v_add_f32 v{vT}, v{vT}, v{vT+2}")
    for k in range(8): e(f"v_cvt_pk_bf16_f32 v{vS+k}, v{vS+k}, v{vS+k}")
    wave_reduce(g, "v_add_f32", [vT] + [vTA+k for k in range(6)])
    e(f"v_mov_b32 v{vT+4}, s52\n v_mov_b32 v{vT+5}, {ST}\n v_mov_b32 v{vT+6}, v{vT}\n v_mov_b32 v{vT+7}, {ST}")
    tab_finish(g, vTA, vT+8, vB2); tab_finish(g, vTA+3, vT+12, vB2)
    for r in (9, 11, 13, 15): e(f"v_mov_b32 v{vT+r}, {ST}")
    la = g.label("Lag")
    e(f"s_lshl_b32 s55, {SW}, 4\n v_mov_b32 v{vT}, s55\n v_lshlrev_b32 v{vT+1}, 1, v{vT}\n v_mov_b32 v{vT+2}, 1\n v_mov_b32 v{vT+3}, 0")
    e("s_mov_b32 exec_lo, 0\n s_mov_b32 exec_hi, 0x80000000")
    e(f"ds_write_b128 v{vT}, {vr(vT+4,4)} offset:{L_AGG}\n ds_write_b128 v{vT+1}, {vr(vT+8,4)} offset:{L_AGG+64}\n ds_write_b128 v{vT+1}, {vr(vT+12,4)} offset:{L_AGG+80}\n s_waitcnt lgkmcnt(0)")
    e(f"ds_add_rtn_u32 v{vT+2}, v{vT+3}, v{vT+2} offset:{L_AGG+256}\n s_mov_b64 exec, -1\n s_waitcnt lgkmcnt(0)")
    e(f"v_readlane_b32 s55, v{vT+2}, 63\n s_nop 3\n s_cmp_lg_u32 s55, 3\n s_cbranch_scc1 {la}")
    e(f"ds_read_b128 {vr(vT+4,4)}, v{vL16} offset:{L_AGG}")
    e(f"s_lshl_b32 s55, s54, 6\n s_add_u32 s55, s55, {WS_ML}\n s_lshl_b32 s53, s2, 7\n s_add_u32 s53, s53, {WS_TAB - 64}")
    e(f"v_mov_b32 v{vT+8}, s55\n v_mov_b32 v{vT+9}, s53\n v_cmp_lt_u32 vcc, 3, v{vLANE}\n s_nop 1\n v_cndmask_b32 v{vT+8}, v{vT+8}, v{vT+9}, vcc\n v_add_u32 v{vT+8}, v{vT+8}, v{vL16}")
    e(f"s_mov_b64 exec, 0xfff\n s_waitcnt lgkmcnt(0)\n global_store_dwordx4 v{vT+8}, {vr(vT+4,4)}, {sWS} sc1\n s_mov_b64 exec, -1\n {la}:")
    vMLO, vTBO, vXA = vMISC+3, vMISC+4, vMISC+5
    e(f"s_lshr_b32 s55, s54, 2\n s_lshl_b32 s55, s55, 8\n s_add_u32 s55, s55, {WS_ML}\n v_add_u32 v{vMLO}, s55, v{vL16}")
    e(f"s_lshl_b32 s55, {SB}, 8\n s_add_u32 s55, s55, {WS_ZF}\n v_mov_b32 v{vB}, s55\n v_cmp_lt_u32 vcc, 15, v{vLANE}\n s_nop 1\n v_cndmask_b32 v{vMLO}, v{vMLO}, v{vB}, vcc")
    e(f"s_add_u32 s48, s32, {WS_TAB}\n s_addc_u32 s49, s33, 0\n s_lshl_b32 s50, {SFIN}, 15\n v_lshlrev_b32 v{vTBO}, 4, v0")
    g.c("final stage x values (final workgroups only): columns 3j..3j+2, j = min(tid,213), and column 0")
    e(f"v_min_u32 v{vXA}, 213, v0\n v_mul_u32_u24 v{vXA}, 6, v{vXA}\n s_mul_i32 s55, {SB}, 1280\n v_add_u32 v{vXA}, s55, v{vXA}\n v_mov_b32 v{vXF+3}, s55")
    e(f"s_mov_b32 s44, s8\n s_mov_b32 s45, s9\n s_movk_i32 s46, 2560")
    lx = g.label("Lxf")
    e(f"s_cmp_eq_u32 {SFIN}, 0\n s_cbranch_scc1 {lx}")
    for k in range(3): e(f"buffer_load_ushort v{vXF+k}, v{vXA}, s[44:47], 0 offen offset:{2*k}")
    e(f"buffer_load_ushort v{vXF+3}, v{vXF+3}, s[44:47], 0 offen\n {lx}:")
    vFA, vOPW, vOPR, vOUW = vML+4, vML+5, vML+6, vML+7
    vPA, vO0, vO1, vFW, vZ = vMISC+2, vMISC+3, vMISC+4, vMISC+5, vMISC+6
    vTB = vX
    tl = [f"s_movk_i32 s55, {k*4096}\n buffer_load_dwordx4 {vr(vTB+4*k,4)}, v{vTBO}, s[48:51], s55 offen sc1" for k in range(8)]
    mload = f"global_load_dwordx4 {vr(vML,4)}, v{vMLO}, {sWS} sc1"
    for i in range(NL):
        n = NL + i
        g.wait(("kv", n))
        rowmac(vACC, vS + i//16, i % 16, vr(ring(n),4), first=(i == 0))
        if i % 32 == 31: stamp(g, 8 + i//32, 1 if i < 96 else 0)
        after_consume(n)
        if i == P.TAB_AT:
            ls = g.label("Ltl"); e(f"s_cmp_eq_u32 {SFIN}, 0\n s_cbranch_scc1 {ls}"); e("\n".join(tl)); e(f"{ls}:"); st["tmark"] = ("kv", st["nk"])
        if i == P.TAB_USE:
            assert st["tmark"] not in g.fifo and st["tmark"][1] < st["nk"]
            ls = g.label("Lts")
            e(f"s_cmp_eq_u32 {SFIN}, 0\n s_cbranch_scc1 {ls}")
            tag_poll([vTB+1+2*k for k in range(16)], "\n".join(tl), 2)
            e(f"v_lshlrev_b32 v{vT}, 3, v0")
            for k in range(8): e(f"v_mov_b32 v{vTB+4*k+1}, v{vTB+4*k+2}\n ds_write_b64 v{vT}, {vr(vTB+4*k,2)} offset:{L_TAB + k*2048}")
            for k in range(4): e(f"v_lshlrev_b32 v{vXF+k}, 16, v{vXF+k}")
            e(f"{ls}:")
        if i == P.POLL_AT:
            lw = g.label("Lw0"); e(f"s_cmp_lg_u32 {SW}, 0\n s_cbranch_scc1 {lw}\n {mload}\n {lw}:"); st["mark"] = ("kv", st["nk"])
        if i == P.POLL_USE:
            pre_issue(n, P.PRE)
            g.c("wave 0: true max / sum of this (batch, head) -> scale factors of the workgroup's waves")
            assert st["mark"] not in g.fifo and st["mark"][1] < st["nk"]
            lw = g.label("Lw0"); e(f"s_cmp_lg_u32 {SW}, 0\n s_cbranch_scc1 {lw}")
            tag_poll([vML+1, vML+3], mload, 2)
            e(f"s_mov_b32 exec_lo, 0xffff0000\n v_mov_b32 v{vML}, s52\n v_mov_b32 v{vML+2}, 0\n s_mov_b32 exec_lo, -1")
            e(f"v_mov_b32 v{vT}, v{vML}\n s_nop 1")
            wave_reduce(g, "v_max_f32", [vT])
            e(f"v_readlane_b32 s53, v{vT}, 63\n s_nop 1")
            e(f"v_subrev_f32 v{vML}, s53, v{vML}\n v_mul_f32 v{vML}, {f2u(LOG2E):#x}, v{vML}\n v_exp_f32 v{vML}, v{vML}\n s_nop 0\n v_mul_f32 v{vT}, v{vML}, v{vML+2}\n s_nop 1")
            wave_reduce(g, "v_add_f32", [vT])
            e(f"v_readlane_b32 s53, v{vT}, 63\n s_nop 1\n v_rcp_f32 v{vT}, s53\n s_lshl_b32 s55, {SS}, 2\n v_mul_f32 v{vML}, v{vML}, v{vT}")
            e(f"v_subrev_u32 v{vT}, s55, v{vLANE}\n v_lshlrev_b32 v{vT}, 2, v{vT}\n s_lshl_b64 exec, 15, s55")
            e(f"ds_write_b32 v{vT}, v{vML} offset:{L_F}\n s_mov_b64 exec, -1\n {lw}:")
            g.c("addresses for the tail")
            e(f"v_lshrrev_b32 v{vFA}, 3, v{vC}\n v_lshlrev_b32 v{vT+1}, 10, v{vFA}\n v_lshlrev_b32 v{vFA}, 3, v{vFA}")
            e(f"s_lshl_b32 s55, {SW}, 9\n v_add_u32 v{vOPW}, s55, v{vL16}")
            e(f"v_and_b32 v{vT}, 1, v{vC}\n v_lshl_add_u32 v{vT+1}, v{vT}, 8, v{vT+1}\n v_bfe_u32 v{vT+2}, v{vC}, 1, 2\n v_lshl_add_u32 v{vT+1}, v{vT+2}, 4, v{vT+1}")
            e(f"v_lshl_add_u32 v{vT+1}, v{vG}, 2, v{vT+1}\n s_lshl_b32 s55, {SW}, 6\n v_add_u32 v{vOPR}, s55, v{vT+1}")
            e(f"s_mul_i32 s55, {SW}, 2560\n v_lshlrev_b32 v{vT}, 5, v{vC}\n v_lshl_add_u32 v{vT}, v{vG}, 4, v{vT}\n v_add_u32 v{vOUW}, s55, v{vT}")
            for k in range(4):
                e(f"v_add_u32 v{vT}, {256*k}, v0\n v_lshlrev_b32 v{vGA+4+k}, 2, v{vT}\n v_lshrrev_b32 v{vT+1}, 2, v{vT}\n v_and_b32 v{vT}, 3, v{vT}")
                e(f"v_mad_u32_u24 v{vT+1}, v{vT+1}, 3, v{vT}\n v_min_u32 v{vGA+k}, 639, v{vT+1}\n v_lshlrev_b32 v{vGA+k}, 2, v{vGA+k}")
            e(f"s_movk_i32 s55, 639\n v_cmp_lt_u32 s[6:7], s55, v{vT+1}\n s_mov_b32 s4, 0x88888888\n s_mov_b32 s5, 0x88888888")
            g.c("final stage constants")
            e(f"v_min_u32 v{vPA}, 213, v0\n v_lshlrev_b32 v{vPA}, 4, v{vPA}\n v_mul_u32_u24 v{vT}, 3, v0")
            e(f"s_movk_i32 s55, 640\n v_cmp_gt_u32 s[56:57], s55, v{vT}\n s_movk_i32 s55, 639\n v_cmp_gt_u32 s[58:59], s55, v{vT}")
            e(f"s_mul_i32 s55, {SB}, 1280\n v_lshl_add_u32 v{vT}, v{vT}, 1, s55\n v_mov_b32 v{vT+1}, 0x7ffffff0")
            e(f"v_cndmask_b32 v{vO0}, v{vT+1}, v{vT}, s[56:57]\n v_cndmask_b32 v{vO1}, v{vT+1}, v{vT}, s[58:59]")
            e(f"s_lshl_b32 s55, {SW}, 3\n v_mov_b32 v{vFW}, s55\n v_mov_b32 v{vZ}, 0")
            e(f"s_lshl_b32 s55, {SB}, 15\n s_add_u32 s55, s55, {WS_ACC}\n s_add_u32 s44, s32, s55\n s_addc_u32 s45, s33, 0\n s_mov_b32 s46, {P.R*REP_STRIDE}")
            e("s_mov_b32 s48, s28\n s_mov_b32 s49, s29\n s_mov_b32 s50, 2560")
    assert st["nwo"] == 40 and st["nk"] == 2*NL and P.TAB_USE < P.POLL_USE and P.WO_START >= 0, st
    oacc = lambda t: vX + 4*t
    e("s_nop 6\n s_mov_b32 exec_hi, 0")
    e(f"ds_write_b128 v{vOPW}, {vr(vACC,4)} offset:{L_QP}\n s_mov_b64 exec, -1")
    g.wait(("wo", 39))
    e("s_waitcnt lgkmcnt(0)\n s_barrier")
    e(f"ds_read2_b32 {vr(vT,2)}, v{vOPR} offset0:0 offset1:128\n ds_read_b64 {vr(vT+2,2)}, v{vFA} offset:{L_F}")
    e(f"s_waitcnt lgkmcnt(0)\n v_mul_f32 v{vT}, v{vT}, v{vT+2}\n v_fmac_f32 v{vT}, v{vT+1}, v{vT+3}\n s_nop 1")
    e(f"v_add_f32_dpp v{vT}, v{vT}, v{vT} row_ror:8 {DPP}\n v_cvt_pk_bf16_f32 v{vT}, v{vT}, v{vT}\n s_nop 1")
    def abuild(ii):
        a = vA + 4*(ii & 1)
        for r in range(4): e(f"v_and_b32_dpp v{a+r}, v{vT}, v{vMK+r} row_newbcast:{ii} {DPP}")
    abuild(0); e("s_nop 1")
    for ii in range(8):
        a = vA + 4*(ii & 1)
        for t in range(5):
            e(f"v_mfma_f32_16x16x32_bf16 {vr(oacc(t),4)}, {vr(a,4)}, {ar(4*(5*ii+t),4)}, {'0' if ii == 0 else vr(oacc(t),4)}")
            if t == 1 and ii < 7: abuild(ii+1)
    e("s_nop 3\n s_mov_b32 exec_hi, 0")
    for t in range(5): e(f"ds_write_b128 v{vOUW}, {vr(oacc(t),4)} offset:{L_OUTP + t*512}")
    e("s_mov_b64 exec, -1\n s_waitcnt lgkmcnt(0)\n s_barrier")
    base64 = L_OUTP // 256
    for k in range(4):
        for p in range(2): e(f"ds_read2st64_b32 {vr(vT+4*k+2*p,2)}, v{vGA+k} offset0:{base64+20*p} offset1:{base64+20*p+10}")
    for k in range(4):
        r = vT+4*k
        e(f"s_waitcnt lgkmcnt({6-2*k})\n v_add_f32 v{r}, v{r}, v{r+1}\n v_add_f32 v{r+2}, v{r+2}, v{r+3}\n v_add_f32 v{r}, v{r}, v{r+2}")
        if k == 3: e(f"v_cndmask_b32 v{r}, v{r}, 0, s[6:7]")
        e(f"v_cndmask_b32 v{r}, v{r}, 1.0, s[4:5]\n buffer_atomic_add_f32 v{r}, v{vGA+4+k}, s[40:43], 0 offen sc1")
    stamp(g, 12)
    e(f"s_cmp_eq_u32 {SFIN}, 0\n s_cbranch_scc1 Ldone")
    PL = vX; H, N, Y = vT, vT+4, vT+8; N2 = vX+72
    le = g.label("Lep")
    g.c("past the tail barriers every workgroup's tag has been seen, so every workgroup has read the epoch word: advance it")
    e(f"s_cmp_lg_u32 s2, {FINAL_IDS[0]}\n s_cbranch_scc1 {le}\n s_cmp_lg_u32 {SW}, 3\n s_cbranch_scc1 {le}")
    e(f"v_mov_b32 v{vB}, {ST}\n s_mov_b64 exec, 1\n global_store_dword v{vZ}, v{vB}, {sWS} offset:{WS_E} sc1\n s_mov_b64 exec, -1\n {le}:")
    def tree(dst, regs):
        regs = list(regs)
        while len(regs) > 2:
            for a in range(0, len(regs) - 1, 2): e(f"v_add_f32 v{regs[a]}, v{regs[a]}, v{regs[a+1]}")
            regs = regs[0::2]
        e(f"v_add_f32 v{dst}, v{regs[0]}, v{regs[1]}")
    e(f"s_mov_b32 s3, {SPIN:#x}\n Lpoll:")
    for r in range(P.R):
        e(f"s_movk_i32 s55, {r*REP_STRIDE}\n buffer_load_dwordx4 {vr(PL+8*r,4)}, v{vPA}, s[44:47], s55 offen sc1\n buffer_load_dwordx4 {vr(PL+8*r+4,4)}, v{vZ}, s[44:47], s55 offen sc1")
    e("s_waitcnt vmcnt(0)")
    cs = [PL+4*k+3 for k in range(2*P.R)]
    e(f"v_min_f32 v{Y}, v{cs[0]}, v{cs[1]}")
    for k in range(2, len(cs), 2): e(f"v_min3_f32 v{Y}, v{cs[k]}, v{cs[k+1]}, v{Y}")
    e(f"v_cmp_gt_f32 vcc, {f2u(128.0/P.R):#x}, v{Y}")
    for k in range(3): tree(H+k, [PL+8*r+k for r in range(P.R)])
    tree(H+3, [PL+8*r+4 for r in range(P.R)])
    e("s_cbranch_vccz Lpdone\n s_sub_u32 s3, s3, 1\n s_cbranch_scc0 Lpoll\n Lpdone:")
    stamp(g, 13)
    bf16r_n(g, [H, H+1, H+2])
    for k in range(4): e(f"v_add_f32 v{H+k}, v{H+k}, v{vXF+k}")
    bf16r_n(g, [H, H+1, H+2])
    def ln_block(src, dst, piv, slot):
        s1, s2 = vT+12, vT+13; Z = vX+64
        for k in range(3): e(f"v_sub_f32 v{Y+k}, v{src+k}, v{piv}")
        e(f"v_cndmask_b32 v{Y}, 0, v{Y}, s[56:57]\n v_cndmask_b32 v{Y+1}, 0, v{Y+1}, s[58:59]\n v_cndmask_b32 v{Y+2}, 0, v{Y+2}, s[58:59]")
        e(f"v_add_f32 v{s1}, v{Y}, v{Y+1}\n v_mul_f32 v{s2}, v{Y}, v{Y}\n v_fmac_f32 v{s2}, v{Y+1}, v{Y+1}\n v_add_f32 v{s1}, v{s1}, v{Y+2}\n v_fmac_f32 v{s2}, v{Y+2}, v{Y+2}\n s_nop 0")
        wave_reduce(g, "v_add_f32", [s1, s2]); g.L.pop()
        e(f"s_mov_b32 exec_lo, 0\n s_mov_b32 exec_hi, 0x80000000\n ds_write_b64 v{vFW}, {vr(s1,2)} offset:{L_FIN + slot*32}\n s_mov_b64 exec, -1")
        e("s_waitcnt lgkmcnt(0)\n s_barrier")
        e(f"ds_read_b128 {vr(Z,4)}, v{vZ} offset:{L_FIN + slot*32}\n ds_read_b128 {vr(Z+4,4)}, v{vZ} offset:{L_FIN + slot*32 + 16}\n s_waitcnt lgkmcnt(0)")
        e(f"v_pk_add_f32 {vr(Z,2)}, {vr(Z,2)}, {vr(Z+2,2)}\n v_pk_add_f32 {vr(Z+4,2)}, {vr(Z+4,2)}, {vr(Z+6,2)}\n v_pk_add_f32 {vr(Z,2)}, {vr(Z,2)}, {vr(Z+4,2)}")
        e(f"v_mul_f32 v{Y}, {f2u(1.0/640):#x}, v{Z}\n v_mul_f32 v{Y+1}, {f2u(1.0/640):#x}, v{Z+1}")
        e(f"v_fma_f32 v{Y+1}, -v{Y}, v{Y}, v{Y+1}\n v_add_f32 v{Y}, v{Y}, v{piv}\n v_max_f32 v{Y+1}, 0, v{Y+1}\n v_mov_b32 v{Y+2}, v{Y}")
        bf16r_n(g, [Y+1, Y])
        e(f"v_add_f32 v{Y+1}, {f2u(1e-5):#x}, v{Y+1}")
        for k in range(3): e(f"v_sub_f32 v{dst+k}, v{src+k}, v{Y}")
        bf16r(g, Y+1, Y+1)
        e(f"v_sqrt_f32 v{Y+1}, v{Y+1}")
        bf16r_n(g, [dst, dst+1, dst+2])
        bf16r(g, Y+1, Y+1)
        e(f"v_rcp_f32 v{Y+1}, v{Y+1}\n v_sub_f32 v{Y+2}, v{Y+2}, v{Y}")
        for k in range(3): e(f"v_mul_f32 v{dst+k}, v{dst+k}, v{Y+1}")
        e(f"v_mul_f32 v{dst+3}, v{Y+2}, v{Y+1}")
        bf16r_n(g, [dst, dst+1, dst+2])
    ln_block(H, N, H+3, 0)
    ln_block(N, N2, N+3, 1)
    I = vT+8
    for k in range(3): e(f"v_bfe_u32 v{I+k}, v{N2+k}, 16, 15")
    for k in range(3): e(f"v_subrev_u32 v{I+k}, {EMIN<<7}, v{I+k}\n v_ashrrev_i32 v{N+k}, 31, v{N2+k}")
    e(f"v_max3_u32 v{vT+12}, v{I}, v{I+1}, v{I+2}\n s_movk_i32 s55, 3071")
    for k in range(3): e(f"v_min_u32 v{I+k}, s55, v{I+k}\n v_and_b32 v{N+k}, 3072, v{N+k}")
    e(f"v_cmp_lt_u32 vcc, s55, v{vT+12}" if P.XLIM == 3071 else f"v_cmp_lt_u32 vcc, {P.XLIM}, v{vT+12}")
    for k in range(3): e(f"v_add_u32 v{I+k}, v{I+k}, v{N+k}")
    for k in range(3): e(f"v_and_b32 v{N+k}, 2047, v{I+k}\n v_lshrrev_b32 v{I+k}, 10, v{I+k}")
    for k in range(3): e(f"v_and_b32 v{I+k}, 6, v{I+k}")
    for k in range(3): e(f"v_lshl_add_u32 v{I+k}, v{N+k}, 3, v{I+k}")
    for k in range(3): e(f"ds_read_u16 v{I+k}, v{I+k} offset:{L_TAB}")
    e("s_and_b64 vcc, vcc, s[56:57]\n s_cbranch_scc1 Lslow\n s_waitcnt lgkmcnt(0)\n Lback:")
    for k in range(3): e(f"v_lshlrev_b32 v{I+k}, 16, v{I+k}")
    for k in range(3): e(f"v_add_f32 v{I+k}, v{I+k}, v{H+k}")
    for k in range(3): e(f"v_cvt_pk_bf16_f32 v{I+k}, v{I+k}, v{I+k}")
    e(f"buffer_store_short v{I}, v{vO0}, s[48:51], 0 offen\n buffer_store_short v{I+1}, v{vO1}, s[48:51], 0 offen offset:2\n buffer_store_short v{I+2}, v{vO1}, s[48:51], 0 offen offset:4")
    e("Ldone:")
    if P.DIAG:
        stamp(g, 14)
        e(f"s_lshl_b32 s55, s2, 3\n s_add_u32 s55, s55, {SW}\n s_lshl_b32 s55, s55, 6\n s_add_u32 s55, s55, {WS_DIAG}\n s_getreg_b32 s3, hwreg(HW_REG_XCC_ID)\n s_waitcnt vmcnt(0) lgkmcnt(0)")
        e(f"v_mov_b32 v{vT}, s55\n s_mov_b64 exec, 1")
        for k in range(15): e(f"v_mov_b32 v{vR+k}, s{66+2*k}")
        e(f"v_mov_b32 v{vR+15}, s3")
        for k in range(4): e(f"global_store_dwordx4 v{vT}, {vr(vR+4*k,4)}, {sWS} offset:{16*k}")
    e("Lend:\n s_endpgm")
    SV = vR
    e("Lslow:\n s_waitcnt lgkmcnt(0)\n s_mov_b64 s[52:53], vcc")
    for k in range(16): e(f"v_mov_b32 v{SV+k}, v{vT+k}")
    e("Lslow1:\n s_ff1_i32_b64 s55, s[52:53]\n s_bitset0_b64 s[52:53], s55\n s_mov_b32 m0, s55\n s_nop 1")
    for k in range(3): e(f"v_readlane_b32 s{56+k}, v{N2+k}, m0")
    for k in range(4): e(f"v_mov_b32 v{vTA+k}, 0")
    e(f"v_lshlrev_b32 v{vTL}, 2, v{vLANE}\n s_mov_b32 s3, 13\n s_mov_b32 s59, 0")
    e("Lslow2:\n s_call_b64 s[30:31], LtabA\n s_call_b64 s[30:31], LtabB\n s_sub_u32 s3, s3, 1\n s_cbranch_scc0 Lslow2")
    wave_reduce(g, "v_add_f32", [vTA, vTA+1, vTA+2])
    tab_finish(g, vTA, vT+10, vB2)
    e(f"s_nop 0\n v_readlane_b32 s56, v{vT+10}, 63\n v_readlane_b32 s58, v{vT+12}, 63\n s_nop 3\n s_lshr_b32 s57, s56, 16\n s_and_b32 s56, s56, 0xffff\n s_and_b32 s58, s58, 0xffff")
    for k in range(3): e(f"v_writelane_b32 v{SV+8+k}, s{56+k}, m0")
    e("s_cmp_lg_u64 s[52:53], 0\n s_cbranch_scc1 Lslow1")
    for k in range(16): e(f"v_mov_b32 v{vT+k}, v{SV+k}")
    e("s_branch Lback")
    w2, wl, wh, bl, cc = vGA, vGA+1, vGA+2, vGAp, vGAp+2
    K0 = (2/3.141592653589793)**0.5; C1 = -2*K0*LOG2E; C3 = C1*0.044715
    for part in range(3):
        e(f"Ltab{'ABC'[part]}:")
        if part == 0:
            e(f"ds_read_b32 v{vT}, v{vTL} offset:{L_MW}\n ds_read_b32 v{vT+1}, v{vTL} offset:{L_MW+4096}\n ds_read_b32 v{w2}, v{vTL} offset:{L_MW+8192}")
            e(f"v_add_u32 v{vTL}, 256, v{vTL}\n v_mov_b32 v{cc+1}, {f2u(C1):#x}\n v_mov_b32 v{cc}, {f2u(C3):#x}\n s_waitcnt lgkmcnt(0)")
            e(f"v_lshlrev_b32 v{wl}, 16, v{vT}\n v_and_b32 v{wh}, 0xffff0000, v{vT}\n v_lshlrev_b32 v{bl}, 16, v{vT+1}\n v_and_b32 v{bl+1}, 0xffff0000, v{vT+1}")
        S_ = [(vT+4*j, vT+4*j+2, 56+2*part+j, vTA+2*part+j) for j in range(2)]
        for U, Z, s_, _ in S_: e(f"v_mul_f32 v{U}, s{s_}, v{wl}\n v_mul_f32 v{U+1}, s{s_}, v{wh}")
        for U, Z, s_, _ in S_: e(f"v_cvt_pk_bf16_f32 v{U}, 0, v{U}\n v_cvt_pk_bf16_f32 v{U+1}, 0, v{U+1}")
        for U, Z, s_, _ in S_: e(f"v_pk_add_f32 {vr(U,2)}, {vr(U,2)}, {vr(bl,2)}")
        for U, Z, s_, _ in S_: e(f"v_cvt_pk_bf16_f32 v{U}, 0, v{U}\n v_cvt_pk_bf16_f32 v{U+1}, 0, v{U+1}")
        for U, Z, s_, _ in S_: e(f"v_pk_mul_f32 {vr(Z,2)}, {vr(U,2)}, {vr(U,2)}")
        for U, Z, s_, _ in S_: e(f"v_fma_f32 v{Z}, v{Z}, v{cc}, v{cc+1}\n v_fma_f32 v{Z+1}, v{Z+1}, v{cc}, v{cc+1}")
        for U, Z, s_, _ in S_: e(f"v_pk_mul_f32 {vr(Z,2)}, {vr(Z,2)}, {vr(U,2)}")
        for U, Z, s_, _ in S_: e(f"v_exp_f32 v{Z}, v{Z}\n v_exp_f32 v{Z+1}, v{Z+1}")
        for U, Z, s_, _ in S_: e(f"v_add_f32 v{Z}, 1.0, v{Z}\n v_add_f32 v{Z+1}, 1.0, v{Z+1}")
        for U, Z, s_, _ in S_: e(f"v_rcp_f32 v{Z}, v{Z}\n v_rcp_f32 v{Z+1}, v{Z+1}")
        for U, Z, s_, _ in S_: e(f"v_pk_mul_f32 {vr(Z,2)}, {vr(Z,2)}, {vr(U,2)}")
        for U, Z, s_, acc in S_: e(f"v_cvt_pk_bf16_f32 v{U}, v{Z}, v{Z+1}")
        for U, Z, s_, acc in S_: e(f"v_dot2_f32_bf16 v{acc}, v{U}, v{w2}, v{acc}")
        e("s_nop 1\n s_setpc_b64 s[30:31]")
    return g

HEADER = open("cdna_kernels/" + NAME + ".s.ref").read().split("; Override launch")[0]
DOC = """;
"""

def emit():
    g = gen()
    acc = (g.nv + 3)//4*4; assert acc <= 256
    out = HEADER + f"; @launch grid=(256,1,1) block=(256,1,1) lds={LDS_BYTES}\n" + DOC
    out += '.amdgcn_target "amdgcn-amd-amdhsa--gfx950"\n.text\n'
    out += f".globl {KN}\n.p2align 8\n.type {KN},@function\n" + "\n".join(g.L) + "\n"
    out += f""".section .rodata,"a"
.p2align 6
.amdhsa_kernel {KN}
  .amdhsa_next_free_vgpr {acc + 160}
  .amdhsa_next_free_sgpr 96
  .amdhsa_accum_offset {acc}
  .amdhsa_group_segment_fixed_size 0
  .amdhsa_kernarg_size 104
  .amdhsa_user_sgpr_count 2
  .amdhsa_user_sgpr_kernarg_segment_ptr 1
  .amdhsa_system_sgpr_workgroup_id_x 1
  .amdhsa_float_denorm_mode_32 3
.end_amdhsa_kernel
"""
    return out, g

if __name__ == "__main__":
    ap = argparse.ArgumentParser()
    ap.add_argument("-o", default="cdna_kernels/" + NAME + ".s")
    ap.add_argument("set", nargs="*")
    a = ap.parse_args()
    for kv in a.set:
        k, v = kv.split("=", 1); old = getattr(P, k)
        setattr(P, k, v.replace("_", " ") if isinstance(old, str) else int(v))
    out, g = emit()
    open(a.o, "w").write(out)
    print("vgprs", g.nv, "lines", len(g.L))
```

```python
import sys, struct, argparse

NAME = "sequential_preLN__mha_block_cached__mixer_token_mlp__decode"
KN = NAME + "_kernel"
def f2u(x): return struct.unpack("<I", struct.pack("<f", x))[0]

class P:
    D = 20
    NPRO = 40
    W = 6
    WEND = 5
    ENDAT = 136
    WPRO = 7
    LAG = 16
    CU_N = 1
    CU_D = 2
    PRE = 4
    STRIDE = 5
    ROT = 8
    ROTJ = 16
    ROTX = 6
    R = 4
    POL = "nt"
    K0 = 4
    KFIRST = 12
    KX1 = 0
    KX2 = 4
    KX3 = 8
    QPOLL_AT = 29
    QPOLL_USE = 35
    WO_START = 48
    WO_EVERY = 2
    TABK0 = 2
    TABKE = 3
    TPRE = 0
    TAB_AT = 48
    TAB_USE = 72
    POLL_AT = 80
    POLL_USE = 104
    MIXE = 1
    TABP = 11
    PAIR = 0
    OTOUCH = 0
    OPOL = ""
    DIAG = 0
    XLIM = 3071
    XMM = 0

WS_E, WS_ZF, WS_ML, WS_TAB, WS_ACC, WS_QG, WS_DIAG = 0x0, 0x1000, 0x2000, 0x10000, 0x20000, 0x40000, 0x100000
REP_STRIDE, NGRAN = 3584, 214
L_QP, L_MW, L_Q1, L_OUTP, L_TAB, L_FIN = 0, 4096, 16384, 16384, 36864, 53248
L_F = L_FIN + 128
L_AGG = L_FIN + 256
LDS_BYTES = 57344
EMIN = 108
LOG2E = 1.4426950408889634
FINAL_IDS = (0, 34)
DPP = "row_mask:0xf bank_mask:0xf"
SPIN = 0x40000
NL = 128

class G:
    def __init__(s): s.L = []; s.fifo = []; s.lab = 0; s.nv = 0
    def e(s, t):
        for x in t.split("\n"):
            x = x.strip()
            if x: s.L.append(("    " if not x.endswith(":") else "") + x)
    def c(s, t): s.L.append("    ; " + t)
    def label(s, p="L"): s.lab += 1; return f"{p}{s.lab}"
    def v(s, n=1, align=1):
        s.nv = (s.nv + align - 1)//align*align
        r = s.nv; s.nv += n; return r
    def vm(s, text, tag):
        s.e(text); s.fifo.append(tag); assert len(s.fifo) <= 63
    def wait(s, tag):
        if tag not in s.fifo: return
        i = s.fifo.index(tag); n = len(s.fifo) - 1 - i
        s.e(f"s_waitcnt vmcnt({n})"); del s.fifo[:i+1]
    def cap(s, W):
        kv = [t for t in s.fifo if t[0] == "kv"]
        if len(kv) >= W: s.wait(kv[-W])

def vr(r, n): return f"v[{r}:{r+n-1}]"
def ar(r, n): return f"a[{r}:{r+n-1}]"

def wave_reduce(g, op, regs, nsteps=6):
    steps = [f"row_ror:8 {DPP}", f"row_ror:4 {DPP}", f"row_ror:2 {DPP}", f"row_ror:1 {DPP}",
             "row_bcast:15 row_mask:0xa bank_mask:0xf", "row_bcast:31 row_mask:0xc bank_mask:0xf"]
    for st in steps[:nsteps]:
        for r in regs: g.e(f"{op}_dpp v{r}, v{r}, v{r} {st}")
        pad = 2 - (len(regs) - 1)
        if pad > 0: g.e(f"s_nop {pad-1}")

def bf16r(g, d, s_): g.e(f"v_cvt_pk_bf16_f32 v{d}, 0, v{s_}")
def bf16r_n(g, regs):
    for r in regs: bf16r(g, r, r)

def stamp(g, k, mode=0):
    if P.DIAG and (mode == 0 or mode == P.DIAG): g.e(f"s_memrealtime s[{66+2*k}:{67+2*k}]")

def tab_finish(g, src, dst, vB2):
    bf16r_n(g, [src, src+1, src+2])
    for k in range(3): g.e(f"v_add_f32 v{src+k}, v{src+k}, v{vB2}")
    g.e(f"v_cvt_pk_bf16_f32 v{dst}, v{src}, v{src+1}\n v_cvt_pk_bf16_f32 v{dst+2}, v{src+2}, v{src+2}")

def gen():
    g = G(); e = g.e
    D = P.D; NX = P.NPRO - D; assert NX <= 20
    g.v(); vLANE = g.v(); vL16 = g.v(); vOFF = g.v()
    vMK = g.v(4); vA = g.v(8, 2); vQ = g.v(4, 2); vS = g.v(8, 2); vACC = g.v(4, 2)
    vB = g.v(8, 2); vT = g.v(16, 2); vML = g.v(8, 2); vMISC = g.v(8, 2); vGA = g.v(8, 2); vGAp = vGA + 4
    vTA = g.v(6); vTL = g.v(); vB2 = g.v(); vXF = g.v(4); vWOO = g.v(); vDT = g.v(2)
    vR = g.v(4*D, 2); vX = g.v(80, 2)
    def ring(i):
        if i < D: return vR + 4*i
        if i < D + NX: return vX + 4*(i - D)
        return vR + 4*((i - D - NX) % D)
    def slot_free_after(i):
        if i < D + NX: return -1
        return i - D - NX if i - D - NX < D else i - D
    sX, sK, sV, sWO, sB2, sWS = "s[8:9]", "s[10:11]", "s[12:13]", "s[16:17]", "s[26:27]", "s[32:33]"
    SW, SH, SB, SS, ST, SFIN = "s34", "s35", "s36", "s37", "s38", "s39"
    vG, vC = vMISC, vMISC+1
    st = {"nk": 0, "nwo": 0, "ab": 0, "tab": 42}
    def kv_issue():
        i = st["nk"]; st["nk"] += 1
        g.vm(f"global_load_dwordx4 {vr(ring(i),4)}, v{vOFF}, {sK if i < NL else sV} nt", ("kv", i))
        e(f"v_add_u32 v{vOFF}, {P.STRIDE*1024}, v{vOFF}\n v_and_b32 v{vOFF}, {NL*1024-1:#x}, v{vOFF}")
    def after_consume(n):
        if st["nk"] < 2*NL and slot_free_after(st["nk"]) <= n and st["nk"] <= n + max(P.LAG, P.NPRO - n*P.CU_N//P.CU_D):
            g.cap(P.W if st["nk"] < P.ENDAT else P.WEND); kv_issue()
        if n >= P.WO_START and (n - P.WO_START) % P.WO_EVERY == 0 and st["nwo"] < 40:
            k = st["nwo"]; st["nwo"] += 1; t = k % 5
            g.vm(f"global_load_dwordx4 {ar(4*k,4)}, v{vWOO}, {sWO} offset:{256*t} {P.POL}", ("wo", k))
            if t == 4: e(f"v_add_u32 v{vWOO}, {4*1280}, v{vWOO}")
    def pre_issue(n, cnt):
        for _ in range(cnt):
            if st["nk"] < 2*NL and slot_free_after(st["nk"]) <= n: kv_issue()
    def rowmac(acc, src, lane, data, build=True, first=False):
        if build:
            st["ab"] ^= 1; a = vA + 4*st["ab"]
            for r in range(4): e(f"v_and_b32_dpp v{a+r}, v{src}, v{vMK+r} row_newbcast:{lane} {DPP}")
            e("s_nop 1")
        a = vA + 4*st["ab"]
        e(f"v_mfma_f32_16x16x32_bf16 {vr(acc,4)}, {vr(a,4)}, {data}, {'0' if first else vr(acc,4)}")
    def tag_poll(regs, reload, sleep):
        lr = g.label("Lr"); lo = g.label("Lo")
        e(f"s_mov_b32 s3, {SPIN:#x}\n {lr}:\n v_xor_b32 v{vT}, {ST}, v{regs[0]}")
        for r in regs[1:]: e(f"v_xor_b32 v{vT+1}, {ST}, v{r}\n v_or_b32 v{vT}, v{vT}, v{vT+1}")
        e(f"v_cmp_ne_u32 vcc, 0, v{vT}\n s_cbranch_vccz {lo}\n s_sub_u32 s3, s3, 1\n s_cbranch_scc1 {lo}\n s_sleep {sleep}")
        e(reload); e(f"s_waitcnt vmcnt(0)\n s_branch {lr}\n {lo}:")

    e(f"{KN}:\n s_cmp_ge_u32 s2, 256\n s_cbranch_scc1 Lend")
    stamp(g, 0)
    e("s_load_dwordx16 s[8:23], s[0:1], 0\n s_load_dwordx8 s[24:31], s[0:1], 64\n s_load_dwordx2 s[32:33], s[0:1], 96")
    e(f"v_lshrrev_b32 v{vT}, 6, v0\n v_and_b32 v{vLANE}, 63, v0\n v_readfirstlane_b32 {SW}, v{vT}\n v_lshlrev_b32 v{vL16}, 4, v{vLANE}")
    g.c("id = 8j+x : head = 4x + (j>>3), batch = (j>>2)&1, split = j&3")
    e(f"s_and_b32 s52, s2, 7\n s_lshl_b32 s52, s52, 2\n s_lshr_b32 s53, s2, 6\n s_add_u32 {SH}, s52, s53")
    e(f"s_bfe_u32 {SB}, s2, 0x10005\n s_bfe_u32 {SS}, s2, 0x20003")
    e(f"s_lshl_b32 s52, {SB}, 5\n s_add_u32 s52, s52, {SH}\n s_lshl_b32 s54, s52, 2\n s_add_u32 s54, s54, {SS}")
    e(f"s_lshl_b32 s53, s54, 19\n s_lshl_b32 s55, {SW}, 17\n s_add_u32 s53, s53, s55")
    e(f"s_mul_i32 s55, {SW}, {P.ROT*1024}\n s_lshr_b32 s56, s2, 3\n s_mul_i32 s56, s56, {P.ROTJ*1024}\n s_add_u32 s55, s55, s56")
    e(f"s_and_b32 s56, s2, 7\n s_mul_i32 s56, s56, {P.ROTX*1024}\n s_add_u32 s55, s55, s56\n v_add_u32 v{vOFF}, s55, v{vL16}\n v_and_b32 v{vOFF}, {NL*1024-1:#x}, v{vOFF}")
    e(f"s_mov_b32 {SFIN}, 0\n s_cmp_eq_u32 s2, {FINAL_IDS[0]}\n s_cselect_b32 {SFIN}, 1, {SFIN}\n s_cmp_eq_u32 s2, {FINAL_IDS[1]}\n s_cselect_b32 {SFIN}, 1, {SFIN}")
    e(f"v_lshrrev_b32 v{vG}, 4, v{vLANE}\n v_and_b32 v{vC}, 15, v{vLANE}")
    g.c("q work: head id>>3, rows 80*(id&7)..+80; wave w takes row quads w, w+4, .. w+16")
    vWQO, vXO, vXQ = vMISC+2, vMISC+3, vGA
    e(f"s_and_b32 s55, s2, 7\n s_mul_i32 s55, s55, 80\n s_lshl_b32 s56, {SW}, 2\n s_add_u32 s55, s55, s56\n v_add_u32 v{vWQO}, s55, v{vG}")
    e(f"v_lshrrev_b32 v{vT}, 3, v{vC}\n v_mul_u32_u24 v{vT}, 640, v{vT}\n v_add_lshl_u32 v{vXQ}, v{vT}, v{vWQO}, 1")
    e(f"v_lshlrev_b32 v{vWQO}, 13, v{vWQO}\n v_lshl_add_u32 v{vWQO}, v{vC}, 4, v{vWQO}\n s_lshr_b32 s56, s2, 3\n s_lshl_b32 s56, s56, 8\n v_add_u32 v{vWQO}, s56, v{vWQO}")
    e(f"v_lshrrev_b32 v{vT}, 5, v{vLANE}\n v_mul_u32_u24 v{vT}, 1280, v{vT}\n v_and_b32 v{vXO}, 31, v{vLANE}\n v_lshl_add_u32 v{vXO+1}, v{vXO}, 4, v{vT}\n v_lshl_add_u32 v{vXO}, v{vXO}, 3, v{vT}")
    e(f"s_mov_b32 s51, 0x20000\n s_mov_b32 s47, 0x20000\n s_mov_b32 s43, 0x20000")
    e(f"s_lshl_b32 s55, {SB}, 15\n s_add_u32 s55, s55, {WS_ACC}\n s_mov_b32 s46, {P.R*REP_STRIDE}")
    e("s_waitcnt lgkmcnt(0)")
    stamp(g, 1)
    e("s_add_u32 s10, s10, s53\n s_addc_u32 s11, s11, 0\n s_add_u32 s44, s32, s55\n s_addc_u32 s45, s33, 0")
    lz = g.label("Lnz")
    e(f"s_cmp_eq_u32 {SFIN}, 0\n s_cbranch_scc1 {lz}")
    e(f"v_mov_b32 v{vT+4}, 0\n v_mov_b32 v{vT+5}, 0\n v_mov_b32 v{vT+6}, 0\n v_mov_b32 v{vT+7}, 0\n v_lshlrev_b32 v{vT}, 4, v0")
    for k in range((P.R*REP_STRIDE + 4095)//4096):
        e(f"s_movk_i32 s55, {k*4096}\n buffer_store_dwordx4 {vr(vT+4,4)}, v{vT}, s[44:47], s55 offen sc1")
    e(f"{lz}:")
    for _ in range(P.K0): kv_issue()
    vXD, vWQ, X = vX + 28, vX + 40, vX + 60
    assert P.KFIRST + P.KX1 + P.KX2 <= D + 7
    g.vm(f"global_load_dwordx4 {vr(vXD,4)}, v{vXO+1}, {sX}", ("x", 0))
    g.vm(f"global_load_dwordx4 {vr(vXD+4,4)}, v{vXO+1}, {sX} offset:512", ("x", 1))
    g.vm(f"global_load_dwordx2 {vr(vXD+8,2)}, v{vXO}, {sX} offset:1024", ("x", 2))
    for k in range(5):
        g.vm(f"global_load_dwordx4 {vr(vWQ+4*k,4)}, v{vWQO}, s[14:15] {P.POL}", ("wq", k))
        if k < 4: e(f"v_add_u32 v{vWQO}, {16*8192:#x}, v{vWQO}")
    for k in [1, 2, 3, 4, 0]: g.vm(f"global_load_ushort v{vXQ+k}, v{vXQ}, {sX} offset:{32*k}", ("xq", k))
    while st["nk"] < P.KFIRST: kv_issue()
    e(f"s_load_dword {ST}, {sWS}, {WS_E}\n s_add_u32 s12, s12, s53\n s_addc_u32 s13, s13, 0")
    g.c("operand masks: lane (g,i) owns element i&7 of its 8-element slab")
    e(f"v_bfe_u32 v{vT}, v{vC}, 1, 2\n v_and_b32 v{vT+1}, 1, v{vC}\n v_lshlrev_b32 v{vT+1}, 4, v{vT+1}\n v_mov_b32 v{vT+2}, 0xffff\n v_lshlrev_b32 v{vT+1}, v{vT+1}, v{vT+2}")
    for r in range(4): e(f"v_cmp_eq_u32 vcc, {r}, v{vT}\n s_nop 1\n v_cndmask_b32 v{vMK+r}, 0, v{vT+1}, vcc")
    assert P.R == 4
    e(f"s_mul_i32 s55, {SS}, {REP_STRIDE}\n s_add_u32 s40, s44, s55\n s_addc_u32 s41, s45, 0\n s_mov_b32 s42, {NGRAN*16}")
    e("s_mov_b32 s4, 0\n s_mov_b32 s5, -1\n s_mov_b32 s6, 0xff00ff00\n s_mov_b32 s7, 0xff00ff00")
    e(f"s_lshl_b32 s55, {SH}, 7\n s_lshl_b32 s53, {SW}, 5\n s_add_u32 s55, s55, s53\n v_add_u32 v{vWOO}, s55, v{vG}")
    e(f"v_mul_u32_u24 v{vWOO}, 1280, v{vWOO}\n v_lshl_add_u32 v{vWOO}, v{vC}, 4, v{vWOO}")
    e(f"v_mov_b32 v{vT}, 0\n ds_write_b32 v{vT}, v{vT} offset:{L_AGG+256}")
    g.c("LN(x) statistics for both batches (lanes 0-31 batch 0, lanes 32-63 batch 1)")
    g.wait(("x", 2)); stamp(g, 4, 3)
    for _ in range(P.KX1): kv_issue()
    for k in range(10): e(f"v_lshlrev_b32 v{X+2*k}, 16, v{vXD+k}\n v_and_b32 v{X+2*k+1}, 0xffff0000, v{vXD+k}")
    e(f"v_readlane_b32 s55, v{X}, 0\n v_readlane_b32 s56, v{X}, 32\n s_nop 0\n v_mov_b32 v{vT}, s55\n v_mov_b32 v{vT+1}, s56")
    e(f"v_cndmask_b32 v{vT+2}, v{vT}, v{vT+1}, s[4:5]\n v_cndmask_b32 v{vT+3}, v{vT}, v{vT+1}, s[6:7]")
    for k in range(20): e(f"v_sub_f32 v{X+k}, v{X+k}, v{vT+2}")
    S1, S2, M_, V_ = vT+10, vT+11, vT+12, vT+13
    e(f"v_add_f32 v{S1}, v{X}, v{X+1}\n v_mul_f32 v{S2}, v{X}, v{X}\n v_fmac_f32 v{S2}, v{X+1}, v{X+1}")
    for k in range(2, 20): e(f"v_add_f32 v{S1}, v{S1}, v{X+k}\n v_fmac_f32 v{S2}, v{X+k}, v{X+k}")
    e("s_nop 1")
    wave_reduce(g, "v_add_f32", [S1, S2], 5)
    e(f"v_readlane_b32 s55, v{S1}, 31\n v_readlane_b32 s56, v{S1}, 63\n v_readlane_b32 s57, v{S2}, 31\n v_readlane_b32 s58, v{S2}, 63")
    e(f"v_mov_b32 v{vT}, s55\n v_mov_b32 v{vT+1}, s56\n v_mov_b32 v{vT+4}, s57\n v_mov_b32 v{vT+5}, s58")
    e(f"v_cndmask_b32 v{M_}, v{vT}, v{vT+1}, s[6:7]\n v_cndmask_b32 v{V_}, v{vT+4}, v{vT+5}, s[6:7]")
    e(f"v_mul_f32 v{M_}, {f2u(1.0/640):#x}, v{M_}\n v_mul_f32 v{V_}, {f2u(1.0/640):#x}, v{V_}")
    e(f"v_fma_f32 v{V_}, -v{M_}, v{M_}, v{V_}\n v_add_f32 v{M_}, v{vT+3}, v{M_}\n v_max_f32 v{V_}, 0, v{V_}")
    bf16r_n(g, [M_, V_])
    e(f"v_add_f32 v{V_}, {f2u(1e-5):#x}, v{V_}"); bf16r(g, V_, V_)
    e(f"v_sqrt_f32 v{V_}, v{V_}\n s_nop 0"); bf16r(g, V_, V_)
    e(f"v_rcp_f32 v{V_}, v{V_}\n s_nop 0")
    MW = [vS, vS+4, vQ]
    def mix_load():
        g.c("mixer weights: wave w stages 1KB chunk w of w1, b1, w2 (zero past 3456 B)")
        e(f"s_mov_b32 s50, 3456\n s_lshl_b32 s55, {SW}, 10\n v_add_u32 v{vDT}, s55, v{vL16}")
        for a, sp in enumerate([20, 22, 24]):
            e(f"s_mov_b32 s48, s{sp}\n s_mov_b32 s49, s{sp+1}")
            g.vm(f"buffer_load_dwordx4 {vr(MW[a],4)}, v{vL16}, s[48:51], s55 offen {P.POL}", ("mw", a))
        e(f"v_mov_b32 v{vB2}, 0")
        g.vm(f"global_load_ushort v{vB2}, v{vB2}, {sB2}", ("b2", 0))
    def mix_store():
        g.wait(("b2", 0))
        e(f"v_lshlrev_b32 v{vB2}, 16, v{vB2}")
        for a in range(3): e(f"ds_write_b128 v{vDT}, {vr(MW[a],4)} offset:{L_MW + 4096*a}")
    g.wait(("xq", 0)); stamp(g, 5, 3)
    if P.MIXE: mix_load()
    for _ in range(P.KX2): kv_issue()
    for k in range(5):
        r = vXQ + k
        e(f"v_lshlrev_b32 v{r}, 16, v{r}\n v_sub_f32 v{r}, v{r}, v{M_}"); bf16r(g, r, r)
        e(f"v_mul_f32 v{r}, v{r}, v{V_}\n v_cvt_pk_bf16_f32 v{r}, v{r}, v{r}")
        a_ = vA + 4*(k & 1)
        for j in range(4): e(f"v_and_b32 v{a_+j}, v{r}, v{vMK+j}")
        e(f"s_nop 1\n v_mfma_f32_16x16x32_bf16 {vr(vACC,4)}, {vr(a_,4)}, {vr(vWQ+4*k,4)}, {vr(vACC,4) if k else '0'}")
    stamp(g, 2)
    e(f"s_lshl_b32 s55, {SW}, 10\n v_add_u32 v{vT}, s55, v{vL16}\n v_and_b32 v{vT+3}, 31, v{vLANE}\n v_lshrrev_b32 v{vT+2}, 5, v{vLANE}")
    e(f"s_lshl_b32 s55, {SW}, 8\n v_lshl_add_u32 v{vT+1}, v{vT+3}, 3, s55\n v_lshl_add_u32 v{vT+1}, v{vT+2}, 11, v{vT+1}\n s_nop 0")
    e(f"ds_write_b128 v{vT}, {vr(vACC,4)} offset:{L_Q1}")
    for _ in range(P.KX3): kv_issue()
    if P.MIXE: mix_store()
    e("s_waitcnt lgkmcnt(0)\n s_barrier")
    stamp(g, 6, 3)
    e(f"s_mul_i32 {ST}, {ST}, 1664525\n s_add_u32 {ST}, {ST}, 1013904223")
    g.c("sum the four partials; every wave hands over 64 of the 256 values: QG[id>>3][batch][id&7]")
    e(f"ds_read_b64 {vr(vT+8,2)}, v{vT+1} offset:{L_Q1}\n ds_read_b64 {vr(vT+10,2)}, v{vT+1} offset:{L_Q1+1024}")
    e(f"s_lshr_b32 s55, s2, 3\n s_lshl_b32 s55, s55, 1\n s_lshr_b32 s56, {SW}, 1\n s_add_u32 s55, s55, s56\n s_lshl_b32 s55, s55, 3\n s_and_b32 s56, s2, 7\n s_add_u32 s55, s55, s56")
    e(f"s_lshl_b32 s55, s55, 10\n s_and_b32 s56, {SW}, 1\n s_lshl_b32 s56, s56, 9\n s_add_u32 s55, s55, s56\n s_add_u32 s55, s55, {WS_QG}")
    e(f"v_lshl_add_u32 v{vT+2}, v{vT+3}, 4, s55\n v_mov_b32 v{vT+5}, {ST}\n v_mov_b32 v{vT+7}, {ST}\n s_waitcnt lgkmcnt(0)")
    e(f"v_add_f32 v{vT+4}, v{vT+8}, v{vT+10}\n v_add_f32 v{vT+6}, v{vT+9}, v{vT+11}\n v_mov_b32 v{vT+8}, v{vT+4}\n v_mov_b32 v{vT+9}, v{vT+6}\n s_nop 1")
    e(f"v_permlane32_swap_b32 v{vT+4}, v{vT+8}\n v_permlane32_swap_b32 v{vT+6}, v{vT+9}\n v_add_f32 v{vT+4}, v{vT+4}, v{vT+8}\n v_add_f32 v{vT+6}, v{vT+6}, v{vT+9}")
    e("s_mov_b32 exec_hi, 0")
    g.vm(f"global_store_dwordx4 v{vT+2}, {vr(vT+4,4)}, {sWS} sc1", ("qs", 0))
    e("s_mov_b32 exec_hi, -1")
    g.c("zero-fill-done flag: the fill is older than the wq loads every wave waited for before the barrier")
    lz = g.label("Lnf")
    e(f"s_cmp_eq_u32 {SFIN}, 0\n s_cbranch_scc1 {lz}\n s_cmp_lg_u32 {SW}, 2\n s_cbranch_scc1 {lz}")
    e(f"v_mov_b32 v{vT+8}, {ST}\n v_mov_b32 v{vT+9}, {ST}\n v_mov_b32 v{vT+10}, {ST}\n v_mov_b32 v{vT+11}, {ST}")
    e(f"s_lshl_b32 s55, {SB}, 8\n s_add_u32 s55, s55, {WS_ZF}\n v_mov_b32 v{vT+12}, s55\n s_mov_b64 exec, 1")
    e(f"global_store_dwordx4 v{vT+12}, {vr(vT+8,4)}, {sWS} sc1\n s_mov_b64 exec, -1\n {lz}:")
    if not P.MIXE: mix_load()
    vQGO, vQLO = vMISC+2, vMISC+3
    e(f"s_lshl_b32 s55, {SH}, 1\n s_add_u32 s55, s55, {SB}\n s_lshl_b32 s55, s55, 2\n s_add_u32 s55, s55, {SW}\n s_lshl_b32 s55, s55, 11\n s_add_u32 s55, s55, {WS_QG}")
    e(f"v_add_u32 v{vQGO}, s55, v{vL16}\n s_lshl_b32 s55, {SW}, 10\n v_lshl_add_u32 v{vQLO}, v{vLANE}, 3, s55")
    g.c("table inputs of this wave: entries k*2048 + (wg*8 + 2w + u), k = 0..2, u = 0..1")
    e(f"s_lshl_b32 s55, s2, 2\n s_add_u32 s55, s55, {SW}\n s_lshl_b32 s55, s55, 1\n s_add_u32 s56, s55, {EMIN<<7}\n s_lshl_b32 s56, s56, 16")
    e(f"s_add_u32 s57, s55, {2048 + (EMIN<<7)}\n s_add_u32 s58, s55, {2048 - 3072 + (EMIN<<7) + 0x8000}")
    e(f"s_cmp_ge_u32 s55, 1024\n s_cselect_b32 s57, s58, s57\n s_lshl_b32 s57, s57, 16")
    e(f"s_add_u32 s58, s55, {4096 - 3072 + (EMIN<<7) + 0x8000}\n s_lshl_b32 s58, s58, 16")
    e("s_add_u32 s59, s56, 0x10000\n s_add_u32 s60, s57, 0x10000\n s_add_u32 s61, s58, 0x10000")
    for k in range(6): e(f"v_mov_b32 v{vTA+k}, 0")
    e(f"v_lshlrev_b32 v{vTL}, 2, v{vLANE}")
    mw_at = st["nk"] + 3
    qload = [f"global_load_dwordx4 {vr(vML+4*u,4)}, v{vQGO}, {sWS} offset:{1024*u} sc1" for u in range(2)]
    while st["nk"] < P.NPRO:
        if st["nk"] <= P.QPOLL_USE: g.cap(P.WPRO)
        kv_issue()
        if st["nk"] == mw_at and not P.MIXE: mix_store()
        if P.MIXE and 42 - st["tab"] < P.TABP and st["nk"] <= P.QPOLL_USE:
            for _ in range(2 if P.TABP - (42 - st["tab"]) > P.QPOLL_USE - st["nk"] + 1 else 1):
                e(f"s_call_b64 s[30:31], Ltab{'ABC'[(42 - st['tab']) % 3]}"); st["tab"] -= 1
        if st["nk"] == P.QPOLL_AT:
            for u in range(2): g.vm(qload[u], ("qg", u))
        if st["nk"] == P.QPOLL_USE:
            g.wait(("qg", 1)); stamp(g, 8, 3)
            tag_poll([vML+1, vML+3, vML+5, vML+7], "\n".join(qload), 1)
            stamp(g, 9, 3)
            for u in range(2): e(f"v_mov_b32 v{vML+4*u+1}, v{vML+4*u+2}\n ds_write_b64 v{vQLO}, {vr(vML+4*u,2)} offset:{L_QP + 512*u}")
    assert mw_at <= P.NPRO and mw_at - 3 < P.QPOLL_AT < P.QPOLL_USE <= P.NPRO
    stamp(g, 10, 3)
    e(f"v_lshlrev_b32 v{vDT}, 4, v{vC}\n s_waitcnt lgkmcnt(0)\n s_barrier")
    for rnd in range(4):
        for w in range(2):
            o = L_QP + (2*rnd + w)*512
            e(f"ds_read_b128 {vr(vT+8*w,4)}, v{vDT} offset:{o}\n ds_read_b128 {vr(vT+8*w+4,4)}, v{vDT} offset:{o + 256}")
        for w in range(2):
            e(f"s_waitcnt lgkmcnt({2-2*w})")
            for k in range(8): e(f"v_mov_b32 v{vB+k}, v{vT+k}" if rnd == 0 and w == 0 else f"v_add_f32 v{vB+k}, v{vB+k}, v{vT+8*w+k}")
    for k in range(4): e(f"v_cvt_pk_bf16_f32 v{vQ+k}, v{vB+2*k}, v{vB+2*k+1}")
    e("s_mov_b32 s4, 0xcccccccc\n s_mov_b32 s5, 0xcccccccc\n s_mov_b32 s6, 0xaaaaaaaa\n s_mov_b32 s7, 0xaaaaaaaa")
    stamp(g, 3)
    def stepA(i, t): e(f"v_add_f32_dpp v{vB + (i & 7)}, v{t}, v{t} row_mirror row_mask:0xf bank_mask:{'0x3' if i < 8 else '0xc'}")
    for G_ in range(8):
        pend = None
        for i in range(16):
            n = 16*G_ + i
            g.wait(("kv", n))
            r = ring(n); t = vDT + (i & 1)
            e(f"v_dot2_f32_bf16 v{t}, v{r}, v{vQ}, 0")
            for k in range(1, 4): e(f"v_dot2_f32_bf16 v{t}, v{r+k}, v{vQ+k}, v{t}")
            if pend is not None: stepA(*pend)
            pend = (i, t)
            after_consume(n)
            if st["tab"] and n >= P.TABK0 and (n - P.TABK0) % P.TABKE == 0:
                pre_issue(n, P.TPRE)
                e(f"s_call_b64 s[30:31], Ltab{'ABC'[(42 - st['tab']) % 3]}"); st["tab"] -= 1
        if G_ == 7: pre_issue(n, P.PRE)
        e("s_nop 2"); stepA(*pend); e("s_nop 1")
        for u in range(4):
            e(f"v_add_f32_dpp v{vT+u}, v{vB+u}, v{vB+u} row_half_mirror row_mask:0xf bank_mask:0x5")
            e(f"v_add_f32_dpp v{vT+u}, v{vB+u+4}, v{vB+u+4} row_half_mirror row_mask:0xf bank_mask:0xa")
        e("s_nop 0")
        for u in range(4): e(f"v_add_f32_dpp v{vT+4+u}, v{vT+u}, v{vT+u} quad_perm:[2,3,0,1] {DPP}")
        e(f"v_cndmask_b32 v{vT}, v{vT+4}, v{vT+6}, s[4:5]\n v_cndmask_b32 v{vT+1}, v{vT+5}, v{vT+7}, s[4:5]\n s_nop 1")
        e(f"v_add_f32_dpp v{vT+2}, v{vT}, v{vT} quad_perm:[1,0,3,2] {DPP}\n v_add_f32_dpp v{vT+3}, v{vT+1}, v{vT+1} quad_perm:[1,0,3,2] {DPP}")
        e(f"v_cndmask_b32 v{vT}, v{vT+2}, v{vT+3}, s[6:7]")
        bf16r(g, vT, vT)
        e(f"v_mul_f32 v{vT}, {f2u(128**-0.5):#x}, v{vT}")
        bf16r(g, vS+G_, vT)
        if G_ & 1: stamp(g, 4+G_//2, 1 if G_ < 7 else 0)
    assert st["tab"] == 0
    e(f"v_max3_f32 v{vT}, v{vS}, v{vS+1}, v{vS+2}\n v_max3_f32 v{vT+1}, v{vS+3}, v{vS+4}, v{vS+5}\n v_max3_f32 v{vT}, v{vS+6}, v{vS+7}, v{vT}\n v_max_f32 v{vT}, v{vT}, v{vT+1}\n s_nop 1")
    wave_reduce(g, "v_max_f32", [vT])
    e(f"v_readlane_b32 s52, v{vT}, 63\n s_nop 1")
    for k in range(8): e(f"v_subrev_f32 v{vS+k}, s52, v{vS+k}")
    for k in range(8): e(f"v_mul_f32 v{vS+k}, {f2u(LOG2E):#x}, v{vS+k}")
    for k in range(8): e(f"v_exp_f32 v{vS+k}, v{vS+k}")
    e(f"v_add_f32 v{vT}, v{vS}, v{vS+1}\n v_add_f32 v{vT+1}, v{vS+2}, v{vS+3}\n v_add_f32 v{vT+2}, v{vS+4}, v{vS+5}\n v_add_f32 v{vT+3}, v{vS+6}, v{vS+7}")
    e(f"v_add_f32 v{vT}, v{vT}, v{vT+1}\n v_add_f32 v{vT+2}, v{vT+2}, v{vT+3}\n v_add_f32 v{vT}, v{vT}, v{vT+2}")
    for k in range(8): e(f"v_cvt_pk_bf16_f32 v{vS+k}, v{vS+k}, v{vS+k}")
    wave_reduce(g, "v_add_f32", [vT] + [vTA+k for k in range(6)])
    e(f"v_mov_b32 v{vT+4}, s52\n v_mov_b32 v{vT+5}, {ST}\n v_mov_b32 v{vT+6}, v{vT}\n v_mov_b32 v{vT+7}, {ST}")
    tab_finish(g, vTA, vT+8, vB2); tab_finish(g, vTA+3, vT+12, vB2)
    for r in (9, 11, 13, 15): e(f"v_mov_b32 v{vT+r}, {ST}")
    la = g.label("Lag")
    e(f"s_lshl_b32 s55, {SW}, 4\n v_mov_b32 v{vT}, s55\n v_lshlrev_b32 v{vT+1}, 1, v{vT}\n v_mov_b32 v{vT+2}, 1\n v_mov_b32 v{vT+3}, 0")
    e("s_mov_b32 exec_lo, 0\n s_mov_b32 exec_hi, 0x80000000")
    e(f"ds_write_b128 v{vT}, {vr(vT+4,4)} offset:{L_AGG}\n ds_write_b128 v{vT+1}, {vr(vT+8,4)} offset:{L_AGG+64}\n ds_write_b128 v{vT+1}, {vr(vT+12,4)} offset:{L_AGG+80}\n s_waitcnt lgkmcnt(0)")
    e(f"ds_add_rtn_u32 v{vT+2}, v{vT+3}, v{vT+2} offset:{L_AGG+256}\n s_mov_b64 exec, -1\n s_waitcnt lgkmcnt(0)")
    e(f"v_readlane_b32 s55, v{vT+2}, 63\n s_nop 3\n s_cmp_lg_u32 s55, 3\n s_cbranch_scc1 {la}")
    e(f"ds_read_b128 {vr(vT+4,4)}, v{vL16} offset:{L_AGG}")
    e(f"s_lshl_b32 s55, s54, 6\n s_add_u32 s55, s55, {WS_ML}\n s_lshl_b32 s53, s2, 7\n s_add_u32 s53, s53, {WS_TAB - 64}")
    e(f"v_mov_b32 v{vT+8}, s55\n v_mov_b32 v{vT+9}, s53\n v_cmp_lt_u32 vcc, 3, v{vLANE}\n s_nop 1\n v_cndmask_b32 v{vT+8}, v{vT+8}, v{vT+9}, vcc\n v_add_u32 v{vT+8}, v{vT+8}, v{vL16}")
    e(f"s_mov_b64 exec, 0xfff\n s_waitcnt lgkmcnt(0)\n global_store_dwordx4 v{vT+8}, {vr(vT+4,4)}, {sWS} sc1\n s_mov_b64 exec, -1\n {la}:")
    vMLO, vTBO, vXA = vMISC+3, vMISC+4, vMISC+5
    e(f"s_lshr_b32 s55, s54, 2\n s_lshl_b32 s55, s55, 8\n s_add_u32 s55, s55, {WS_ML}\n v_add_u32 v{vMLO}, s55, v{vL16}")
    e(f"s_lshl_b32 s55, {SB}, 8\n s_add_u32 s55, s55, {WS_ZF}\n v_mov_b32 v{vB}, s55\n v_cmp_lt_u32 vcc, 15, v{vLANE}\n s_nop 1\n v_cndmask_b32 v{vMLO}, v{vMLO}, v{vB}, vcc")
    e(f"s_add_u32 s48, s32, {WS_TAB}\n s_addc_u32 s49, s33, 0\n s_lshl_b32 s50, {SFIN}, 15\n v_lshlrev_b32 v{vTBO}, 4, v0")
    g.c("final stage x values (final workgroups only): columns 3j..3j+2, j = min(tid,213), and column 0")
    e(f"v_min_u32 v{vXA}, 213, v0\n v_mul_u32_u24 v{vXA}, 6, v{vXA}\n s_mul_i32 s55, {SB}, 1280\n v_add_u32 v{vXA}, s55, v{vXA}\n v_mov_b32 v{vXF+3}, s55")
    e(f"s_mov_b32 s44, s8\n s_mov_b32 s45, s9\n s_movk_i32 s46, 2560")
    lx = g.label("Lxf")
    e(f"s_cmp_eq_u32 {SFIN}, 0\n s_cbranch_scc1 {lx}")
    for k in range(3): e(f"buffer_load_ushort v{vXF+k}, v{vXA}, s[44:47], 0 offen offset:{2*k}")
    if P.OTOUCH: e(f"global_load_dword v{vT}, v{vXF+3}, s[28:29]")
    e(f"buffer_load_ushort v{vXF+3}, v{vXF+3}, s[44:47], 0 offen\n {lx}:")
    vFA, vOPW, vOPR, vOUW = vML+4, vML+5, vML+6, vML+7
    vPA, vO0, vO1, vFW, vZ = vMISC+2, vMISC+3, vMISC+4, vMISC+5, vMISC+6
    vTB = vX
    tl = [f"s_movk_i32 s55, {k*4096}\n buffer_load_dwordx4 {vr(vTB+4*k,4)}, v{vTBO}, s[48:51], s55 offen sc1" for k in range(8)]
    mload = f"global_load_dwordx4 {vr(vML,4)}, v{vMLO}, {sWS} sc1"
    for i in range(NL):
        n = NL + i
        g.wait(("kv", n))
        rowmac(vACC, vS + i//16, i % 16, vr(ring(n),4), first=(i == 0))
        if i % 32 == 31: stamp(g, 8 + i//32, 1 if i < 96 else 0)
        after_consume(n)
        if i == P.TAB_AT:
            ls = g.label("Ltl"); e(f"s_cmp_eq_u32 {SFIN}, 0\n s_cbranch_scc1 {ls}"); e("\n".join(tl)); e(f"{ls}:"); st["tmark"] = ("kv", st["nk"])
        if i == P.TAB_USE:
            assert st["tmark"] not in g.fifo and st["tmark"][1] < st["nk"]
            ls = g.label("Lts")
            e(f"s_cmp_eq_u32 {SFIN}, 0\n s_cbranch_scc1 {ls}")
            tag_poll([vTB+1+2*k for k in range(16)], "\n".join(tl), 2)
            e(f"v_lshlrev_b32 v{vT}, 3, v0")
            for k in range(8): e(f"v_mov_b32 v{vTB+4*k+1}, v{vTB+4*k+2}\n ds_write_b64 v{vT}, {vr(vTB+4*k,2)} offset:{L_TAB + k*2048}")
            for k in range(4): e(f"v_lshlrev_b32 v{vXF+k}, 16, v{vXF+k}")
            e(f"{ls}:")
        if i == P.POLL_AT:
            lw = g.label("Lw0"); e(f"s_cmp_lg_u32 {SW}, 0\n s_cbranch_scc1 {lw}\n {mload}\n {lw}:"); st["mark"] = ("kv", st["nk"])
        if i == P.POLL_USE:
            pre_issue(n, P.PRE)
            g.c("wave 0: true max / sum of this (batch, head) -> scale factors of the workgroup's waves")
            assert st["mark"] not in g.fifo and st["mark"][1] < st["nk"]
            lw = g.label("Lw0"); e(f"s_cmp_lg_u32 {SW}, 0\n s_cbranch_scc1 {lw}")
            tag_poll([vML+1, vML+3], mload, 2)
            e(f"s_mov_b32 exec_lo, 0xffff0000\n v_mov_b32 v{vML}, s52\n v_mov_b32 v{vML+2}, 0\n s_mov_b32 exec_lo, -1")
            e(f"v_mov_b32 v{vT}, v{vML}\n s_nop 1")
            wave_reduce(g, "v_max_f32", [vT])
            e(f"v_readlane_b32 s53, v{vT}, 63\n s_nop 1")
            e(f"v_subrev_f32 v{vML}, s53, v{vML}\n v_mul_f32 v{vML}, {f2u(LOG2E):#x}, v{vML}\n v_exp_f32 v{vML}, v{vML}\n s_nop 0\n v_mul_f32 v{vT}, v{vML}, v{vML+2}\n s_nop 1")
            wave_reduce(g, "v_add_f32", [vT])
            e(f"v_readlane_b32 s53, v{vT}, 63\n s_nop 1\n v_rcp_f32 v{vT}, s53\n s_lshl_b32 s55, {SS}, 2\n v_mul_f32 v{vML}, v{vML}, v{vT}")
            e(f"v_subrev_u32 v{vT}, s55, v{vLANE}\n v_lshlrev_b32 v{vT}, 2, v{vT}\n s_lshl_b64 exec, 15, s55")
            e(f"ds_write_b32 v{vT}, v{vML} offset:{L_F}\n s_mov_b64 exec, -1\n {lw}:")
            g.c("addresses for the tail")
            e(f"v_lshrrev_b32 v{vFA}, 3, v{vC}\n v_lshlrev_b32 v{vT+1}, 10, v{vFA}\n v_lshlrev_b32 v{vFA}, 3, v{vFA}")
            e(f"s_lshl_b32 s55, {SW}, 9\n v_add_u32 v{vOPW}, s55, v{vL16}")
            e(f"v_and_b32 v{vT}, 1, v{vC}\n v_lshl_add_u32 v{vT+1}, v{vT}, 8, v{vT+1}\n v_bfe_u32 v{vT+2}, v{vC}, 1, 2\n v_lshl_add_u32 v{vT+1}, v{vT+2}, 4, v{vT+1}")
            e(f"v_lshl_add_u32 v{vT+1}, v{vG}, 2, v{vT+1}\n s_lshl_b32 s55, {SW}, 6\n v_add_u32 v{vOPR}, s55, v{vT+1}")
            e(f"s_mul_i32 s55, {SW}, 2560\n v_lshlrev_b32 v{vT}, 5, v{vC}\n v_lshl_add_u32 v{vT}, v{vG}, 4, v{vT}\n v_add_u32 v{vOUW}, s55, v{vT}")
            for k in range(4):
                e(f"v_add_u32 v{vT}, {256*k}, v0\n v_lshlrev_b32 v{vGA+4+k}, 2, v{vT}\n v_lshrrev_b32 v{vT+1}, 2, v{vT}\n v_and_b32 v{vT}, 3, v{vT}")
                e(f"v_mad_u32_u24 v{vT+1}, v{vT+1}, 3, v{vT}\n v_min_u32 v{vGA+k}, 639, v{vT+1}\n v_lshlrev_b32 v{vGA+k}, 2, v{vGA+k}")
            e(f"s_movk_i32 s55, 639\n v_cmp_lt_u32 s[6:7], s55, v{vT+1}\n s_mov_b32 s4, 0x88888888\n s_mov_b32 s5, 0x88888888")
            g.c("final stage constants")
            e(f"v_min_u32 v{vPA}, 213, v0\n v_lshlrev_b32 v{vPA}, 4, v{vPA}\n v_mul_u32_u24 v{vT}, 3, v0")
            e(f"s_movk_i32 s55, 640\n v_cmp_gt_u32 s[56:57], s55, v{vT}\n s_movk_i32 s55, 639\n v_cmp_gt_u32 s[58:59], s55, v{vT}")
            e(f"s_mul_i32 s55, {SB}, 1280\n v_lshl_add_u32 v{vT}, v{vT}, 1, s55\n v_mov_b32 v{vT+1}, 0x7ffffff0")
            e(f"v_cndmask_b32 v{vO0}, v{vT+1}, v{vT}, s[56:57]\n v_cndmask_b32 v{vO1}, v{vT+1}, v{vT}, s[58:59]")
            e(f"s_lshl_b32 s55, {SW}, 3\n v_mov_b32 v{vFW}, s55\n v_mov_b32 v{vZ}, 0")
            e(f"s_lshl_b32 s55, {SB}, 15\n s_add_u32 s55, s55, {WS_ACC}\n s_add_u32 s44, s32, s55\n s_addc_u32 s45, s33, 0\n s_mov_b32 s46, {P.R*REP_STRIDE}")
            e("s_mov_b32 s48, s28\n s_mov_b32 s49, s29\n s_mov_b32 s50, 2560")
    assert st["nwo"] == 40 and st["nk"] == 2*NL and P.TAB_USE < P.POLL_USE and P.WO_START >= 0, st
    oacc = lambda t: vX + 4*t
    e("s_nop 6\n s_mov_b32 exec_hi, 0")
    e(f"ds_write_b128 v{vOPW}, {vr(vACC,4)} offset:{L_QP}\n s_mov_b64 exec, -1")
    g.wait(("wo", 39))
    e("s_waitcnt lgkmcnt(0)\n s_barrier")
    e(f"ds_read2_b32 {vr(vT,2)}, v{vOPR} offset0:0 offset1:128\n ds_read_b64 {vr(vT+2,2)}, v{vFA} offset:{L_F}")
    e(f"s_waitcnt lgkmcnt(0)\n v_mul_f32 v{vT}, v{vT}, v{vT+2}\n v_fmac_f32 v{vT}, v{vT+1}, v{vT+3}\n s_nop 1")
    e(f"v_add_f32_dpp v{vT}, v{vT}, v{vT} row_ror:8 {DPP}\n v_cvt_pk_bf16_f32 v{vT}, v{vT}, v{vT}\n s_nop 1")
    def abuild(ii):
        a = vA + 4*(ii & 1)
        for r in range(4): e(f"v_and_b32_dpp v{a+r}, v{vT}, v{vMK+r} row_newbcast:{ii} {DPP}")
    abuild(0); e("s_nop 1")
    for ii in range(8):
        a = vA + 4*(ii & 1)
        for t in range(5):
            e(f"v_mfma_f32_16x16x32_bf16 {vr(oacc(t),4)}, {vr(a,4)}, {ar(4*(5*ii+t),4)}, {'0' if ii == 0 else vr(oacc(t),4)}")
            if t == 1 and ii < 7: abuild(ii+1)
    e("s_nop 3\n s_mov_b32 exec_hi, 0")
    for t in range(5): e(f"ds_write_b128 v{vOUW}, {vr(oacc(t),4)} offset:{L_OUTP + t*512}")
    e("s_mov_b64 exec, -1\n s_waitcnt lgkmcnt(0)\n s_barrier")
    base64 = L_OUTP // 256
    for k in range(4):
        for p in range(2): e(f"ds_read2st64_b32 {vr(vT+4*k+2*p,2)}, v{vGA+k} offset0:{base64+20*p} offset1:{base64+20*p+10}")
    for k in range(4):
        r = vT+4*k
        e(f"s_waitcnt lgkmcnt({6-2*k})\n v_add_f32 v{r}, v{r}, v{r+1}\n v_add_f32 v{r+2}, v{r+2}, v{r+3}\n v_add_f32 v{r}, v{r}, v{r+2}")
        if k == 3: e(f"v_cndmask_b32 v{r}, v{r}, 0, s[6:7]")
        e(f"v_cndmask_b32 v{r}, v{r}, 1.0, s[4:5]\n buffer_atomic_add_f32 v{r}, v{vGA+4+k}, s[40:43], 0 offen sc1")
    stamp(g, 12)
    e(f"s_cmp_eq_u32 {SFIN}, 0\n s_cbranch_scc1 Ldone")
    PL = vX; H, N, Y = vT, vT+4, vT+8; N2 = vX+72
    le = g.label("Lep")
    g.c("past the tail barriers every workgroup's tag has been seen, so every workgroup has read the epoch word: advance it")
    e(f"s_cmp_lg_u32 s2, {FINAL_IDS[0]}\n s_cbranch_scc1 {le}\n s_cmp_lg_u32 {SW}, 3\n s_cbranch_scc1 {le}")
    e(f"v_mov_b32 v{vB}, {ST}\n s_mov_b64 exec, 1\n global_store_dword v{vZ}, v{vB}, {sWS} offset:{WS_E} sc1\n s_mov_b64 exec, -1\n {le}:")
    def tree(dst, regs):
        regs = list(regs)
        while len(regs) > 2:
            for a in range(0, len(regs) - 1, 2): e(f"v_add_f32 v{regs[a]}, v{regs[a]}, v{regs[a+1]}")
            regs = regs[0::2]
        e(f"v_add_f32 v{dst}, v{regs[0]}, v{regs[1]}")
    e(f"s_mov_b32 s3, {SPIN:#x}\n Lpoll:")
    for r in range(P.R):
        e(f"s_movk_i32 s55, {r*REP_STRIDE}\n buffer_load_dwordx4 {vr(PL+8*r,4)}, v{vPA}, s[44:47], s55 offen sc1\n buffer_load_dwordx4 {vr(PL+8*r+4,4)}, v{vZ}, s[44:47], s55 offen sc1")
    e("s_waitcnt vmcnt(0)")
    cs = [PL+4*k+3 for k in range(2*P.R)]
    e(f"v_min_f32 v{Y}, v{cs[0]}, v{cs[1]}")
    for k in range(2, len(cs), 2): e(f"v_min3_f32 v{Y}, v{cs[k]}, v{cs[k+1]}, v{Y}")
    e(f"v_cmp_gt_f32 vcc, {f2u(128.0/P.R):#x}, v{Y}")
    for k in range(3): tree(H+k, [PL+8*r+k for r in range(P.R)])
    tree(H+3, [PL+8*r+4 for r in range(P.R)])
    e("s_cbranch_vccz Lpdone\n s_sub_u32 s3, s3, 1\n s_cbranch_scc0 Lpoll\n Lpdone:")
    stamp(g, 13)
    bf16r_n(g, [H, H+1, H+2])
    for k in range(4): e(f"v_add_f32 v{H+k}, v{H+k}, v{vXF+k}")
    bf16r_n(g, [H, H+1, H+2])
    def ln_block(src, dst, piv, slot):
        s1, s2 = vT+12, vT+13; Z = vX+64
        for k in range(3): e(f"v_sub_f32 v{Y+k}, v{src+k}, v{piv}")
        e(f"v_cndmask_b32 v{Y}, 0, v{Y}, s[56:57]\n v_cndmask_b32 v{Y+1}, 0, v{Y+1}, s[58:59]\n v_cndmask_b32 v{Y+2}, 0, v{Y+2}, s[58:59]")
        e(f"v_add_f32 v{s1}, v{Y}, v{Y+1}\n v_mul_f32 v{s2}, v{Y}, v{Y}\n v_fmac_f32 v{s2}, v{Y+1}, v{Y+1}\n v_add_f32 v{s1}, v{s1}, v{Y+2}\n v_fmac_f32 v{s2}, v{Y+2}, v{Y+2}\n s_nop 0")
        wave_reduce(g, "v_add_f32", [s1, s2]); g.L.pop()
        e(f"s_mov_b32 exec_lo, 0\n s_mov_b32 exec_hi, 0x80000000\n ds_write_b64 v{vFW}, {vr(s1,2)} offset:{L_FIN + slot*32}\n s_mov_b64 exec, -1")
        e("s_waitcnt lgkmcnt(0)\n s_barrier")
        e(f"ds_read_b128 {vr(Z,4)}, v{vZ} offset:{L_FIN + slot*32}\n ds_read_b128 {vr(Z+4,4)}, v{vZ} offset:{L_FIN + slot*32 + 16}\n s_waitcnt lgkmcnt(0)")
        e(f"v_pk_add_f32 {vr(Z,2)}, {vr(Z,2)}, {vr(Z+2,2)}\n v_pk_add_f32 {vr(Z+4,2)}, {vr(Z+4,2)}, {vr(Z+6,2)}\n v_pk_add_f32 {vr(Z,2)}, {vr(Z,2)}, {vr(Z+4,2)}")
        e(f"v_mul_f32 v{Y}, {f2u(1.0/640):#x}, v{Z}\n v_mul_f32 v{Y+1}, {f2u(1.0/640):#x}, v{Z+1}")
        e(f"v_fma_f32 v{Y+1}, -v{Y}, v{Y}, v{Y+1}\n v_add_f32 v{Y}, v{Y}, v{piv}\n v_max_f32 v{Y+1}, 0, v{Y+1}\n v_mov_b32 v{Y+2}, v{Y}")
        bf16r_n(g, [Y+1, Y])
        e(f"v_add_f32 v{Y+1}, {f2u(1e-5):#x}, v{Y+1}")
        for k in range(3): e(f"v_sub_f32 v{dst+k}, v{src+k}, v{Y}")
        bf16r(g, Y+1, Y+1)
        e(f"v_sqrt_f32 v{Y+1}, v{Y+1}")
        bf16r_n(g, [dst, dst+1, dst+2])
        bf16r(g, Y+1, Y+1)
        e(f"v_rcp_f32 v{Y+1}, v{Y+1}\n v_sub_f32 v{Y+2}, v{Y+2}, v{Y}")
        for k in range(3): e(f"v_mul_f32 v{dst+k}, v{dst+k}, v{Y+1}")
        e(f"v_mul_f32 v{dst+3}, v{Y+2}, v{Y+1}")
        bf16r_n(g, [dst, dst+1, dst+2])
    ln_block(H, N, H+3, 0)
    ln_block(N, N2, N+3, 1)
    I = vT+8
    for k in range(3): e(f"v_bfe_u32 v{I+k}, v{N2+k}, 16, 15")
    for k in range(3): e(f"v_subrev_u32 v{I+k}, {EMIN<<7}, v{I+k}\n v_ashrrev_i32 v{N+k}, 31, v{N2+k}")
    e(f"v_max3_u32 v{vT+12}, v{I}, v{I+1}, v{I+2}\n s_movk_i32 s55, 3071")
    for k in range(3): e(f"v_min_u32 v{I+k}, s55, v{I+k}\n v_and_b32 v{N+k}, 3072, v{N+k}")
    e(f"v_cmp_lt_u32 vcc, s55, v{vT+12}" if P.XLIM == 3071 else f"v_cmp_lt_u32 vcc, {P.XLIM}, v{vT+12}")
    for k in range(3): e(f"v_add_u32 v{I+k}, v{I+k}, v{N+k}")
    for k in range(3): e(f"v_and_b32 v{N+k}, 2047, v{I+k}\n v_lshrrev_b32 v{I+k}, 10, v{I+k}")
    for k in range(3): e(f"v_and_b32 v{I+k}, 6, v{I+k}")
    for k in range(3): e(f"v_lshl_add_u32 v{I+k}, v{N+k}, 3, v{I+k}")
    for k in range(3): e(f"ds_read_u16 v{I+k}, v{I+k} offset:{L_TAB}")
    e("s_and_b64 vcc, vcc, s[56:57]\n s_cbranch_scc1 Lslow\n s_waitcnt lgkmcnt(0)\n Lback:")
    for k in range(3): e(f"v_lshlrev_b32 v{I+k}, 16, v{I+k}")
    for k in range(3): e(f"v_add_f32 v{I+k}, v{I+k}, v{H+k}")
    for k in range(3): e(f"v_cvt_pk_bf16_f32 v{I+k}, v{I+k}, v{I+k}")
    e(f"buffer_store_short v{I}, v{vO0}, s[48:51], 0 offen {P.OPOL}\n buffer_store_short v{I+1}, v{vO1}, s[48:51], 0 offen offset:2 {P.OPOL}\n buffer_store_short v{I+2}, v{vO1}, s[48:51], 0 offen offset:4 {P.OPOL}")
    e("Ldone:")
    if P.DIAG:
        if P.DIAG == 7: e("s_waitcnt vmcnt(0)")
        stamp(g, 14)
        e(f"s_lshl_b32 s55, s2, 3\n s_add_u32 s55, s55, {SW}\n s_lshl_b32 s55, s55, 6\n s_add_u32 s55, s55, {WS_DIAG}\n s_getreg_b32 s3, hwreg(HW_REG_XCC_ID)\n s_waitcnt vmcnt(0) lgkmcnt(0)")
        e(f"v_mov_b32 v{vT}, s55\n s_mov_b64 exec, 1")
        for k in range(15): e(f"v_mov_b32 v{vR+k}, s{66+2*k}")
        e(f"v_mov_b32 v{vR+15}, s3")
        for k in range(4): e(f"global_store_dwordx4 v{vT}, {vr(vR+4*k,4)}, {sWS} offset:{16*k}")
    e("Lend:\n s_endpgm")
    SV = vR
    e("Lslow:\n s_waitcnt lgkmcnt(0)\n s_mov_b64 s[52:53], vcc")
    for k in range(16): e(f"v_mov_b32 v{SV+k}, v{vT+k}")
    e("Lslow1:\n s_ff1_i32_b64 s55, s[52:53]\n s_bitset0_b64 s[52:53], s55\n s_mov_b32 m0, s55\n s_nop 1")
    for k in range(3): e(f"v_readlane_b32 s{56+k}, v{N2+k}, m0")
    for k in range(4): e(f"v_mov_b32 v{vTA+k}, 0")
    e(f"v_lshlrev_b32 v{vTL}, 2, v{vLANE}\n s_mov_b32 s3, 13\n s_mov_b32 s59, 0")
    e("Lslow2:\n s_call_b64 s[30:31], LtabA\n s_call_b64 s[30:31], LtabB\n s_sub_u32 s3, s3, 1\n s_cbranch_scc0 Lslow2")
    wave_reduce(g, "v_add_f32", [vTA, vTA+1, vTA+2])
    tab_finish(g, vTA, vT+10, vB2)
    e(f"s_nop 0\n v_readlane_b32 s56, v{vT+10}, 63\n v_readlane_b32 s58, v{vT+12}, 63\n s_nop 3\n s_lshr_b32 s57, s56, 16\n s_and_b32 s56, s56, 0xffff\n s_and_b32 s58, s58, 0xffff")
    for k in range(3): e(f"v_writelane_b32 v{SV+8+k}, s{56+k}, m0")
    e("s_cmp_lg_u64 s[52:53], 0\n s_cbranch_scc1 Lslow1")
    for k in range(16): e(f"v_mov_b32 v{vT+k}, v{SV+k}")
    e("s_branch Lback")
    w2, wl, wh, bl, cc = vGA, vGA+1, vGA+2, vGAp, vGAp+2
    K0 = (2/3.141592653589793)**0.5; C1 = -2*K0*LOG2E; C3 = C1*0.044715
    for part in range(3):
        e(f"Ltab{'ABC'[part]}:")
        if part == 0:
            e(f"ds_read_b32 v{vT}, v{vTL} offset:{L_MW}\n ds_read_b32 v{vT+1}, v{vTL} offset:{L_MW+4096}\n ds_read_b32 v{w2}, v{vTL} offset:{L_MW+8192}")
            e(f"v_add_u32 v{vTL}, 256, v{vTL}\n v_mov_b32 v{cc+1}, {f2u(C1):#x}\n v_mov_b32 v{cc}, {f2u(C3):#x}\n s_waitcnt lgkmcnt(0)")
            e(f"v_lshlrev_b32 v{wl}, 16, v{vT}\n v_and_b32 v{wh}, 0xffff0000, v{vT}\n v_lshlrev_b32 v{bl}, 16, v{vT+1}\n v_and_b32 v{bl+1}, 0xffff0000, v{vT+1}")
        S_ = [(vT+4*j, vT+4*j+2, 56+2*part+j, vTA+2*part+j) for j in range(2)]
        for U, Z, s_, _ in S_: e(f"v_mul_f32 v{U}, s{s_}, v{wl}\n v_mul_f32 v{U+1}, s{s_}, v{wh}")
        for U, Z, s_, _ in S_: e(f"v_cvt_pk_bf16_f32 v{U}, 0, v{U}\n v_cvt_pk_bf16_f32 v{U+1}, 0, v{U+1}")
        for U, Z, s_, _ in S_: e(f"v_pk_add_f32 {vr(U,2)}, {vr(U,2)}, {vr(bl,2)}")
        for U, Z, s_, _ in S_: e(f"v_cvt_pk_bf16_f32 v{U}, 0, v{U}\n v_cvt_pk_bf16_f32 v{U+1}, 0, v{U+1}")
        for U, Z, s_, _ in S_: e(f"v_pk_mul_f32 {vr(Z,2)}, {vr(U,2)}, {vr(U,2)}")
        for U, Z, s_, _ in S_: e(f"v_fma_f32 v{Z}, v{Z}, v{cc}, v{cc+1}\n v_fma_f32 v{Z+1}, v{Z+1}, v{cc}, v{cc+1}")
        for U, Z, s_, _ in S_: e(f"v_pk_mul_f32 {vr(Z,2)}, {vr(Z,2)}, {vr(U,2)}")
        for U, Z, s_, _ in S_: e(f"v_exp_f32 v{Z}, v{Z}\n v_exp_f32 v{Z+1}, v{Z+1}")
        for U, Z, s_, _ in S_: e(f"v_add_f32 v{Z}, 1.0, v{Z}\n v_add_f32 v{Z+1}, 1.0, v{Z+1}")
        for U, Z, s_, _ in S_: e(f"v_rcp_f32 v{Z}, v{Z}\n v_rcp_f32 v{Z+1}, v{Z+1}")
        for U, Z, s_, _ in S_: e(f"v_pk_mul_f32 {vr(Z,2)}, {vr(Z,2)}, {vr(U,2)}")
        for U, Z, s_, acc in S_: e(f"v_cvt_pk_bf16_f32 v{U}, v{Z}, v{Z+1}")
        for U, Z, s_, acc in S_: e(f"v_dot2_f32_bf16 v{acc}, v{U}, v{w2}, v{acc}")
        e("s_nop 1\n s_setpc_b64 s[30:31]")
    return g

HEADER = open("cdna_kernels/" + NAME + ".s.ref").read().split("; Override launch")[0]
DOC = """;
"""

def emit():
    g = gen()
    acc = (g.nv + 3)//4*4; assert acc <= 256
    out = HEADER + f"; @launch grid=(256,1,1) block=(256,1,1) lds={LDS_BYTES}\n" + DOC
    out += '.amdgcn_target "amdgcn-amd-amdhsa--gfx950"\n.text\n'
    out += f".globl {KN}\n.p2align 8\n.type {KN},@function\n" + "\n".join(g.L) + "\n"
    out += f""".section .rodata,"a"
.p2align 6
.amdhsa_kernel {KN}
  .amdhsa_next_free_vgpr {acc + 160}
  .amdhsa_next_free_sgpr 96
  .amdhsa_accum_offset {acc}
  .amdhsa_group_segment_fixed_size 0
  .amdhsa_kernarg_size 104
  .amdhsa_user_sgpr_count 2
  .amdhsa_user_sgpr_kernarg_segment_ptr 1
  .amdhsa_system_sgpr_workgroup_id_x 1
  .amdhsa_float_denorm_mode_32 3
.end_amdhsa_kernel
"""
    return out, g

if __name__ == "__main__":
    ap = argparse.ArgumentParser()
    ap.add_argument("-o", default="cdna_kernels/" + NAME + ".s")
    ap.add_argument("set", nargs="*")
    a = ap.parse_args()
    for kv in a.set:
        k, v = kv.split("=", 1); old = getattr(P, k)
        setattr(P, k, v.replace("_", " ") if isinstance(old, str) else int(v))
    out, g = emit()
    open(a.o, "w").write(out)
    print("vgprs", g.nv, "lines", len(g.L))
```

```python
import sys, struct, argparse

NAME = "sequential_preLN__mha_block_cached__mixer_token_mlp__decode"
KN = NAME + "_kernel"
def f2u(x): return struct.unpack("<I", struct.pack("<f", x))[0]

class P:
    D = 20
    NPRO = 40
    W = 6
    WEND = 5
    ENDAT = 136
    WPRO = 7
    LAG = 16
    CU_N = 1
    CU_D = 2
    PRE = 4
    STRIDE = 5
    ROT = 8
    ROTJ = 16
    ROTX = 6
    R = 4
    POL = "nt"
    K0 = 4
    KFIRST = 12
    KX1 = 0
    KX2 = 4
    KX3 = 8
    QPOLL_AT = 29
    QPOLL_USE = 35
    WO_START = 48
    WO_EVERY = 2
    TABK0 = 2
    TABKE = 3
    TPRE = 0
    TAB_AT = 48
    TAB_USE = 72
    POLL_AT = 80
    POLL_USE = 104
    MIXE = 1
    TABP = 11
    PAIR = 0
    PM = 0
    PSL = 0
    XQ = 1
    Q4 = 1
    OTOUCH = 0
    OPOL = ""
    DIAG = 0
    XLIM = 3071
    XMM = 0

WS_E, WS_ZF, WS_ML, WS_TAB, WS_ACC, WS_QG, WS_DIAG = 0x0, 0x1000, 0x2000, 0x10000, 0x20000, 0x40000, 0x100000
REP_STRIDE, NGRAN = 3584, 214
L_QP, L_MW, L_Q1, L_OUTP, L_TAB, L_FIN = 0, 4096, 16384, 16384, 36864, 53248
L_F = L_FIN + 128
L_AGG = L_FIN + 256
LDS_BYTES = 57344
EMIN = 108
LOG2E = 1.4426950408889634
FINAL_IDS = (0, 34)
DPP = "row_mask:0xf bank_mask:0xf"
SPIN = 0x40000
NL = 128

class G:
    def __init__(s): s.L = []; s.fifo = []; s.lab = 0; s.nv = 0
    def e(s, t):
        for x in t.split("\n"):
            x = x.strip()
            if x: s.L.append(("    " if not x.endswith(":") else "") + x)
    def c(s, t): s.L.append("    ; " + t)
    def label(s, p="L"): s.lab += 1; return f"{p}{s.lab}"
    def v(s, n=1, align=1):
        s.nv = (s.nv + align - 1)//align*align
        r = s.nv; s.nv += n; return r
    def vm(s, text, tag):
        s.e(text); s.fifo.append(tag); assert len(s.fifo) <= 63
    def wait(s, tag):
        if tag not in s.fifo: return
        i = s.fifo.index(tag); n = len(s.fifo) - 1 - i
        s.e(f"s_waitcnt vmcnt({n})"); del s.fifo[:i+1]
    def cap(s, W):
        kv = [t for t in s.fifo if t[0] == "kv"]
        if len(kv) >= W: s.wait(kv[-W])

def vr(r, n): return f"v[{r}:{r+n-1}]"
def ar(r, n): return f"a[{r}:{r+n-1}]"

def wave_reduce(g, op, regs, nsteps=6):
    steps = [f"row_ror:8 {DPP}", f"row_ror:4 {DPP}", f"row_ror:2 {DPP}", f"row_ror:1 {DPP}",
             "row_bcast:15 row_mask:0xa bank_mask:0xf", "row_bcast:31 row_mask:0xc bank_mask:0xf"]
    for st in steps[:nsteps]:
        for r in regs: g.e(f"{op}_dpp v{r}, v{r}, v{r} {st}")
        pad = 2 - (len(regs) - 1)
        if pad > 0: g.e(f"s_nop {pad-1}")

def bf16r(g, d, s_): g.e(f"v_cvt_pk_bf16_f32 v{d}, 0, v{s_}")
def bf16r_n(g, regs):
    for r in regs: bf16r(g, r, r)

def stamp(g, k, mode=0):
    if P.DIAG and (mode == 0 or mode == P.DIAG): g.e(f"s_memrealtime s[{66+2*k}:{67+2*k}]")

def tab_finish(g, src, dst, vB2):
    bf16r_n(g, [src, src+1, src+2])
    for k in range(3): g.e(f"v_add_f32 v{src+k}, v{src+k}, v{vB2}")
    g.e(f"v_cvt_pk_bf16_f32 v{dst}, v{src}, v{src+1}\n v_cvt_pk_bf16_f32 v{dst+2}, v{src+2}, v{src+2}")

def gen():
    g = G(); e = g.e
    D = P.D; NX = P.NPRO - D; assert NX <= 20
    g.v(); vLANE = g.v(); vL16 = g.v(); vOFF = g.v()
    vMK = g.v(4); vA = g.v(8, 2); vQ = g.v(4, 2); vS = g.v(8, 2); vACC = g.v(4, 2)
    vB = g.v(8, 2); vT = g.v(16, 2); vML = g.v(8, 2); vMISC = g.v(8, 2); vGA = g.v(8, 2); vGAp = vGA + 4
    vTA = g.v(6); vTL = g.v(); vB2 = g.v(); vXF = g.v(4); vWOO = g.v(); vDT = g.v(2)
    vR = g.v(4*D, 2); vX = g.v(80, 2)
    def ring(i):
        if i < D: return vR + 4*i
        if i < D + NX: return vX + 4*(i - D)
        return vR + 4*((i - D - NX) % D)
    def slot_free_after(i):
        if i < D + NX: return -1
        return i - D - NX if i - D - NX < D else i - D
    sX, sK, sV, sWO, sB2, sWS = "s[8:9]", "s[10:11]", "s[12:13]", "s[16:17]", "s[26:27]", "s[32:33]"
    SW, SH, SB, SS, ST, SFIN = "s34", "s35", "s36", "s37", "s38", "s39"
    vG, vC = vMISC, vMISC+1
    st = {"nk": 0, "nwo": 0, "ab": 0, "tab": 42}
    def kv_issue():
        i = st["nk"]; st["nk"] += 1
        g.vm(f"global_load_dwordx4 {vr(ring(i),4)}, v{vOFF}, {sK if i < NL else sV} nt", ("kv", i))
        e(f"v_add_u32 v{vOFF}, {P.STRIDE*1024}, v{vOFF}\n v_and_b32 v{vOFF}, {NL*1024-1:#x}, v{vOFF}")
    def after_consume(n):
        if st["nk"] < 2*NL and slot_free_after(st["nk"]) <= n and st["nk"] <= n + max(P.LAG, P.NPRO - n*P.CU_N//P.CU_D):
            g.cap(P.W if st["nk"] < P.ENDAT else P.WEND); kv_issue()
        if n >= P.WO_START and (n - P.WO_START) % P.WO_EVERY == 0 and st["nwo"] < 40:
            k = st["nwo"]; st["nwo"] += 1; t = k % 5
            g.vm(f"global_load_dwordx4 {ar(4*k,4)}, v{vWOO}, {sWO} offset:{256*t} {P.POL}", ("wo", k))
            if t == 4: e(f"v_add_u32 v{vWOO}, {4*1280}, v{vWOO}")
    def pre_issue(n, cnt):
        for _ in range(cnt):
            if st["nk"] < 2*NL and slot_free_after(st["nk"]) <= n: kv_issue()
    def rowmac(acc, src, lane, data, build=True, first=False):
        if build:
            st["ab"] ^= 1; a = vA + 4*st["ab"]
            for r in range(4): e(f"v_and_b32_dpp v{a+r}, v{src}, v{vMK+r} row_newbcast:{lane} {DPP}")
            e("s_nop 1")
        a = vA + 4*st["ab"]
        e(f"v_mfma_f32_16x16x32_bf16 {vr(acc,4)}, {vr(a,4)}, {data}, {'0' if first else vr(acc,4)}")
    def tag_poll(regs, reload, sleep, low4=False):
        lr = g.label("Lr"); lo = g.label("Lo")
        e(f"s_mov_b32 s3, {SPIN:#x}\n {lr}:\n v_xor_b32 v{vT}, {ST}, v{regs[0]}")
        for r in regs[1:]: e(f"v_xor_b32 v{vT+1}, {ST}, v{r}\n v_or_b32 v{vT}, v{vT}, v{vT+1}")
        if low4: e(f"v_and_b32 v{vT}, 15, v{vT}")
        e(f"v_cmp_ne_u32 vcc, 0, v{vT}\n s_cbranch_vccz {lo}\n s_sub_u32 s3, s3, 1\n s_cbranch_scc1 {lo}\n s_sleep {sleep}")
        e(reload); e(f"s_waitcnt vmcnt(0)\n s_branch {lr}\n {lo}:")

    e(f"{KN}:\n s_cmp_ge_u32 s2, 256\n s_cbranch_scc1 Lend")
    stamp(g, 0)
    e("s_load_dwordx16 s[8:23], s[0:1], 0\n s_load_dwordx8 s[24:31], s[0:1], 64\n s_load_dwordx2 s[32:33], s[0:1], 96")
    e(f"v_lshrrev_b32 v{vT}, 6, v0\n v_and_b32 v{vLANE}, 63, v0\n v_readfirstlane_b32 {SW}, v{vT}\n v_lshlrev_b32 v{vL16}, 4, v{vLANE}")
    g.c("id = 8j+x : head = 4x + (j>>3), batch = (j>>2)&1, split = j&3")
    e(f"s_and_b32 s52, s2, 7\n s_lshl_b32 s52, s52, 2\n s_lshr_b32 s53, s2, 6\n s_add_u32 {SH}, s52, s53")
    e(f"s_bfe_u32 {SB}, s2, 0x10005\n s_bfe_u32 {SS}, s2, 0x20003")
    e(f"s_lshl_b32 s52, {SB}, 5\n s_add_u32 s52, s52, {SH}\n s_lshl_b32 s54, s52, 2\n s_add_u32 s54, s54, {SS}")
    e(f"s_lshl_b32 s53, s54, 19\n s_lshl_b32 s55, {SW}, 17\n s_add_u32 s53, s53, s55")
    e(f"s_mul_i32 s55, {SW}, {P.ROT*1024}\n s_lshr_b32 s56, s2, 3\n s_mul_i32 s56, s56, {P.ROTJ*1024}\n s_add_u32 s55, s55, s56")
    e(f"s_and_b32 s56, s2, 7\n s_mul_i32 s56, s56, {P.ROTX*1024}\n s_add_u32 s55, s55, s56\n v_add_u32 v{vOFF}, s55, v{vL16}\n v_and_b32 v{vOFF}, {NL*1024-1:#x}, v{vOFF}")
    e(f"s_mov_b32 {SFIN}, 0\n s_cmp_eq_u32 s2, {FINAL_IDS[0]}\n s_cselect_b32 {SFIN}, 1, {SFIN}\n s_cmp_eq_u32 s2, {FINAL_IDS[1]}\n s_cselect_b32 {SFIN}, 1, {SFIN}")
    e(f"v_lshrrev_b32 v{vG}, 4, v{vLANE}\n v_and_b32 v{vC}, 15, v{vLANE}")
    g.c("q work: head id>>3, rows 80*(id&7)..+80; wave w takes row quads w, w+4, .. w+16")
    vWQO, vXO, vXQ = vMISC+2, vMISC+3, vGA
    e(f"s_and_b32 s55, s2, 7\n s_mul_i32 s55, s55, 80\n s_lshl_b32 s56, {SW}, 2\n s_add_u32 s55, s55, s56\n v_add_u32 v{vWQO}, s55, v{vG}")
    e(f"v_lshrrev_b32 v{vT}, 3, v{vC}\n v_mul_u32_u24 v{vT}, 640, v{vT}\n v_add_lshl_u32 v{vXQ}, v{vT}, v{vWQO}, 1")
    e(f"v_lshlrev_b32 v{vWQO}, 13, v{vWQO}\n v_lshl_add_u32 v{vWQO}, v{vC}, 4, v{vWQO}\n s_lshr_b32 s56, s2, 3\n s_lshl_b32 s56, s56, 8\n v_add_u32 v{vWQO}, s56, v{vWQO}")
    e(f"v_lshrrev_b32 v{vT}, 5, v{vLANE}\n v_mul_u32_u24 v{vT}, 1280, v{vT}\n v_and_b32 v{vXO}, 31, v{vLANE}\n v_lshl_add_u32 v{vXO+1}, v{vXO}, 4, v{vT}\n v_lshl_add_u32 v{vXO}, v{vXO}, 3, v{vT}")
    e(f"s_mov_b32 s51, 0x20000\n s_mov_b32 s47, 0x20000\n s_mov_b32 s43, 0x20000")
    e(f"s_lshl_b32 s55, {SB}, 15\n s_add_u32 s55, s55, {WS_ACC}\n s_mov_b32 s46, {P.R*REP_STRIDE}")
    e("s_waitcnt lgkmcnt(0)")
    stamp(g, 1)
    e("s_add_u32 s10, s10, s53\n s_addc_u32 s11, s11, 0\n s_add_u32 s44, s32, s55\n s_addc_u32 s45, s33, 0")
    lz = g.label("Lnz")
    e(f"s_cmp_eq_u32 {SFIN}, 0\n s_cbranch_scc1 {lz}")
    e(f"v_mov_b32 v{vT+4}, 0\n v_mov_b32 v{vT+5}, 0\n v_mov_b32 v{vT+6}, 0\n v_mov_b32 v{vT+7}, 0\n v_lshlrev_b32 v{vT}, 4, v0")
    for k in range((P.R*REP_STRIDE + 4095)//4096):
        e(f"s_movk_i32 s55, {k*4096}\n buffer_store_dwordx4 {vr(vT+4,4)}, v{vT}, s[44:47], s55 offen sc1")
    e(f"{lz}:")
    for _ in range(P.K0): kv_issue()
    vXD, vWQ, X = vX + 28, vX + 40, vX + 60
    assert P.KFIRST + P.KX1 + P.KX2 <= D + 7
    g.vm(f"global_load_dwordx4 {vr(vXD,4)}, v{vXO+1}, {sX}", ("x", 0))
    g.vm(f"global_load_dwordx4 {vr(vXD+4,4)}, v{vXO+1}, {sX} offset:512", ("x", 1))
    g.vm(f"global_load_dwordx2 {vr(vXD+8,2)}, v{vXO}, {sX} offset:1024", ("x", 2))
    for k in range(5):
        g.vm(f"global_load_dwordx4 {vr(vWQ+4*k,4)}, v{vWQO}, s[14:15] {P.POL}", ("wq", k))
        if k < 4: e(f"v_add_u32 v{vWQO}, {16*8192:#x}, v{vWQO}")
    for k in [1, 2, 3, 4, 0]: g.vm(f"global_load_ushort v{vXQ+k}, v{vXQ}, {sX} offset:{32*k}", ("xq", k))
    while st["nk"] < P.KFIRST: kv_issue()
    e(f"s_load_dword {ST}, {sWS}, {WS_E}\n s_add_u32 s12, s12, s53\n s_addc_u32 s13, s13, 0")
    g.c("operand masks: lane (g,i) owns element i&7 of its 8-element slab")
    e(f"v_bfe_u32 v{vT}, v{vC}, 1, 2\n v_and_b32 v{vT+1}, 1, v{vC}\n v_lshlrev_b32 v{vT+1}, 4, v{vT+1}\n v_mov_b32 v{vT+2}, 0xffff\n v_lshlrev_b32 v{vT+1}, v{vT+1}, v{vT+2}")
    for r in range(4): e(f"v_cmp_eq_u32 vcc, {r}, v{vT}\n s_nop 1\n v_cndmask_b32 v{vMK+r}, 0, v{vT+1}, vcc")
    e(f"s_and_b32 s55, s54, {P.R-1}")
    e(f"s_mul_i32 s55, s55, {REP_STRIDE}\n s_add_u32 s40, s44, s55\n s_addc_u32 s41, s45, 0\n s_mov_b32 s42, {NGRAN*16}")
    e("s_mov_b32 s4, 0\n s_mov_b32 s5, -1\n s_mov_b32 s6, 0xff00ff00\n s_mov_b32 s7, 0xff00ff00")
    e(f"s_lshl_b32 s55, {SH}, 7\n s_lshl_b32 s53, {SW}, 5\n s_add_u32 s55, s55, s53\n v_add_u32 v{vWOO}, s55, v{vG}")
    e(f"v_mul_u32_u24 v{vWOO}, 1280, v{vWOO}\n v_lshl_add_u32 v{vWOO}, v{vC}, 4, v{vWOO}")
    e(f"v_mov_b32 v{vT}, 0\n ds_write_b32 v{vT}, v{vT} offset:{L_AGG+256}")
    g.c("LN(x) statistics for both batches (lanes 0-31 batch 0, lanes 32-63 batch 1)")
    g.wait(("x", 2)); stamp(g, 4, 3)
    for _ in range(P.KX1): kv_issue()
    for k in range(10): e(f"v_lshlrev_b32 v{X+2*k}, 16, v{vXD+k}\n v_and_b32 v{X+2*k+1}, 0xffff0000, v{vXD+k}")
    e(f"v_readlane_b32 s55, v{X}, 0\n v_readlane_b32 s56, v{X}, 32\n s_nop 0\n v_mov_b32 v{vT}, s55\n v_mov_b32 v{vT+1}, s56")
    e(f"v_cndmask_b32 v{vT+2}, v{vT}, v{vT+1}, s[4:5]\n v_cndmask_b32 v{vT+3}, v{vT}, v{vT+1}, s[6:7]")
    for k in range(20): e(f"v_sub_f32 v{X+k}, v{X+k}, v{vT+2}")
    S1, S2, M_, V_ = vT+10, vT+11, vT+12, vT+13
    e(f"v_add_f32 v{S1}, v{X}, v{X+1}\n v_mul_f32 v{S2}, v{X}, v{X}\n v_fmac_f32 v{S2}, v{X+1}, v{X+1}")
    for k in range(2, 20): e(f"v_add_f32 v{S1}, v{S1}, v{X+k}\n v_fmac_f32 v{S2}, v{X+k}, v{X+k}")
    e("s_nop 1")
    wave_reduce(g, "v_add_f32", [S1, S2], 5)
    e(f"v_readlane_b32 s55, v{S1}, 31\n v_readlane_b32 s56, v{S1}, 63\n v_readlane_b32 s57, v{S2}, 31\n v_readlane_b32 s58, v{S2}, 63")
    e(f"v_mov_b32 v{vT}, s55\n v_mov_b32 v{vT+1}, s56\n v_mov_b32 v{vT+4}, s57\n v_mov_b32 v{vT+5}, s58")
    e(f"v_cndmask_b32 v{M_}, v{vT}, v{vT+1}, s[6:7]\n v_cndmask_b32 v{V_}, v{vT+4}, v{vT+5}, s[6:7]")
    e(f"v_mul_f32 v{M_}, {f2u(1.0/640):#x}, v{M_}\n v_mul_f32 v{V_}, {f2u(1.0/640):#x}, v{V_}")
    e(f"v_fma_f32 v{V_}, -v{M_}, v{M_}, v{V_}\n v_add_f32 v{M_}, v{vT+3}, v{M_}\n v_max_f32 v{V_}, 0, v{V_}")
    bf16r_n(g, [M_, V_])
    e(f"v_add_f32 v{V_}, {f2u(1e-5):#x}, v{V_}"); bf16r(g, V_, V_)
    e(f"v_sqrt_f32 v{V_}, v{V_}\n s_nop 0"); bf16r(g, V_, V_)
    e(f"v_rcp_f32 v{V_}, v{V_}\n s_nop 0")
    MW = [vS, vS+4, vQ]
    def mix_load():
        g.c("mixer weights: wave w stages 1KB chunk w of w1, b1, w2 (zero past 3456 B)")
        e(f"s_mov_b32 s50, 3456\n s_lshl_b32 s55, {SW}, 10\n v_add_u32 v{vDT}, s55, v{vL16}")
        for a, sp in enumerate([20, 22, 24]):
            e(f"s_mov_b32 s48, s{sp}\n s_mov_b32 s49, s{sp+1}")
            g.vm(f"buffer_load_dwordx4 {vr(MW[a],4)}, v{vL16}, s[48:51], s55 offen {P.POL}", ("mw", a))
        e(f"v_mov_b32 v{vB2}, 0")
        g.vm(f"global_load_ushort v{vB2}, v{vB2}, {sB2}", ("b2", 0))
    def mix_store():
        g.wait(("b2", 0))
        e(f"v_lshlrev_b32 v{vB2}, 16, v{vB2}")
        for a in range(3): e(f"ds_write_b128 v{vDT}, {vr(MW[a],4)} offset:{L_MW + 4096*a}")
    g.wait(("xq", 0)); stamp(g, 5, 3)
    if P.MIXE: mix_load()
    for _ in range(P.KX2): kv_issue()
    for k in range(5):
        r = vXQ + k
        e(f"v_lshlrev_b32 v{r}, 16, v{r}\n v_sub_f32 v{r}, v{r}, v{M_}"); bf16r(g, r, r)
        e(f"v_mul_f32 v{r}, v{r}, v{V_}\n v_cvt_pk_bf16_f32 v{r}, v{r}, v{r}")
        a_ = vA + 4*(k & 1)
        for j in range(4): e(f"v_and_b32 v{a_+j}, v{r}, v{vMK+j}")
        e(f"s_nop 1\n v_mfma_f32_16x16x32_bf16 {vr(vACC,4)}, {vr(a_,4)}, {vr(vWQ+4*k,4)}, {vr(vACC,4) if k else '0'}")
    stamp(g, 2)
    if P.Q4:
        e(f"s_lshl_b32 s55, {SW}, 10\n v_add_u32 v{vT}, s55, v{vL16}\n s_lshl_b32 s55, {SW}, 8\n v_lshl_add_u32 v{vT+1}, v{vC}, 4, s55\n v_lshl_add_u32 v{vT+1}, v{vG}, 10, v{vT+1}\n s_nop 2")
    else:
        e(f"s_lshl_b32 s55, {SW}, 10\n v_add_u32 v{vT}, s55, v{vL16}\n v_and_b32 v{vT+3}, 31, v{vLANE}\n v_lshrrev_b32 v{vT+2}, 5, v{vLANE}")
        e(f"s_lshl_b32 s55, {SW}, 8\n v_lshl_add_u32 v{vT+1}, v{vT+3}, 3, s55\n v_lshl_add_u32 v{vT+1}, v{vT+2}, 11, v{vT+1}\n s_nop 0")
    e(f"ds_write_b128 v{vT}, {vr(vACC,4)} offset:{L_Q1}")
    for _ in range(P.KX3): kv_issue()
    if P.MIXE: mix_store()
    e("s_waitcnt lgkmcnt(0)\n s_barrier")
    stamp(g, 6, 3)
    e(f"s_mul_i32 {ST}, {ST}, 1664525\n s_add_u32 {ST}, {ST}, 1013904223")
    g.c("sum the four partials; every wave hands over 64 of the 256 values: QG[id>>3][batch][id&7]")
    if P.Q4:
        e(f"ds_read_b128 {vr(vT+4,4)}, v{vT+1} offset:{L_Q1}")
        e(f"s_lshr_b32 s55, s2, 3\n s_lshl_b32 s55, s55, 1\n s_lshr_b32 s56, {SW}, 1\n s_add_u32 s55, s55, s56\n s_lshl_b32 s55, s55, 3\n s_and_b32 s56, s2, 7\n s_add_u32 s55, s55, s56")
        e(f"s_lshl_b32 s55, s55, 9\n s_and_b32 s56, {SW}, 1\n s_lshl_b32 s56, s56, 8\n s_add_u32 s55, s55, s56\n s_add_u32 s55, s55, {WS_QG}")
        e(f"v_lshl_add_u32 v{vT+2}, v{vC}, 4, s55\n s_and_b32 s62, {ST}, 15\n v_mov_b32 v{vT+3}, s62\n s_waitcnt lgkmcnt(0)")
        for sw in ("32", "16"):
            for k in range(4): e(f"v_mov_b32 v{vT+8+k}, v{vT+4+k}")
            e("s_nop 0")
            for k in range(4): e(f"v_permlane{sw}_swap_b32 v{vT+4+k}, v{vT+8+k}")
            for k in range(4): e(f"v_add_f32 v{vT+4+k}, v{vT+4+k}, v{vT+8+k}")
        for k in range(4): e(f"v_add_u32 v{vT+4+k}, 8, v{vT+4+k}")
        for k in range(4): e(f"v_bfi_b32 v{vT+4+k}, 15, v{vT+3}, v{vT+4+k}")
        e("s_mov_b64 exec, 0xffff")
        g.vm(f"global_store_dwordx4 v{vT+2}, {vr(vT+4,4)}, {sWS} sc1", ("qs", 0))
        e("s_mov_b64 exec, -1")
    else:
        e(f"ds_read_b64 {vr(vT+8,2)}, v{vT+1} offset:{L_Q1}\n ds_read_b64 {vr(vT+10,2)}, v{vT+1} offset:{L_Q1+1024}")
        e(f"s_lshr_b32 s55, s2, 3\n s_lshl_b32 s55, s55, 1\n s_lshr_b32 s56, {SW}, 1\n s_add_u32 s55, s55, s56\n s_lshl_b32 s55, s55, 3\n s_and_b32 s56, s2, 7\n s_add_u32 s55, s55, s56")
        e(f"s_lshl_b32 s55, s55, 10\n s_and_b32 s56, {SW}, 1\n s_lshl_b32 s56, s56, 9\n s_add_u32 s55, s55, s56\n s_add_u32 s55, s55, {WS_QG}")
        e(f"v_lshl_add_u32 v{vT+2}, v{vT+3}, 4, s55\n v_mov_b32 v{vT+5}, {ST}\n v_mov_b32 v{vT+7}, {ST}\n s_waitcnt lgkmcnt(0)")
        e(f"v_add_f32 v{vT+4}, v{vT+8}, v{vT+10}\n v_add_f32 v{vT+6}, v{vT+9}, v{vT+11}\n v_mov_b32 v{vT+8}, v{vT+4}\n v_mov_b32 v{vT+9}, v{vT+6}\n s_nop 1")
        e(f"v_permlane32_swap_b32 v{vT+4}, v{vT+8}\n v_permlane32_swap_b32 v{vT+6}, v{vT+9}\n v_add_f32 v{vT+4}, v{vT+4}, v{vT+8}\n v_add_f32 v{vT+6}, v{vT+6}, v{vT+9}")
        e("s_mov_b32 exec_hi, 0")
        if P.XQ != 4: g.vm(f"global_store_dwordx4 v{vT+2}, {vr(vT+4,4)}, {sWS} sc1", ("qs", 0))
        e("s_mov_b32 exec_hi, -1")
    g.c("zero-fill-done flag: the fill is older than the wq loads every wave waited for before the barrier")
    lz = g.label("Lnf")
    e(f"s_cmp_eq_u32 {SFIN}, 0\n s_cbranch_scc1 {lz}\n s_cmp_lg_u32 {SW}, 2\n s_cbranch_scc1 {lz}")
    e(f"v_mov_b32 v{vT+8}, {ST}\n v_mov_b32 v{vT+9}, {ST}\n v_mov_b32 v{vT+10}, {ST}\n v_mov_b32 v{vT+11}, {ST}")
    e(f"s_lshl_b32 s55, {SB}, 8\n s_add_u32 s55, s55, {WS_ZF}\n v_mov_b32 v{vT+12}, s55\n s_mov_b64 exec, 1")
    e(f"global_store_dwordx4 v{vT+12}, {vr(vT+8,4)}, {sWS} sc1\n s_mov_b64 exec, -1\n {lz}:")
    if not P.MIXE: mix_load()
    vQGO, vQLO = vMISC+2, vMISC+3
    e(f"s_lshl_b32 s55, {SH}, 1\n s_add_u32 s55, s55, {SB}\n s_lshl_b32 s55, s55, 2\n s_add_u32 s55, s55, {SW}\n s_lshl_b32 s55, s55, {10 if P.Q4 else 11}\n s_add_u32 s55, s55, {WS_QG}")
    e(f"v_add_u32 v{vQGO}, s55, v{vL16}\n s_lshl_b32 s55, {SW}, 10\n v_lshl_add_u32 v{vQLO}, v{vLANE}, {4 if P.Q4 else 3}, s55")
    g.c("table inputs of this wave: entries k*2048 + (wg*8 + 2w + u), k = 0..2, u = 0..1")
    e(f"s_lshl_b32 s55, s2, 2\n s_add_u32 s55, s55, {SW}\n s_lshl_b32 s55, s55, 1\n s_add_u32 s56, s55, {EMIN<<7}\n s_lshl_b32 s56, s56, 16")
    e(f"s_add_u32 s57, s55, {2048 + (EMIN<<7)}\n s_add_u32 s58, s55, {2048 - 3072 + (EMIN<<7) + 0x8000}")
    e(f"s_cmp_ge_u32 s55, 1024\n s_cselect_b32 s57, s58, s57\n s_lshl_b32 s57, s57, 16")
    e(f"s_add_u32 s58, s55, {4096 - 3072 + (EMIN<<7) + 0x8000}\n s_lshl_b32 s58, s58, 16")
    e("s_add_u32 s59, s56, 0x10000\n s_add_u32 s60, s57, 0x10000\n s_add_u32 s61, s58, 0x10000")
    for k in range(6): e(f"v_mov_b32 v{vTA+k}, 0")
    e(f"v_lshlrev_b32 v{vTL}, 2, v{vLANE}")
    mw_at = st["nk"] + 3
    qload = [f"global_load_dwordx4 {vr(vML+4*u,4)}, v{vQGO}, {sWS} offset:{1024*u} sc1" for u in range(2)]
    while st["nk"] < P.NPRO:
        if st["nk"] <= P.QPOLL_USE: g.cap(P.WPRO)
        kv_issue()
        if st["nk"] == mw_at and not P.MIXE: mix_store()
        if P.MIXE and 42 - st["tab"] < P.TABP and st["nk"] <= P.QPOLL_USE:
            for _ in range(2 if P.TABP - (42 - st["tab"]) > P.QPOLL_USE - st["nk"] + 1 else 1):
                e(f"s_call_b64 s[30:31], Ltab{'ABC'[(42 - st['tab']) % 3]}"); st["tab"] -= 1
        if st["nk"] == P.QPOLL_AT:
            if P.Q4 and P.XQ == 1: g.vm(qload[0], ("qg", 1))
            elif P.XQ == 1:
                for u in range(2): g.vm(qload[u], ("qg", u))
            else:
                e(f"s_lshr_b32 s55, s54, 2\n s_lshl_b32 s55, s55, 8\n s_add_u32 s55, s55, 0x200000\n v_lshl_add_u32 v{vQGO}, v{vC}, 4, s55")
                g.vm(f"global_load_dwordx4 {vr(vML,4)}, v{vQGO}, {sWS} nt", ("qg", 1))
        if st["nk"] == P.QPOLL_USE:
            g.wait(("qg", 1)); stamp(g, 8, 3)
            if P.Q4 and P.XQ == 1:
                tag_poll([vML+k for k in range(4)], qload[0], 1, low4=True)
                for k in range(4): e(f"v_and_b32 v{vML+k}, -16, v{vML+k}")
                e(f"ds_write_b128 v{vQLO}, {vr(vML,4)} offset:{L_QP}")
            elif P.XQ == 1: tag_poll([vML+1, vML+3, vML+5, vML+7], "\n".join(qload), 1)
            stamp(g, 9, 3)
            for u in range(2 if P.XQ == 1 and not P.Q4 else 0): e(f"v_mov_b32 v{vML+4*u+1}, v{vML+4*u+2}\n ds_write_b64 v{vQLO}, {vr(vML+4*u,2)} offset:{L_QP + 512*u}")
    assert mw_at <= P.NPRO and mw_at - 3 < P.QPOLL_AT < P.QPOLL_USE <= P.NPRO
    stamp(g, 10, 3)
    e(f"v_lshlrev_b32 v{vDT}, 4, v{vC}\n s_waitcnt lgkmcnt(0)\n s_barrier")
    for rnd in range(4):
        for w in range(2):
            o = L_QP + (2*rnd + w)*512
            e(f"ds_read_b128 {vr(vT+8*w,4)}, v{vDT} offset:{o}\n ds_read_b128 {vr(vT+8*w+4,4)}, v{vDT} offset:{o + 256}")
        for w in range(2):
            e(f"s_waitcnt lgkmcnt({2-2*w})")
            for k in range(8): e(f"v_mov_b32 v{vB+k}, v{vT+k}" if rnd == 0 and w == 0 else f"v_add_f32 v{vB+k}, v{vB+k}, v{vT+8*w+k}")
    for k in range(4): e(f"v_cvt_pk_bf16_f32 v{vQ+k}, v{vB+2*k}, v{vB+2*k+1}" if P.XQ == 1 else f"v_mov_b32 v{vQ+k}, v{vML+k}")
    e("s_mov_b32 s4, 0xcccccccc\n s_mov_b32 s5, 0xcccccccc\n s_mov_b32 s6, 0xaaaaaaaa\n s_mov_b32 s7, 0xaaaaaaaa")
    stamp(g, 3)
    def stepA(i, t): e(f"v_add_f32_dpp v{vB + (i & 7)}, v{t}, v{t} row_mirror row_mask:0xf bank_mask:{'0x3' if i < 8 else '0xc'}")
    for G_ in range(8):
        pend = None
        for i in range(16):
            n = 16*G_ + i
            g.wait(("kv", n))
            r = ring(n); t = vDT + (i & 1)
            e(f"v_dot2_f32_bf16 v{t}, v{r}, v{vQ}, 0")
            for k in range(1, 4): e(f"v_dot2_f32_bf16 v{t}, v{r+k}, v{vQ+k}, v{t}")
            if pend is not None: stepA(*pend)
            pend = (i, t)
            after_consume(n)
            if st["tab"] and n >= P.TABK0 and (n - P.TABK0) % P.TABKE == 0:
                pre_issue(n, P.TPRE)
                e(f"s_call_b64 s[30:31], Ltab{'ABC'[(42 - st['tab']) % 3]}"); st["tab"] -= 1
        if G_ == 7: pre_issue(n, P.PRE)
        e("s_nop 2"); stepA(*pend); e("s_nop 1")
        for u in range(4):
            e(f"v_add_f32_dpp v{vT+u}, v{vB+u}, v{vB+u} row_half_mirror row_mask:0xf bank_mask:0x5")
            e(f"v_add_f32_dpp v{vT+u}, v{vB+u+4}, v{vB+u+4} row_half_mirror row_mask:0xf bank_mask:0xa")
        e("s_nop 0")
        for u in range(4): e(f"v_add_f32_dpp v{vT+4+u}, v{vT+u}, v{vT+u} quad_perm:[2,3,0,1] {DPP}")
        e(f"v_cndmask_b32 v{vT}, v{vT+4}, v{vT+6}, s[4:5]\n v_cndmask_b32 v{vT+1}, v{vT+5}, v{vT+7}, s[4:5]\n s_nop 1")
        e(f"v_add_f32_dpp v{vT+2}, v{vT}, v{vT} quad_perm:[1,0,3,2] {DPP}\n v_add_f32_dpp v{vT+3}, v{vT+1}, v{vT+1} quad_perm:[1,0,3,2] {DPP}")
        e(f"v_cndmask_b32 v{vT}, v{vT+2}, v{vT+3}, s[6:7]")
        bf16r(g, vT, vT)
        e(f"v_mul_f32 v{vT}, {f2u(128**-0.5):#x}, v{vT}")
        bf16r(g, vS+G_, vT)
        if G_ & 1: stamp(g, 4+G_//2, 1 if G_ < 7 else 0)
    assert st["tab"] == 0
    e(f"v_max3_f32 v{vT}, v{vS}, v{vS+1}, v{vS+2}\n v_max3_f32 v{vT+1}, v{vS+3}, v{vS+4}, v{vS+5}\n v_max3_f32 v{vT}, v{vS+6}, v{vS+7}, v{vT}\n v_max_f32 v{vT}, v{vT}, v{vT+1}\n s_nop 1")
    wave_reduce(g, "v_max_f32", [vT])
    e(f"v_readlane_b32 s52, v{vT}, 63\n s_nop 1")
    for k in range(8): e(f"v_subrev_f32 v{vS+k}, s52, v{vS+k}")
    for k in range(8): e(f"v_mul_f32 v{vS+k}, {f2u(LOG2E):#x}, v{vS+k}")
    for k in range(8): e(f"v_exp_f32 v{vS+k}, v{vS+k}")
    e(f"v_add_f32 v{vT}, v{vS}, v{vS+1}\n v_add_f32 v{vT+1}, v{vS+2}, v{vS+3}\n v_add_f32 v{vT+2}, v{vS+4}, v{vS+5}\n v_add_f32 v{vT+3}, v{vS+6}, v{vS+7}")
    e(f"v_add_f32 v{vT}, v{vT}, v{vT+1}\n v_add_f32 v{vT+2}, v{vT+2}, v{vT+3}\n v_add_f32 v{vT}, v{vT}, v{vT+2}")
    for k in range(8): e(f"v_cvt_pk_bf16_f32 v{vS+k}, v{vS+k}, v{vS+k}")
    wave_reduce(g, "v_add_f32", [vT] + [vTA+k for k in range(6)])
    e(f"v_mov_b32 v{vT+4}, s52\n v_mov_b32 v{vT+5}, {ST}\n v_mov_b32 v{vT+6}, v{vT}\n v_mov_b32 v{vT+7}, {ST}")
    tab_finish(g, vTA, vT+8, vB2); tab_finish(g, vTA+3, vT+12, vB2)
    for r in (9, 11, 13, 15): e(f"v_mov_b32 v{vT+r}, {ST}")
    la = g.label("Lag")
    e(f"s_lshl_b32 s55, {SW}, 4\n v_mov_b32 v{vT}, s55\n v_lshlrev_b32 v{vT+1}, 1, v{vT}\n v_mov_b32 v{vT+2}, 1\n v_mov_b32 v{vT+3}, 0")
    e("s_mov_b32 exec_lo, 0\n s_mov_b32 exec_hi, 0x80000000")
    e(f"ds_write_b128 v{vT}, {vr(vT+4,4)} offset:{L_AGG}\n ds_write_b128 v{vT+1}, {vr(vT+8,4)} offset:{L_AGG+64}\n ds_write_b128 v{vT+1}, {vr(vT+12,4)} offset:{L_AGG+80}\n s_waitcnt lgkmcnt(0)")
    e(f"ds_add_rtn_u32 v{vT+2}, v{vT+3}, v{vT+2} offset:{L_AGG+256}\n s_mov_b64 exec, -1\n s_waitcnt lgkmcnt(0)")
    e(f"v_readlane_b32 s55, v{vT+2}, 63\n s_nop 3\n s_cmp_lg_u32 s55, 3\n s_cbranch_scc1 {la}")
    e(f"ds_read_b128 {vr(vT+4,4)}, v{vL16} offset:{L_AGG}")
    e(f"s_lshl_b32 s55, s54, 6\n s_add_u32 s55, s55, {WS_ML}\n s_lshl_b32 s53, s2, 7\n s_add_u32 s53, s53, {WS_TAB - 64}")
    e(f"v_mov_b32 v{vT+8}, s55\n v_mov_b32 v{vT+9}, s53\n v_cmp_lt_u32 vcc, 3, v{vLANE}\n s_nop 1\n v_cndmask_b32 v{vT+8}, v{vT+8}, v{vT+9}, vcc\n v_add_u32 v{vT+8}, v{vT+8}, v{vL16}")
    e(f"s_mov_b64 exec, 0xfff\n s_waitcnt lgkmcnt(0)\n global_store_dwordx4 v{vT+8}, {vr(vT+4,4)}, {sWS} sc1\n s_mov_b64 exec, -1\n {la}:")
    vMLO, vTBO, vXA = vMISC+3, vMISC+4, vMISC+5
    e(f"s_lshr_b32 s55, s54, 2\n s_lshl_b32 s55, s55, 8\n s_add_u32 s55, s55, {WS_ML}\n v_add_u32 v{vMLO}, s55, v{vL16}")
    e(f"s_lshl_b32 s55, {SB}, 8\n s_add_u32 s55, s55, {WS_ZF}\n v_mov_b32 v{vB}, s55\n v_cmp_lt_u32 vcc, 15, v{vLANE}\n s_nop 1\n v_cndmask_b32 v{vMLO}, v{vMLO}, v{vB}, vcc")
    e(f"s_add_u32 s48, s32, {WS_TAB}\n s_addc_u32 s49, s33, 0\n s_lshl_b32 s50, {SFIN}, 15\n v_lshlrev_b32 v{vTBO}, 4, v0")
    g.c("final stage x values (final workgroups only): columns 3j..3j+2, j = min(tid,213), and column 0")
    e(f"v_min_u32 v{vXA}, 213, v0\n v_mul_u32_u24 v{vXA}, 6, v{vXA}\n s_mul_i32 s55, {SB}, 1280\n v_add_u32 v{vXA}, s55, v{vXA}\n v_mov_b32 v{vXF+3}, s55")
    e(f"s_mov_b32 s44, s8\n s_mov_b32 s45, s9\n s_movk_i32 s46, 2560")
    lx = g.label("Lxf")
    e(f"s_cmp_eq_u32 {SFIN}, 0\n s_cbranch_scc1 {lx}")
    for k in range(3): e(f"buffer_load_ushort v{vXF+k}, v{vXA}, s[44:47], 0 offen offset:{2*k}")
    if P.OTOUCH: e(f"global_load_dword v{vT}, v{vXF+3}, s[28:29]")
    e(f"buffer_load_ushort v{vXF+3}, v{vXF+3}, s[44:47], 0 offen\n {lx}:")
    vFA, vOPW, vOPR, vOUW = vML+4, vML+5, vML+6, vML+7
    vPA, vO0, vO1, vFW, vZ = vMISC+2, vMISC+3, vMISC+4, vMISC+5, vMISC+6
    vTB = vX
    tl = [f"s_movk_i32 s55, {k*4096}\n buffer_load_dwordx4 {vr(vTB+4*k,4)}, v{vTBO}, s[48:51], s55 offen sc1" for k in range(8)]
    mload = f"global_load_dwordx4 {vr(vML,4)}, v{vMLO}, {sWS} sc1"
    for i in range(NL):
        n = NL + i
        g.wait(("kv", n))
        rowmac(vACC, vS + i//16, i % 16, vr(ring(n),4), first=(i == 0))
        if i % 32 == 31: stamp(g, 8 + i//32, 1 if i < 96 else 0)
        after_consume(n)
        if i == P.TAB_AT:
            ls = g.label("Ltl"); e(f"s_cmp_eq_u32 {SFIN}, 0\n s_cbranch_scc1 {ls}"); e("\n".join(tl)); e(f"{ls}:"); st["tmark"] = ("kv", st["nk"])
        if i == P.TAB_USE:
            assert st["tmark"] not in g.fifo and st["tmark"][1] < st["nk"]
            ls = g.label("Lts")
            e(f"s_cmp_eq_u32 {SFIN}, 0\n s_cbranch_scc1 {ls}")
            tag_poll([vTB+1+2*k for k in range(16)], "\n".join(tl), 2)
            e(f"v_lshlrev_b32 v{vT}, 3, v0")
            for k in range(8): e(f"v_mov_b32 v{vTB+4*k+1}, v{vTB+4*k+2}\n ds_write_b64 v{vT}, {vr(vTB+4*k,2)} offset:{L_TAB + k*2048}")
            for k in range(4): e(f"v_lshlrev_b32 v{vXF+k}, 16, v{vXF+k}")
            e(f"{ls}:")
        if i == P.POLL_AT:
            lw = g.label("Lw0"); e(f"s_cmp_lg_u32 {SW}, 0\n s_cbranch_scc1 {lw}\n {mload}\n {lw}:"); st["mark"] = ("kv", st["nk"])
        if i == P.POLL_USE:
            pre_issue(n, P.PRE)
            g.c("wave 0: true max / sum of this (batch, head) -> scale factors of the workgroup's waves")
            assert st["mark"] not in g.fifo and st["mark"][1] < st["nk"]
            lw = g.label("Lw0"); e(f"s_cmp_lg_u32 {SW}, 0\n s_cbranch_scc1 {lw}")
            tag_poll([vML+1, vML+3], mload, 2)
            e(f"s_mov_b32 exec_lo, 0xffff0000\n v_mov_b32 v{vML}, s52\n v_mov_b32 v{vML+2}, 0\n s_mov_b32 exec_lo, -1")
            e(f"v_mov_b32 v{vT}, v{vML}\n s_nop 1")
            wave_reduce(g, "v_max_f32", [vT])
            e(f"v_readlane_b32 s53, v{vT}, 63\n s_nop 1")
            e(f"v_subrev_f32 v{vML}, s53, v{vML}\n v_mul_f32 v{vML}, {f2u(LOG2E):#x}, v{vML}\n v_exp_f32 v{vML}, v{vML}\n s_nop 0\n v_mul_f32 v{vT}, v{vML}, v{vML+2}\n s_nop 1")
            wave_reduce(g, "v_add_f32", [vT])
            e(f"v_readlane_b32 s53, v{vT}, 63\n s_nop 1\n v_rcp_f32 v{vT}, s53\n s_lshl_b32 s55, {SS}, 2\n v_mul_f32 v{vML}, v{vML}, v{vT}")
            e(f"v_subrev_u32 v{vT}, s55, v{vLANE}\n v_lshlrev_b32 v{vT}, 2, v{vT}\n s_lshl_b64 exec, 15, s55")
            e(f"ds_write_b32 v{vT}, v{vML} offset:{L_F}\n s_mov_b64 exec, -1\n {lw}:")
            g.c("addresses for the tail")
            e(f"v_lshrrev_b32 v{vFA}, 3, v{vC}\n v_lshlrev_b32 v{vT+1}, 10, v{vFA}\n v_lshlrev_b32 v{vFA}, 3, v{vFA}")
            e(f"s_lshl_b32 s55, {SW}, 9\n v_add_u32 v{vOPW}, s55, v{vL16}")
            e(f"v_and_b32 v{vT}, 1, v{vC}\n v_lshl_add_u32 v{vT+1}, v{vT}, 8, v{vT+1}\n v_bfe_u32 v{vT+2}, v{vC}, 1, 2\n v_lshl_add_u32 v{vT+1}, v{vT+2}, 4, v{vT+1}")
            e(f"v_lshl_add_u32 v{vT+1}, v{vG}, 2, v{vT+1}\n s_lshl_b32 s55, {SW}, 6\n v_add_u32 v{vOPR}, s55, v{vT+1}")
            e(f"s_mul_i32 s55, {SW}, 2560\n v_lshlrev_b32 v{vT}, 5, v{vC}\n v_lshl_add_u32 v{vT}, v{vG}, 4, v{vT}\n v_add_u32 v{vOUW}, s55, v{vT}")
            for k in range(4):
                e(f"v_add_u32 v{vT}, {256*k}, v0\n v_lshlrev_b32 v{vGA+4+k}, 2, v{vT}\n v_lshrrev_b32 v{vT+1}, 2, v{vT}\n v_and_b32 v{vT}, 3, v{vT}")
                e(f"v_mad_u32_u24 v{vT+1}, v{vT+1}, 3, v{vT}\n v_min_u32 v{vGA+k}, 639, v{vT+1}\n v_lshlrev_b32 v{vGA+k}, 2, v{vGA+k}")
            e(f"s_movk_i32 s55, 639\n v_cmp_lt_u32 s[6:7], s55, v{vT+1}\n s_mov_b32 s4, 0x88888888\n s_mov_b32 s5, 0x88888888")
            g.c("final stage constants")
            e(f"v_min_u32 v{vPA}, 213, v0\n v_lshlrev_b32 v{vPA}, 4, v{vPA}\n v_mul_u32_u24 v{vT}, 3, v0")
            e(f"s_movk_i32 s55, 640\n v_cmp_gt_u32 s[56:57], s55, v{vT}\n s_movk_i32 s55, 639\n v_cmp_gt_u32 s[58:59], s55, v{vT}")
            e(f"s_mul_i32 s55, {SB}, 1280\n v_lshl_add_u32 v{vT}, v{vT}, 1, s55\n v_mov_b32 v{vT+1}, 0x7ffffff0")
            e(f"v_cndmask_b32 v{vO0}, v{vT+1}, v{vT}, s[56:57]\n v_cndmask_b32 v{vO1}, v{vT+1}, v{vT}, s[58:59]")
            e(f"s_lshl_b32 s55, {SW}, 3\n v_mov_b32 v{vFW}, s55\n v_mov_b32 v{vZ}, 0")
            e(f"s_lshl_b32 s55, {SB}, 15\n s_add_u32 s55, s55, {WS_ACC}\n s_add_u32 s44, s32, s55\n s_addc_u32 s45, s33, 0\n s_mov_b32 s46, {P.R*REP_STRIDE}")
            e("s_mov_b32 s48, s28\n s_mov_b32 s49, s29\n s_mov_b32 s50, 2560")
    assert st["nwo"] == 40 and st["nk"] == 2*NL and P.TAB_USE < P.POLL_USE and P.WO_START >= 0, st
    oacc = lambda t: vX + 4*t
    e("s_nop 6\n s_mov_b32 exec_hi, 0")
    e(f"ds_write_b128 v{vOPW}, {vr(vACC,4)} offset:{L_QP}\n s_mov_b64 exec, -1")
    g.wait(("wo", 39))
    e("s_waitcnt lgkmcnt(0)\n s_barrier")
    e(f"ds_read2_b32 {vr(vT,2)}, v{vOPR} offset0:0 offset1:128\n ds_read_b64 {vr(vT+2,2)}, v{vFA} offset:{L_F}")
    e(f"s_waitcnt lgkmcnt(0)\n v_mul_f32 v{vT}, v{vT}, v{vT+2}\n v_fmac_f32 v{vT}, v{vT+1}, v{vT+3}\n s_nop 1")
    e(f"v_add_f32_dpp v{vT}, v{vT}, v{vT} row_ror:8 {DPP}\n v_cvt_pk_bf16_f32 v{vT}, v{vT}, v{vT}\n s_nop 1")
    def abuild(ii):
        a = vA + 4*(ii & 1)
        for r in range(4): e(f"v_and_b32_dpp v{a+r}, v{vT}, v{vMK+r} row_newbcast:{ii} {DPP}")
    abuild(0); e("s_nop 1")
    for ii in range(8):
        a = vA + 4*(ii & 1)
        for t in range(5):
            e(f"v_mfma_f32_16x16x32_bf16 {vr(oacc(t),4)}, {vr(a,4)}, {ar(4*(5*ii+t),4)}, {'0' if ii == 0 else vr(oacc(t),4)}")
            if t == 1 and ii < 7: abuild(ii+1)
    e("s_nop 3\n s_mov_b32 exec_hi, 0")
    for t in range(5): e(f"ds_write_b128 v{vOUW}, {vr(oacc(t),4)} offset:{L_OUTP + t*512}")
    e("s_mov_b64 exec, -1\n s_waitcnt lgkmcnt(0)\n s_barrier")
    base64 = L_OUTP // 256
    for k in range(4):
        for p in range(2): e(f"ds_read2st64_b32 {vr(vT+4*k+2*p,2)}, v{vGA+k} offset0:{base64+20*p} offset1:{base64+20*p+10}")
    for k in range(4):
        r = vT+4*k
        e(f"s_waitcnt lgkmcnt({6-2*k})\n v_add_f32 v{r}, v{r}, v{r+1}\n v_add_f32 v{r+2}, v{r+2}, v{r+3}\n v_add_f32 v{r}, v{r}, v{r+2}")
        if k == 3: e(f"v_cndmask_b32 v{r}, v{r}, 0, s[6:7]")
        e(f"v_cndmask_b32 v{r}, v{r}, 1.0, s[4:5]\n buffer_atomic_add_f32 v{r}, v{vGA+4+k}, s[40:43], 0 offen sc1")
    stamp(g, 12)
    e(f"s_cmp_eq_u32 {SFIN}, 0\n s_cbranch_scc1 Ldone")
    PL = vX; H, N, Y = vT, vT+4, vT+8; N2 = vX+72
    le = g.label("Lep")
    g.c("past the tail barriers every workgroup's tag has been seen, so every workgroup has read the epoch word: advance it")
    e(f"s_cmp_lg_u32 s2, {FINAL_IDS[0]}\n s_cbranch_scc1 {le}\n s_cmp_lg_u32 {SW}, 3\n s_cbranch_scc1 {le}")
    e(f"v_mov_b32 v{vB}, {ST}\n s_mov_b64 exec, 1\n global_store_dword v{vZ}, v{vB}, {sWS} offset:{WS_E} sc1\n s_mov_b64 exec, -1\n {le}:")
    def tree(dst, regs):
        regs = list(regs)
        while len(regs) > 2:
            for a in range(0, len(regs) - 1, 2): e(f"v_add_f32 v{regs[a]}, v{regs[a]}, v{regs[a+1]}")
            regs = regs[0::2]
        e(f"v_add_f32 v{dst}, v{regs[0]}, v{regs[1]}")
    e(f"s_mov_b32 s3, {SPIN:#x}")
    if P.PM:
        e("Lpre:")
        for r in range(P.R): e(f"s_movk_i32 s55, {r*REP_STRIDE + 12}\n buffer_load_dword v{PL+r}, v{vZ}, s[44:47], s55 offen sc1")
        e("s_waitcnt vmcnt(0)")
        tree(Y, [PL+r for r in range(P.R)])
        e(f"v_cmp_gt_f32 vcc, {f2u(128.0 - P.PM):#x}, v{Y}\n s_cbranch_vccz Lpoll" + (f"\n s_sleep {P.PSL}" if P.PSL else "") + "\n s_sub_u32 s3, s3, 1\n s_cbranch_scc0 Lpre")
    e("Lpoll:")
    for r in range(P.R):
        e(f"s_movk_i32 s55, {r*REP_STRIDE}\n buffer_load_dwordx4 {vr(PL+8*r,4)}, v{vPA}, s[44:47], s55 offen sc1\n buffer_load_dwordx4 {vr(PL+8*r+4,4)}, v{vZ}, s[44:47], s55 offen sc1")
    e("s_waitcnt vmcnt(0)")
    cs = [PL+4*k+3 for k in range(2*P.R)]
    e(f"v_min_f32 v{Y}, v{cs[0]}, v{cs[1]}")
    for k in range(2, len(cs), 2): e(f"v_min3_f32 v{Y}, v{cs[k]}, v{cs[k+1]}, v{Y}")
    e(f"v_cmp_gt_f32 vcc, {f2u(128.0/P.R):#x}, v{Y}")
    for k in range(3): tree(H+k, [PL+8*r+k for r in range(P.R)])
    tree(H+3, [PL+8*r+4 for r in range(P.R)])
    e("s_cbranch_vccz Lpdone\n s_sub_u32 s3, s3, 1\n s_cbranch_scc0 Lpoll\n Lpdone:")
    stamp(g, 13)
    bf16r_n(g, [H, H+1, H+2])
    for k in range(4): e(f"v_add_f32 v{H+k}, v{H+k}, v{vXF+k}")
    bf16r_n(g, [H, H+1, H+2])
    def ln_block(src, dst, piv, slot):
        s1, s2 = vT+12, vT+13; Z = vX+64
        for k in range(3): e(f"v_sub_f32 v{Y+k}, v{src+k}, v{piv}")
        e(f"v_cndmask_b32 v{Y}, 0, v{Y}, s[56:57]\n v_cndmask_b32 v{Y+1}, 0, v{Y+1}, s[58:59]\n v_cndmask_b32 v{Y+2}, 0, v{Y+2}, s[58:59]")
        e(f"v_add_f32 v{s1}, v{Y}, v{Y+1}\n v_mul_f32 v{s2}, v{Y}, v{Y}\n v_fmac_f32 v{s2}, v{Y+1}, v{Y+1}\n v_add_f32 v{s1}, v{s1}, v{Y+2}\n v_fmac_f32 v{s2}, v{Y+2}, v{Y+2}\n s_nop 0")
        wave_reduce(g, "v_add_f32", [s1, s2]); g.L.pop()
        e(f"s_mov_b32 exec_lo, 0\n s_mov_b32 exec_hi, 0x80000000\n ds_write_b64 v{vFW}, {vr(s1,2)} offset:{L_FIN + slot*32}\n s_mov_b64 exec, -1")
        e("s_waitcnt lgkmcnt(0)\n s_barrier")
        e(f"ds_read_b128 {vr(Z,4)}, v{vZ} offset:{L_FIN + slot*32}\n ds_read_b128 {vr(Z+4,4)}, v{vZ} offset:{L_FIN + slot*32 + 16}\n s_waitcnt lgkmcnt(0)")
        e(f"v_pk_add_f32 {vr(Z,2)}, {vr(Z,2)}, {vr(Z+2,2)}\n v_pk_add_f32 {vr(Z+4,2)}, {vr(Z+4,2)}, {vr(Z+6,2)}\n v_pk_add_f32 {vr(Z,2)}, {vr(Z,2)}, {vr(Z+4,2)}")
        e(f"v_mul_f32 v{Y}, {f2u(1.0/640):#x}, v{Z}\n v_mul_f32 v{Y+1}, {f2u(1.0/640):#x}, v{Z+1}")
        e(f"v_fma_f32 v{Y+1}, -v{Y}, v{Y}, v{Y+1}\n v_add_f32 v{Y}, v{Y}, v{piv}\n v_max_f32 v{Y+1}, 0, v{Y+1}\n v_mov_b32 v{Y+2}, v{Y}")
        bf16r_n(g, [Y+1, Y])
        e(f"v_add_f32 v{Y+1}, {f2u(1e-5):#x}, v{Y+1}")
        for k in range(3): e(f"v_sub_f32 v{dst+k}, v{src+k}, v{Y}")
        bf16r(g, Y+1, Y+1)
        e(f"v_sqrt_f32 v{Y+1}, v{Y+1}")
        bf16r_n(g, [dst, dst+1, dst+2])
        bf16r(g, Y+1, Y+1)
        e(f"v_rcp_f32 v{Y+1}, v{Y+1}\n v_sub_f32 v{Y+2}, v{Y+2}, v{Y}")
        for k in range(3): e(f"v_mul_f32 v{dst+k}, v{dst+k}, v{Y+1}")
        e(f"v_mul_f32 v{dst+3}, v{Y+2}, v{Y+1}")
        bf16r_n(g, [dst, dst+1, dst+2])
    ln_block(H, N, H+3, 0)
    ln_block(N, N2, N+3, 1)
    I = vT+8
    for k in range(3): e(f"v_bfe_u32 v{I+k}, v{N2+k}, 16, 15")
    for k in range(3): e(f"v_subrev_u32 v{I+k}, {EMIN<<7}, v{I+k}\n v_ashrrev_i32 v{N+k}, 31, v{N2+k}")
    e(f"v_max3_u32 v{vT+12}, v{I}, v{I+1}, v{I+2}\n s_movk_i32 s55, 3071")
    for k in range(3): e(f"v_min_u32 v{I+k}, s55, v{I+k}\n v_and_b32 v{N+k}, 3072, v{N+k}")
    e(f"v_cmp_lt_u32 vcc, s55, v{vT+12}" if P.XLIM == 3071 else f"v_cmp_lt_u32 vcc, {P.XLIM}, v{vT+12}")
    for k in range(3): e(f"v_add_u32 v{I+k}, v{I+k}, v{N+k}")
    for k in range(3): e(f"v_and_b32 v{N+k}, 2047, v{I+k}\n v_lshrrev_b32 v{I+k}, 10, v{I+k}")
    for k in range(3): e(f"v_and_b32 v{I+k}, 6, v{I+k}")
    for k in range(3): e(f"v_lshl_add_u32 v{I+k}, v{N+k}, 3, v{I+k}")
    for k in range(3): e(f"ds_read_u16 v{I+k}, v{I+k} offset:{L_TAB}")
    e("s_and_b64 vcc, vcc, s[56:57]\n s_cbranch_scc1 Lslow\n s_waitcnt lgkmcnt(0)\n Lback:")
    for k in range(3): e(f"v_lshlrev_b32 v{I+k}, 16, v{I+k}")
    for k in range(3): e(f"v_add_f32 v{I+k}, v{I+k}, v{H+k}")
    for k in range(3): e(f"v_cvt_pk_bf16_f32 v{I+k}, v{I+k}, v{I+k}")
    e(f"buffer_store_short v{I}, v{vO0}, s[48:51], 0 offen {P.OPOL}\n buffer_store_short v{I+1}, v{vO1}, s[48:51], 0 offen offset:2 {P.OPOL}\n buffer_store_short v{I+2}, v{vO1}, s[48:51], 0 offen offset:4 {P.OPOL}")
    e("Ldone:")
    if P.DIAG:
        if P.DIAG == 7: e("s_waitcnt vmcnt(0)")
        stamp(g, 14)
        e(f"s_lshl_b32 s55, s2, 3\n s_add_u32 s55, s55, {SW}\n s_lshl_b32 s55, s55, 6\n s_add_u32 s55, s55, {WS_DIAG}\n s_getreg_b32 s3, hwreg(HW_REG_XCC_ID)\n s_waitcnt vmcnt(0) lgkmcnt(0)")
        e(f"v_mov_b32 v{vT}, s55\n s_mov_b64 exec, 1")
        for k in range(15): e(f"v_mov_b32 v{vR+k}, s{66+2*k}")
        e(f"v_mov_b32 v{vR+15}, s3")
        for k in range(4): e(f"global_store_dwordx4 v{vT}, {vr(vR+4*k,4)}, {sWS} offset:{16*k}")
    e("Lend:\n s_endpgm")
    SV = vR
    e("Lslow:\n s_waitcnt lgkmcnt(0)\n s_mov_b64 s[52:53], vcc")
    for k in range(16): e(f"v_mov_b32 v{SV+k}, v{vT+k}")
    e("Lslow1:\n s_ff1_i32_b64 s55, s[52:53]\n s_bitset0_b64 s[52:53], s55\n s_mov_b32 m0, s55\n s_nop 1")
    for k in range(3): e(f"v_readlane_b32 s{56+k}, v{N2+k}, m0")
    for k in range(4): e(f"v_mov_b32 v{vTA+k}, 0")
    e(f"v_lshlrev_b32 v{vTL}, 2, v{vLANE}\n s_mov_b32 s3, 13\n s_mov_b32 s59, 0")
    e("Lslow2:\n s_call_b64 s[30:31], LtabA\n s_call_b64 s[30:31], LtabB\n s_sub_u32 s3, s3, 1\n s_cbranch_scc0 Lslow2")
    wave_reduce(g, "v_add_f32", [vTA, vTA+1, vTA+2])
    tab_finish(g, vTA, vT+10, vB2)
    e(f"s_nop 0\n v_readlane_b32 s56, v{vT+10}, 63\n v_readlane_b32 s58, v{vT+12}, 63\n s_nop 3\n s_lshr_b32 s57, s56, 16\n s_and_b32 s56, s56, 0xffff\n s_and_b32 s58, s58, 0xffff")
    for k in range(3): e(f"v_writelane_b32 v{SV+8+k}, s{56+k}, m0")
    e("s_cmp_lg_u64 s[52:53], 0\n s_cbranch_scc1 Lslow1")
    for k in range(16): e(f"v_mov_b32 v{vT+k}, v{SV+k}")
    e("s_branch Lback")
    w2, wl, wh, bl, cc = vGA, vGA+1, vGA+2, vGAp, vGAp+2
    K0 = (2/3.141592653589793)**0.5; C1 = -2*K0*LOG2E; C3 = C1*0.044715
    for part in range(3):
        e(f"Ltab{'ABC'[part]}:")
        if part == 0:
            e(f"ds_read_b32 v{vT}, v{vTL} offset:{L_MW}\n ds_read_b32 v{vT+1}, v{vTL} offset:{L_MW+4096}\n ds_read_b32 v{w2}, v{vTL} offset:{L_MW+8192}")
            e(f"v_add_u32 v{vTL}, 256, v{vTL}\n v_mov_b32 v{cc+1}, {f2u(C1):#x}\n v_mov_b32 v{cc}, {f2u(C3):#x}\n s_waitcnt lgkmcnt(0)")
            e(f"v_lshlrev_b32 v{wl}, 16, v{vT}\n v_and_b32 v{wh}, 0xffff0000, v{vT}\n v_lshlrev_b32 v{bl}, 16, v{vT+1}\n v_and_b32 v{bl+1}, 0xffff0000, v{vT+1}")
        S_ = [(vT+4*j, vT+4*j+2, 56+2*part+j, vTA+2*part+j) for j in range(2)]
        for U, Z, s_, _ in S_: e(f"v_mul_f32 v{U}, s{s_}, v{wl}\n v_mul_f32 v{U+1}, s{s_}, v{wh}")
        for U, Z, s_, _ in S_: e(f"v_cvt_pk_bf16_f32 v{U}, 0, v{U}\n v_cvt_pk_bf16_f32 v{U+1}, 0, v{U+1}")
        for U, Z, s_, _ in S_: e(f"v_pk_add_f32 {vr(U,2)}, {vr(U,2)}, {vr(bl,2)}")
        for U, Z, s_, _ in S_: e(f"v_cvt_pk_bf16_f32 v{U}, 0, v{U}\n v_cvt_pk_bf16_f32 v{U+1}, 0, v{U+1}")
        for U, Z, s_, _ in S_: e(f"v_pk_mul_f32 {vr(Z,2)}, {vr(U,2)}, {vr(U,2)}")
        for U, Z, s_, _ in S_: e(f"v_fma_f32 v{Z}, v{Z}, v{cc}, v{cc+1}\n v_fma_f32 v{Z+1}, v{Z+1}, v{cc}, v{cc+1}")
        for U, Z, s_, _ in S_: e(f"v_pk_mul_f32 {vr(Z,2)}, {vr(Z,2)}, {vr(U,2)}")
        for U, Z, s_, _ in S_: e(f"v_exp_f32 v{Z}, v{Z}\n v_exp_f32 v{Z+1}, v{Z+1}")
        for U, Z, s_, _ in S_: e(f"v_add_f32 v{Z}, 1.0, v{Z}\n v_add_f32 v{Z+1}, 1.0, v{Z+1}")
        for U, Z, s_, _ in S_: e(f"v_rcp_f32 v{Z}, v{Z}\n v_rcp_f32 v{Z+1}, v{Z+1}")
        for U, Z, s_, _ in S_: e(f"v_pk_mul_f32 {vr(Z,2)}, {vr(Z,2)}, {vr(U,2)}")
        for U, Z, s_, acc in S_: e(f"v_cvt_pk_bf16_f32 v{U}, v{Z}, v{Z+1}")
        for U, Z, s_, acc in S_: e(f"v_dot2_f32_bf16 v{acc}, v{U}, v{w2}, v{acc}")
        e("s_nop 1\n s_setpc_b64 s[30:31]")
    return g

HEADER = open("cdna_kernels/" + NAME + ".s.ref").read().split("; Override launch")[0]
DOC = """;
"""

def emit():
    g = gen()
    acc = (g.nv + 3)//4*4; assert acc <= 256
    out = HEADER + f"; @launch grid=(256,1,1) block=(256,1,1) lds={LDS_BYTES}\n" + DOC
    out += '.amdgcn_target "amdgcn-amd-amdhsa--gfx950"\n.text\n'
    out += f".globl {KN}\n.p2align 8\n.type {KN},@function\n" + "\n".join(g.L) + "\n"
    out += f""".section .rodata,"a"
.p2align 6
.amdhsa_kernel {KN}
  .amdhsa_next_free_vgpr {acc + 160}
  .amdhsa_next_free_sgpr 96
  .amdhsa_accum_offset {acc}
  .amdhsa_group_segment_fixed_size 0
  .amdhsa_kernarg_size 104
  .amdhsa_user_sgpr_count 2
  .amdhsa_user_sgpr_kernarg_segment_ptr 1
  .amdhsa_system_sgpr_workgroup_id_x 1
  .amdhsa_float_denorm_mode_32 3
.end_amdhsa_kernel
"""
    return out, g

if __name__ == "__main__":
    ap = argparse.ArgumentParser()
    ap.add_argument("-o", default="cdna_kernels/" + NAME + ".s")
    ap.add_argument("set", nargs="*")
    a = ap.parse_args()
    for kv in a.set:
        k, v = kv.split("=", 1); old = getattr(P, k)
        setattr(P, k, v.replace("_", " ") if isinstance(old, str) else int(v))
    out, g = emit()
    open(a.o, "w").write(out)
    print("vgprs", g.nv, "lines", len(g.L))
```

```python
import sys, struct, argparse

NAME = "sequential_preLN__mha_block_cached__mixer_token_mlp__decode"
KN = NAME + "_kernel"
def f2u(x): return struct.unpack("<I", struct.pack("<f", x))[0]

class P:
    D = 20
    NPRO = 40
    W = 6
    WEND = 5
    ENDAT = 136
    WPRO = 7
    LAG = 16
    CU_N = 1
    CU_D = 2
    PRE = 4
    STRIDE = 5
    ROT = 8
    ROTJ = 16
    ROTX = 6
    R = 4
    POL = "nt"
    K0 = 4
    KFIRST = 12
    KX1 = 0
    KX2 = 4
    KX3 = 8
    QPOLL_AT = 29
    QPOLL_USE = 35
    WO_START = 48
    WO_EVERY = 2
    TABK0 = 2
    TABKE = 3
    TPRE = 0
    TAB_AT = 48
    TAB_USE = 72
    POLL_AT = 80
    POLL_USE = 104
    MIXE = 1
    TABP = 11
    PAIR = 0
    PM = 0
    PSL = 0
    XQ = 1
    Q4 = 1
    XPERT = 0
    LN2A = 1
    TORD = 1
    OTOUCH = 0
    OPOL = ""
    DIAG = 0
    XLIM = 3071
    XMM = 0

WS_E, WS_ZF, WS_ML, WS_TAB, WS_ACC, WS_QG, WS_DIAG = 0x0, 0x1000, 0x2000, 0x10000, 0x20000, 0x40000, 0x100000
REP_STRIDE, NGRAN = 3584, 214
L_QP, L_MW, L_Q1, L_OUTP, L_TAB, L_FIN = 0, 4096, 16384, 16384, 36864, 53248
L_F = L_FIN + 128
L_AGG = L_FIN + 256
LDS_BYTES = 57344
EMIN = 108
LOG2E = 1.4426950408889634
FINAL_IDS = (0, 34)
DPP = "row_mask:0xf bank_mask:0xf"
SPIN = 0x40000
NL = 128

class G:
    def __init__(s): s.L = []; s.fifo = []; s.lab = 0; s.nv = 0
    def e(s, t):
        for x in t.split("\n"):
            x = x.strip()
            if x: s.L.append(("    " if not x.endswith(":") else "") + x)
    def c(s, t): s.L.append("    ; " + t)
    def label(s, p="L"): s.lab += 1; return f"{p}{s.lab}"
    def v(s, n=1, align=1):
        s.nv = (s.nv + align - 1)//align*align
        r = s.nv; s.nv += n; return r
    def vm(s, text, tag):
        s.e(text); s.fifo.append(tag); assert len(s.fifo) <= 63
    def wait(s, tag):
        if tag not in s.fifo: return
        i = s.fifo.index(tag); n = len(s.fifo) - 1 - i
        s.e(f"s_waitcnt vmcnt({n})"); del s.fifo[:i+1]
    def cap(s, W):
        kv = [t for t in s.fifo if t[0] == "kv"]
        if len(kv) >= W: s.wait(kv[-W])

def vr(r, n): return f"v[{r}:{r+n-1}]"
def ar(r, n): return f"a[{r}:{r+n-1}]"

def wave_reduce(g, op, regs, nsteps=6):
    steps = [f"row_ror:8 {DPP}", f"row_ror:4 {DPP}", f"row_ror:2 {DPP}", f"row_ror:1 {DPP}",
             "row_bcast:15 row_mask:0xa bank_mask:0xf", "row_bcast:31 row_mask:0xc bank_mask:0xf"]
    for st in steps[:nsteps]:
        for r in regs: g.e(f"{op}_dpp v{r}, v{r}, v{r} {st}")
        pad = 2 - (len(regs) - 1)
        if pad > 0: g.e(f"s_nop {pad-1}")

def bf16r(g, d, s_): g.e(f"v_cvt_pk_bf16_f32 v{d}, 0, v{s_}")
def bf16r_n(g, regs):
    for r in regs: bf16r(g, r, r)

def stamp(g, k, mode=0):
    if P.DIAG and (mode == 0 or mode == P.DIAG): g.e(f"s_memrealtime s[{66+2*k}:{67+2*k}]")

def tab_finish(g, src, dst, vB2):
    bf16r_n(g, [src, src+1, src+2])
    for k in range(3): g.e(f"v_add_f32 v{src+k}, v{src+k}, v{vB2}")
    g.e(f"v_cvt_pk_bf16_f32 v{dst}, v{src}, v{src+1}\n v_cvt_pk_bf16_f32 v{dst+2}, v{src+2}, v{src+2}")

def gen():
    g = G(); e = g.e
    D = P.D; NX = P.NPRO - D; assert NX <= 20
    g.v(); vLANE = g.v(); vL16 = g.v(); vOFF = g.v()
    vMK = g.v(4); vA = g.v(8, 2); vQ = g.v(4, 2); vS = g.v(8, 2); vACC = g.v(4, 2)
    vB = g.v(8, 2); vT = g.v(16, 2); vML = g.v(8, 2); vMISC = g.v(8, 2); vGA = g.v(8, 2); vGAp = vGA + 4
    vTA = g.v(6); vTL = g.v(); vB2 = g.v(); vXF = g.v(4); vWOO = g.v(); vDT = g.v(2)
    vR = g.v(4*D, 2); vX = g.v(80, 2)
    def ring(i):
        if i < D: return vR + 4*i
        if i < D + NX: return vX + 4*(i - D)
        return vR + 4*((i - D - NX) % D)
    def slot_free_after(i):
        if i < D + NX: return -1
        return i - D - NX if i - D - NX < D else i - D
    sX, sK, sV, sWO, sB2, sWS = "s[8:9]", "s[10:11]", "s[12:13]", "s[16:17]", "s[26:27]", "s[32:33]"
    SW, SH, SB, SS, ST, SFIN = "s34", "s35", "s36", "s37", "s38", "s39"
    vG, vC = vMISC, vMISC+1
    st = {"nk": 0, "nwo": 0, "ab": 0, "tab": 42}
    def kv_issue():
        i = st["nk"]; st["nk"] += 1
        g.vm(f"global_load_dwordx4 {vr(ring(i),4)}, v{vOFF}, {sK if i < NL else sV} nt", ("kv", i))
        e(f"v_add_u32 v{vOFF}, {P.STRIDE*1024}, v{vOFF}\n v_and_b32 v{vOFF}, {NL*1024-1:#x}, v{vOFF}")
    def after_consume(n):
        if st["nk"] < 2*NL and slot_free_after(st["nk"]) <= n and st["nk"] <= n + max(P.LAG, P.NPRO - n*P.CU_N//P.CU_D):
            g.cap(P.W if st["nk"] < P.ENDAT else P.WEND); kv_issue()
        if n >= P.WO_START and (n - P.WO_START) % P.WO_EVERY == 0 and st["nwo"] < 40:
            k = st["nwo"]; st["nwo"] += 1; t = k % 5
            g.vm(f"global_load_dwordx4 {ar(4*k,4)}, v{vWOO}, {sWO} offset:{256*t} {P.POL}", ("wo", k))
            if t == 4: e(f"v_add_u32 v{vWOO}, {4*1280}, v{vWOO}")
    def pre_issue(n, cnt):
        for _ in range(cnt):
            if st["nk"] < 2*NL and slot_free_after(st["nk"]) <= n: kv_issue()
    def rowmac(acc, src, lane, data, build=True, first=False):
        if build:
            st["ab"] ^= 1; a = vA + 4*st["ab"]
            for r in range(4): e(f"v_and_b32_dpp v{a+r}, v{src}, v{vMK+r} row_newbcast:{lane} {DPP}")
            e("s_nop 1")
        a = vA + 4*st["ab"]
        e(f"v_mfma_f32_16x16x32_bf16 {vr(acc,4)}, {vr(a,4)}, {data}, {'0' if first else vr(acc,4)}")
    def tag_poll(regs, reload, sleep, low4=False):
        lr = g.label("Lr"); lo = g.label("Lo")
        e(f"s_mov_b32 s3, {SPIN:#x}\n {lr}:\n v_xor_b32 v{vT}, {ST}, v{regs[0]}")
        for r in regs[1:]: e(f"v_xor_b32 v{vT+1}, {ST}, v{r}\n v_or_b32 v{vT}, v{vT}, v{vT+1}")
        if low4: e(f"v_and_b32 v{vT}, 15, v{vT}")
        e(f"v_cmp_ne_u32 vcc, 0, v{vT}\n s_cbranch_vccz {lo}\n s_sub_u32 s3, s3, 1\n s_cbranch_scc1 {lo}\n s_sleep {sleep}")
        e(reload); e(f"s_waitcnt vmcnt(0)\n s_branch {lr}\n {lo}:")

    e(f"{KN}:\n s_cmp_ge_u32 s2, 256\n s_cbranch_scc1 Lend")
    stamp(g, 0)
    e("s_load_dwordx16 s[8:23], s[0:1], 0\n s_load_dwordx8 s[24:31], s[0:1], 64\n s_load_dwordx2 s[32:33], s[0:1], 96")
    e(f"v_lshrrev_b32 v{vT}, 6, v0\n v_and_b32 v{vLANE}, 63, v0\n v_readfirstlane_b32 {SW}, v{vT}\n v_lshlrev_b32 v{vL16}, 4, v{vLANE}")
    g.c("id = 8j+x : head = 4x + (j>>3), batch = (j>>2)&1, split = j&3")
    e(f"s_and_b32 s52, s2, 7\n s_lshl_b32 s52, s52, 2\n s_lshr_b32 s53, s2, 6\n s_add_u32 {SH}, s52, s53")
    e(f"s_bfe_u32 {SB}, s2, 0x10005\n s_bfe_u32 {SS}, s2, 0x20003")
    e(f"s_lshl_b32 s52, {SB}, 5\n s_add_u32 s52, s52, {SH}\n s_lshl_b32 s54, s52, 2\n s_add_u32 s54, s54, {SS}")
    e(f"s_lshl_b32 s53, s54, 19\n s_lshl_b32 s55, {SW}, 17\n s_add_u32 s53, s53, s55")
    e(f"s_mul_i32 s55, {SW}, {P.ROT*1024}\n s_lshr_b32 s56, s2, 3\n s_mul_i32 s56, s56, {P.ROTJ*1024}\n s_add_u32 s55, s55, s56")
    e(f"s_and_b32 s56, s2, 7\n s_mul_i32 s56, s56, {P.ROTX*1024}\n s_add_u32 s55, s55, s56\n v_add_u32 v{vOFF}, s55, v{vL16}\n v_and_b32 v{vOFF}, {NL*1024-1:#x}, v{vOFF}")
    e(f"s_mov_b32 {SFIN}, 0\n s_cmp_eq_u32 s2, {FINAL_IDS[0]}\n s_cselect_b32 {SFIN}, 1, {SFIN}\n s_cmp_eq_u32 s2, {FINAL_IDS[1]}\n s_cselect_b32 {SFIN}, 1, {SFIN}")
    e(f"v_lshrrev_b32 v{vG}, 4, v{vLANE}\n v_and_b32 v{vC}, 15, v{vLANE}")
    g.c("q work: head id>>3, rows 80*(id&7)..+80; wave w takes row quads w, w+4, .. w+16")
    vWQO, vXO, vXQ = vMISC+2, vMISC+3, vGA
    e(f"s_and_b32 s55, s2, 7\n s_mul_i32 s55, s55, 80\n s_lshl_b32 s56, {SW}, 2\n s_add_u32 s55, s55, s56\n v_add_u32 v{vWQO}, s55, v{vG}")
    e(f"v_lshrrev_b32 v{vT}, 3, v{vC}\n v_mul_u32_u24 v{vT}, 640, v{vT}\n v_add_lshl_u32 v{vXQ}, v{vT}, v{vWQO}, 1")
    e(f"v_lshlrev_b32 v{vWQO}, 13, v{vWQO}\n v_lshl_add_u32 v{vWQO}, v{vC}, 4, v{vWQO}\n s_lshr_b32 s56, s2, 3\n s_lshl_b32 s56, s56, 8\n v_add_u32 v{vWQO}, s56, v{vWQO}")
    e(f"v_lshrrev_b32 v{vT}, 5, v{vLANE}\n v_mul_u32_u24 v{vT}, 1280, v{vT}\n v_and_b32 v{vXO}, 31, v{vLANE}\n v_lshl_add_u32 v{vXO+1}, v{vXO}, 4, v{vT}\n v_lshl_add_u32 v{vXO}, v{vXO}, 3, v{vT}")
    e(f"s_mov_b32 s51, 0x20000\n s_mov_b32 s47, 0x20000\n s_mov_b32 s43, 0x20000")
    e(f"s_lshl_b32 s55, {SB}, 15\n s_add_u32 s55, s55, {WS_ACC}\n s_mov_b32 s46, {P.R*REP_STRIDE}")
    e("s_waitcnt lgkmcnt(0)")
    stamp(g, 1)
    e("s_add_u32 s10, s10, s53\n s_addc_u32 s11, s11, 0\n s_add_u32 s44, s32, s55\n s_addc_u32 s45, s33, 0")
    lz = g.label("Lnz")
    e(f"s_cmp_eq_u32 {SFIN}, 0\n s_cbranch_scc1 {lz}")
    e(f"v_mov_b32 v{vT+4}, 0\n v_mov_b32 v{vT+5}, 0\n v_mov_b32 v{vT+6}, 0\n v_mov_b32 v{vT+7}, 0\n v_lshlrev_b32 v{vT}, 4, v0")
    for k in range((P.R*REP_STRIDE + 4095)//4096):
        e(f"s_movk_i32 s55, {k*4096}\n buffer_store_dwordx4 {vr(vT+4,4)}, v{vT}, s[44:47], s55 offen sc1")
    e(f"{lz}:")
    for _ in range(P.K0): kv_issue()
    vXD, vWQ, X = vX + 28, vX + 40, vX + 60
    assert P.KFIRST + P.KX1 + P.KX2 <= D + 7
    g.vm(f"global_load_dwordx4 {vr(vXD,4)}, v{vXO+1}, {sX}", ("x", 0))
    g.vm(f"global_load_dwordx4 {vr(vXD+4,4)}, v{vXO+1}, {sX} offset:512", ("x", 1))
    g.vm(f"global_load_dwordx2 {vr(vXD+8,2)}, v{vXO}, {sX} offset:1024", ("x", 2))
    for k in range(5):
        g.vm(f"global_load_dwordx4 {vr(vWQ+4*k,4)}, v{vWQO}, s[14:15] {P.POL}", ("wq", k))
        if k < 4: e(f"v_add_u32 v{vWQO}, {16*8192:#x}, v{vWQO}")
    for k in [1, 2, 3, 4, 0]: g.vm(f"global_load_ushort v{vXQ+k}, v{vXQ}, {sX} offset:{32*k}", ("xq", k))
    while st["nk"] < P.KFIRST: kv_issue()
    e(f"s_load_dword {ST}, {sWS}, {WS_E}\n s_add_u32 s12, s12, s53\n s_addc_u32 s13, s13, 0")
    g.c("operand masks: lane (g,i) owns element i&7 of its 8-element slab")
    e(f"v_bfe_u32 v{vT}, v{vC}, 1, 2\n v_and_b32 v{vT+1}, 1, v{vC}\n v_lshlrev_b32 v{vT+1}, 4, v{vT+1}\n v_mov_b32 v{vT+2}, 0xffff\n v_lshlrev_b32 v{vT+1}, v{vT+1}, v{vT+2}")
    for r in range(4): e(f"v_cmp_eq_u32 vcc, {r}, v{vT}\n s_nop 1\n v_cndmask_b32 v{vMK+r}, 0, v{vT+1}, vcc")
    e(f"s_and_b32 s55, s54, {P.R-1}")
    e(f"s_mul_i32 s55, s55, {REP_STRIDE}\n s_add_u32 s40, s44, s55\n s_addc_u32 s41, s45, 0\n s_mov_b32 s42, {NGRAN*16}")
    e("s_mov_b32 s4, 0\n s_mov_b32 s5, -1\n s_mov_b32 s6, 0xff00ff00\n s_mov_b32 s7, 0xff00ff00")
    e(f"s_lshl_b32 s55, {SH}, 7\n s_lshl_b32 s53, {SW}, 5\n s_add_u32 s55, s55, s53\n v_add_u32 v{vWOO}, s55, v{vG}")
    e(f"v_mul_u32_u24 v{vWOO}, 1280, v{vWOO}\n v_lshl_add_u32 v{vWOO}, v{vC}, 4, v{vWOO}")
    e(f"v_mov_b32 v{vT}, 0\n ds_write_b32 v{vT}, v{vT} offset:{L_AGG+256}")
    g.c("LN(x) statistics for both batches (lanes 0-31 batch 0, lanes 32-63 batch 1)")
    g.wait(("x", 2)); stamp(g, 4, 3)
    for _ in range(P.KX1): kv_issue()
    for k in range(10): e(f"v_lshlrev_b32 v{X+2*k}, 16, v{vXD+k}\n v_and_b32 v{X+2*k+1}, 0xffff0000, v{vXD+k}")
    e(f"v_readlane_b32 s55, v{X}, 0\n v_readlane_b32 s56, v{X}, 32\n s_nop 0\n v_mov_b32 v{vT}, s55\n v_mov_b32 v{vT+1}, s56")
    e(f"v_cndmask_b32 v{vT+2}, v{vT}, v{vT+1}, s[4:5]\n v_cndmask_b32 v{vT+3}, v{vT}, v{vT+1}, s[6:7]")
    for k in range(20): e(f"v_sub_f32 v{X+k}, v{X+k}, v{vT+2}")
    S1, S2, M_, V_ = vT+10, vT+11, vT+12, vT+13
    e(f"v_add_f32 v{S1}, v{X}, v{X+1}\n v_mul_f32 v{S2}, v{X}, v{X}\n v_fmac_f32 v{S2}, v{X+1}, v{X+1}")
    for k in range(2, 20): e(f"v_add_f32 v{S1}, v{S1}, v{X+k}\n v_fmac_f32 v{S2}, v{X+k}, v{X+k}")
    e("s_nop 1")
    wave_reduce(g, "v_add_f32", [S1, S2], 5)
    e(f"v_readlane_b32 s55, v{S1}, 31\n v_readlane_b32 s56, v{S1}, 63\n v_readlane_b32 s57, v{S2}, 31\n v_readlane_b32 s58, v{S2}, 63")
    e(f"v_mov_b32 v{vT}, s55\n v_mov_b32 v{vT+1}, s56\n v_mov_b32 v{vT+4}, s57\n v_mov_b32 v{vT+5}, s58")
    e(f"v_cndmask_b32 v{M_}, v{vT}, v{vT+1}, s[6:7]\n v_cndmask_b32 v{V_}, v{vT+4}, v{vT+5}, s[6:7]")
    e(f"v_mul_f32 v{M_}, {f2u(1.0/640):#x}, v{M_}\n v_mul_f32 v{V_}, {f2u(1.0/640):#x}, v{V_}")
    e(f"v_fma_f32 v{V_}, -v{M_}, v{M_}, v{V_}\n v_add_f32 v{M_}, v{vT+3}, v{M_}\n v_max_f32 v{V_}, 0, v{V_}")
    bf16r_n(g, [M_, V_])
    e(f"v_add_f32 v{V_}, {f2u(1e-5):#x}, v{V_}"); bf16r(g, V_, V_)
    e(f"v_sqrt_f32 v{V_}, v{V_}\n s_nop 0"); bf16r(g, V_, V_)
    e(f"v_rcp_f32 v{V_}, v{V_}\n s_nop 0")
    MW = [vS, vS+4, vQ]
    def mix_load():
        g.c("mixer weights: wave w stages 1KB chunk w of w1, b1, w2 (zero past 3456 B)")
        e(f"s_mov_b32 s50, 3456\n s_lshl_b32 s55, {SW}, 10\n v_add_u32 v{vDT}, s55, v{vL16}")
        for a, sp in enumerate([20, 22, 24]):
            e(f"s_mov_b32 s48, s{sp}\n s_mov_b32 s49, s{sp+1}")
            g.vm(f"buffer_load_dwordx4 {vr(MW[a],4)}, v{vL16}, s[48:51], s55 offen {P.POL}", ("mw", a))
        e(f"v_mov_b32 v{vB2}, 0")
        g.vm(f"global_load_ushort v{vB2}, v{vB2}, {sB2}", ("b2", 0))
    def mix_store():
        g.wait(("b2", 0))
        e(f"v_lshlrev_b32 v{vB2}, 16, v{vB2}")
        for a in range(3): e(f"ds_write_b128 v{vDT}, {vr(MW[a],4)} offset:{L_MW + 4096*a}")
    g.wait(("xq", 0)); stamp(g, 5, 3)
    if P.MIXE: mix_load()
    for _ in range(P.KX2): kv_issue()
    for k in range(5):
        r = vXQ + k
        e(f"v_lshlrev_b32 v{r}, 16, v{r}\n v_sub_f32 v{r}, v{r}, v{M_}"); bf16r(g, r, r)
        e(f"v_mul_f32 v{r}, v{r}, v{V_}\n v_cvt_pk_bf16_f32 v{r}, v{r}, v{r}")
        a_ = vA + 4*(k & 1)
        for j in range(4): e(f"v_and_b32 v{a_+j}, v{r}, v{vMK+j}")
        e(f"s_nop 1\n v_mfma_f32_16x16x32_bf16 {vr(vACC,4)}, {vr(a_,4)}, {vr(vWQ+4*k,4)}, {vr(vACC,4) if k else '0'}")
    stamp(g, 2)
    if P.Q4:
        e(f"s_lshl_b32 s55, {SW}, 10\n v_add_u32 v{vT}, s55, v{vL16}\n s_lshl_b32 s55, {SW}, 8\n v_lshl_add_u32 v{vT+1}, v{vC}, 4, s55\n v_lshl_add_u32 v{vT+1}, v{vG}, 10, v{vT+1}\n s_nop 2")
    else:
        e(f"s_lshl_b32 s55, {SW}, 10\n v_add_u32 v{vT}, s55, v{vL16}\n v_and_b32 v{vT+3}, 31, v{vLANE}\n v_lshrrev_b32 v{vT+2}, 5, v{vLANE}")
        e(f"s_lshl_b32 s55, {SW}, 8\n v_lshl_add_u32 v{vT+1}, v{vT+3}, 3, s55\n v_lshl_add_u32 v{vT+1}, v{vT+2}, 11, v{vT+1}\n s_nop 0")
    e(f"ds_write_b128 v{vT}, {vr(vACC,4)} offset:{L_Q1}")
    for _ in range(P.KX3): kv_issue()
    if P.MIXE: mix_store()
    e("s_waitcnt lgkmcnt(0)\n s_barrier")
    stamp(g, 6, 3)
    e(f"s_mul_i32 {ST}, {ST}, 1664525\n s_add_u32 {ST}, {ST}, 1013904223")
    g.c("sum the four partials; every wave hands over 64 of the 256 values: QG[id>>3][batch][id&7]")
    if P.Q4:
        e(f"ds_read_b128 {vr(vT+4,4)}, v{vT+1} offset:{L_Q1}")
        e(f"s_lshr_b32 s55, s2, 3\n s_lshl_b32 s55, s55, 1\n s_lshr_b32 s56, {SW}, 1\n s_add_u32 s55, s55, s56\n s_lshl_b32 s55, s55, 3\n s_and_b32 s56, s2, 7\n s_add_u32 s55, s55, s56")
        e(f"s_lshl_b32 s55, s55, 9\n s_and_b32 s56, {SW}, 1\n s_lshl_b32 s56, s56, 8\n s_add_u32 s55, s55, s56\n s_add_u32 s55, s55, {WS_QG}")
        e(f"v_lshl_add_u32 v{vT+2}, v{vC}, 4, s55\n s_and_b32 s62, {ST}, 15\n v_mov_b32 v{vT+3}, s62\n s_waitcnt lgkmcnt(0)")
        for sw in ("32", "16"):
            for k in range(4): e(f"v_mov_b32 v{vT+8+k}, v{vT+4+k}")
            e("s_nop 0")
            for k in range(4): e(f"v_permlane{sw}_swap_b32 v{vT+4+k}, v{vT+8+k}")
            for k in range(4): e(f"v_add_f32 v{vT+4+k}, v{vT+4+k}, v{vT+8+k}")
        for k in range(4): e(f"v_add_u32 v{vT+4+k}, 8, v{vT+4+k}")
        for k in range(4): e(f"v_bfi_b32 v{vT+4+k}, 15, v{vT+3}, v{vT+4+k}")
        e("s_mov_b64 exec, 0xffff")
        g.vm(f"global_store_dwordx4 v{vT+2}, {vr(vT+4,4)}, {sWS} sc1", ("qs", 0))
        e("s_mov_b64 exec, -1")
    else:
        e(f"ds_read_b64 {vr(vT+8,2)}, v{vT+1} offset:{L_Q1}\n ds_read_b64 {vr(vT+10,2)}, v{vT+1} offset:{L_Q1+1024}")
        e(f"s_lshr_b32 s55, s2, 3\n s_lshl_b32 s55, s55, 1\n s_lshr_b32 s56, {SW}, 1\n s_add_u32 s55, s55, s56\n s_lshl_b32 s55, s55, 3\n s_and_b32 s56, s2, 7\n s_add_u32 s55, s55, s56")
        e(f"s_lshl_b32 s55, s55, 10\n s_and_b32 s56, {SW}, 1\n s_lshl_b32 s56, s56, 9\n s_add_u32 s55, s55, s56\n s_add_u32 s55, s55, {WS_QG}")
        e(f"v_lshl_add_u32 v{vT+2}, v{vT+3}, 4, s55\n v_mov_b32 v{vT+5}, {ST}\n v_mov_b32 v{vT+7}, {ST}\n s_waitcnt lgkmcnt(0)")
        e(f"v_add_f32 v{vT+4}, v{vT+8}, v{vT+10}\n v_add_f32 v{vT+6}, v{vT+9}, v{vT+11}\n v_mov_b32 v{vT+8}, v{vT+4}\n v_mov_b32 v{vT+9}, v{vT+6}\n s_nop 1")
        e(f"v_permlane32_swap_b32 v{vT+4}, v{vT+8}\n v_permlane32_swap_b32 v{vT+6}, v{vT+9}\n v_add_f32 v{vT+4}, v{vT+4}, v{vT+8}\n v_add_f32 v{vT+6}, v{vT+6}, v{vT+9}")
        e("s_mov_b32 exec_hi, 0")
        if P.XQ != 4: g.vm(f"global_store_dwordx4 v{vT+2}, {vr(vT+4,4)}, {sWS} sc1", ("qs", 0))
        e("s_mov_b32 exec_hi, -1")
    g.c("zero-fill-done flag: the fill is older than the wq loads every wave waited for before the barrier")
    lz = g.label("Lnf")
    e(f"s_cmp_eq_u32 {SFIN}, 0\n s_cbranch_scc1 {lz}\n s_cmp_lg_u32 {SW}, 2\n s_cbranch_scc1 {lz}")
    e(f"v_mov_b32 v{vT+8}, {ST}\n v_mov_b32 v{vT+9}, {ST}\n v_mov_b32 v{vT+10}, {ST}\n v_mov_b32 v{vT+11}, {ST}")
    e(f"s_lshl_b32 s55, {SB}, 8\n s_add_u32 s55, s55, {WS_ZF}\n v_mov_b32 v{vT+12}, s55\n s_mov_b64 exec, 1")
    e(f"global_store_dwordx4 v{vT+12}, {vr(vT+8,4)}, {sWS} sc1\n s_mov_b64 exec, -1\n {lz}:")
    if not P.MIXE: mix_load()
    vQGO, vQLO = vMISC+2, vMISC+3
    e(f"s_lshl_b32 s55, {SH}, 1\n s_add_u32 s55, s55, {SB}\n s_lshl_b32 s55, s55, 2\n s_add_u32 s55, s55, {SW}\n s_lshl_b32 s55, s55, {10 if P.Q4 else 11}\n s_add_u32 s55, s55, {WS_QG}")
    e(f"v_add_u32 v{vQGO}, s55, v{vL16}\n s_lshl_b32 s55, {SW}, 10\n v_lshl_add_u32 v{vQLO}, v{vLANE}, {4 if P.Q4 else 3}, s55")
    g.c("table inputs of this wave: entries k*2048 + (wg*8 + 2w + u), k = 0..2, u = 0..1")
    e(f"s_lshl_b32 s55, s2, 2\n s_add_u32 s55, s55, {SW}\n s_lshl_b32 s55, s55, 1\n s_add_u32 s56, s55, {EMIN<<7}\n s_lshl_b32 s56, s56, 16")
    e(f"s_add_u32 s57, s55, {2048 + (EMIN<<7)}\n s_add_u32 s58, s55, {2048 - 3072 + (EMIN<<7) + 0x8000}")
    e(f"s_cmp_ge_u32 s55, 1024\n s_cselect_b32 s57, s58, s57\n s_lshl_b32 s57, s57, 16")
    e(f"s_add_u32 s58, s55, {4096 - 3072 + (EMIN<<7) + 0x8000}\n s_lshl_b32 s58, s58, 16")
    e("s_add_u32 s59, s56, 0x10000\n s_add_u32 s60, s57, 0x10000\n s_add_u32 s61, s58, 0x10000")
    for k in range(6): e(f"v_mov_b32 v{vTA+k}, 0")
    e(f"v_lshlrev_b32 v{vTL}, 2, v{vLANE}")
    mw_at = st["nk"] + 3
    qload = [f"global_load_dwordx4 {vr(vML+4*u,4)}, v{vQGO}, {sWS} offset:{1024*u} sc1" for u in range(2)]
    while st["nk"] < P.NPRO:
        if st["nk"] <= P.QPOLL_USE: g.cap(P.WPRO)
        kv_issue()
        if st["nk"] == mw_at and not P.MIXE: mix_store()
        if P.MIXE and 42 - st["tab"] < P.TABP and st["nk"] <= P.QPOLL_USE:
            for _ in range(2 if P.TABP - (42 - st["tab"]) > P.QPOLL_USE - st["nk"] + 1 else 1):
                e(f"s_call_b64 s[30:31], Ltab{'ABC'[(42 - st['tab']) % 3]}"); st["tab"] -= 1
        if st["nk"] == P.QPOLL_AT:
            if P.Q4 and P.XQ == 1: g.vm(qload[0], ("qg", 1))
            elif P.XQ == 1:
                for u in range(2): g.vm(qload[u], ("qg", u))
            else:
                e(f"s_lshr_b32 s55, s54, 2\n s_lshl_b32 s55, s55, 8\n s_add_u32 s55, s55, 0x200000\n v_lshl_add_u32 v{vQGO}, v{vC}, 4, s55")
                g.vm(f"global_load_dwordx4 {vr(vML,4)}, v{vQGO}, {sWS} nt", ("qg", 1))
        if st["nk"] == P.QPOLL_USE:
            g.wait(("qg", 1)); stamp(g, 8, 3)
            if P.Q4 and P.XQ == 1:
                tag_poll([vML+k for k in range(4)], qload[0], 1, low4=True)
                for k in range(4): e(f"v_and_b32 v{vML+k}, -16, v{vML+k}")
                e(f"ds_write_b128 v{vQLO}, {vr(vML,4)} offset:{L_QP}")
            elif P.XQ == 1: tag_poll([vML+1, vML+3, vML+5, vML+7], "\n".join(qload), 1)
            stamp(g, 9, 3)
            for u in range(2 if P.XQ == 1 and not P.Q4 else 0): e(f"v_mov_b32 v{vML+4*u+1}, v{vML+4*u+2}\n ds_write_b64 v{vQLO}, {vr(vML+4*u,2)} offset:{L_QP + 512*u}")
    assert mw_at <= P.NPRO and mw_at - 3 < P.QPOLL_AT < P.QPOLL_USE <= P.NPRO
    stamp(g, 10, 3)
    e(f"v_lshlrev_b32 v{vDT}, 4, v{vC}\n s_waitcnt lgkmcnt(0)\n s_barrier")
    for rnd in range(4):
        for w in range(2):
            o = L_QP + (2*rnd + w)*512
            e(f"ds_read_b128 {vr(vT+8*w,4)}, v{vDT} offset:{o}\n ds_read_b128 {vr(vT+8*w+4,4)}, v{vDT} offset:{o + 256}")
        for w in range(2):
            e(f"s_waitcnt lgkmcnt({2-2*w})")
            for k in range(8): e(f"v_mov_b32 v{vB+k}, v{vT+k}" if rnd == 0 and w == 0 else f"v_add_f32 v{vB+k}, v{vB+k}, v{vT+8*w+k}")
    for k in range(4): e(f"v_cvt_pk_bf16_f32 v{vQ+k}, v{vB+2*k}, v{vB+2*k+1}" if P.XQ == 1 else f"v_mov_b32 v{vQ+k}, v{vML+k}")
    e("s_mov_b32 s4, 0xcccccccc\n s_mov_b32 s5, 0xcccccccc\n s_mov_b32 s6, 0xaaaaaaaa\n s_mov_b32 s7, 0xaaaaaaaa")
    stamp(g, 3)
    def stepA(i, t): e(f"v_add_f32_dpp v{vB + (i & 7)}, v{t}, v{t} row_mirror row_mask:0xf bank_mask:{'0x3' if i < 8 else '0xc'}")
    for G_ in range(8):
        pend = None
        for i in range(16):
            n = 16*G_ + i
            g.wait(("kv", n))
            r = ring(n); t = vDT + (i & 1)
            e(f"v_dot2_f32_bf16 v{t}, v{r}, v{vQ}, 0")
            for k in range(1, 4): e(f"v_dot2_f32_bf16 v{t}, v{r+k}, v{vQ+k}, v{t}")
            if pend is not None: stepA(*pend)
            pend = (i, t)
            after_consume(n)
            if st["tab"] and n >= P.TABK0 and (n - P.TABK0) % P.TABKE == 0:
                pre_issue(n, P.TPRE)
                e(f"s_call_b64 s[30:31], Ltab{'ABC'[(42 - st['tab']) % 3]}"); st["tab"] -= 1
        if G_ == 7: pre_issue(n, P.PRE)
        e("s_nop 2"); stepA(*pend); e("s_nop 1")
        for u in range(4):
            e(f"v_add_f32_dpp v{vT+u}, v{vB+u}, v{vB+u} row_half_mirror row_mask:0xf bank_mask:0x5")
            e(f"v_add_f32_dpp v{vT+u}, v{vB+u+4}, v{vB+u+4} row_half_mirror row_mask:0xf bank_mask:0xa")
        e("s_nop 0")
        for u in range(4): e(f"v_add_f32_dpp v{vT+4+u}, v{vT+u}, v{vT+u} quad_perm:[2,3,0,1] {DPP}")
        e(f"v_cndmask_b32 v{vT}, v{vT+4}, v{vT+6}, s[4:5]\n v_cndmask_b32 v{vT+1}, v{vT+5}, v{vT+7}, s[4:5]\n s_nop 1")
        e(f"v_add_f32_dpp v{vT+2}, v{vT}, v{vT} quad_perm:[1,0,3,2] {DPP}\n v_add_f32_dpp v{vT+3}, v{vT+1}, v{vT+1} quad_perm:[1,0,3,2] {DPP}")
        e(f"v_cndmask_b32 v{vT}, v{vT+2}, v{vT+3}, s[6:7]")
        bf16r(g, vT, vT)
        e(f"v_mul_f32 v{vT}, {f2u(128**-0.5):#x}, v{vT}")
        bf16r(g, vS+G_, vT)
        if G_ & 1: stamp(g, 4+G_//2, 1 if G_ < 7 else 0)
    assert st["tab"] == 0
    e(f"v_max3_f32 v{vT}, v{vS}, v{vS+1}, v{vS+2}\n v_max3_f32 v{vT+1}, v{vS+3}, v{vS+4}, v{vS+5}\n v_max3_f32 v{vT}, v{vS+6}, v{vS+7}, v{vT}\n v_max_f32 v{vT}, v{vT}, v{vT+1}\n s_nop 1")
    wave_reduce(g, "v_max_f32", [vT])
    e(f"v_readlane_b32 s52, v{vT}, 63\n s_nop 1")
    for k in range(8): e(f"v_subrev_f32 v{vS+k}, s52, v{vS+k}")
    for k in range(8): e(f"v_mul_f32 v{vS+k}, {f2u(LOG2E):#x}, v{vS+k}")
    for k in range(8): e(f"v_exp_f32 v{vS+k}, v{vS+k}")
    e(f"v_add_f32 v{vT}, v{vS}, v{vS+1}\n v_add_f32 v{vT+1}, v{vS+2}, v{vS+3}\n v_add_f32 v{vT+2}, v{vS+4}, v{vS+5}\n v_add_f32 v{vT+3}, v{vS+6}, v{vS+7}")
    e(f"v_add_f32 v{vT}, v{vT}, v{vT+1}\n v_add_f32 v{vT+2}, v{vT+2}, v{vT+3}\n v_add_f32 v{vT}, v{vT}, v{vT+2}")
    for k in range(8): e(f"v_cvt_pk_bf16_f32 v{vS+k}, v{vS+k}, v{vS+k}")
    wave_reduce(g, "v_add_f32", [vT] + [vTA+k for k in range(6)])
    e(f"v_mov_b32 v{vT+4}, s52\n v_mov_b32 v{vT+5}, {ST}\n v_mov_b32 v{vT+6}, v{vT}\n v_mov_b32 v{vT+7}, {ST}")
    tab_finish(g, vTA, vT+8, vB2); tab_finish(g, vTA+3, vT+12, vB2)
    for r in (9, 11, 13, 15): e(f"v_mov_b32 v{vT+r}, {ST}")
    la = g.label("Lag")
    e(f"s_lshl_b32 s55, {SW}, 4\n v_mov_b32 v{vT}, s55\n v_lshlrev_b32 v{vT+1}, 1, v{vT}\n v_mov_b32 v{vT+2}, 1\n v_mov_b32 v{vT+3}, 0")
    e("s_mov_b32 exec_lo, 0\n s_mov_b32 exec_hi, 0x80000000")
    e(f"ds_write_b128 v{vT}, {vr(vT+4,4)} offset:{L_AGG}\n ds_write_b128 v{vT+1}, {vr(vT+8,4)} offset:{L_AGG+64}\n ds_write_b128 v{vT+1}, {vr(vT+12,4)} offset:{L_AGG+80}\n s_waitcnt lgkmcnt(0)")
    e(f"ds_add_rtn_u32 v{vT+2}, v{vT+3}, v{vT+2} offset:{L_AGG+256}\n s_mov_b64 exec, -1\n s_waitcnt lgkmcnt(0)")
    e(f"v_readlane_b32 s55, v{vT+2}, 63\n s_nop 3\n s_cmp_lg_u32 s55, 3\n s_cbranch_scc1 {la}")
    e(f"ds_read_b128 {vr(vT+4,4)}, v{vL16} offset:{L_AGG}")
    e(f"s_lshl_b32 s55, s54, 6\n s_add_u32 s55, s55, {WS_ML}\n s_lshl_b32 s53, s2, 7\n s_add_u32 s53, s53, {WS_TAB - 64}")
    e(f"v_mov_b32 v{vT+8}, s55\n v_mov_b32 v{vT+9}, s53\n v_cmp_lt_u32 vcc, 3, v{vLANE}\n s_nop 1\n v_cndmask_b32 v{vT+8}, v{vT+8}, v{vT+9}, vcc\n v_add_u32 v{vT+8}, v{vT+8}, v{vL16}")
    e(f"s_mov_b64 exec, 0xfff\n s_waitcnt lgkmcnt(0)\n global_store_dwordx4 v{vT+8}, {vr(vT+4,4)}, {sWS} sc1\n s_mov_b64 exec, -1\n {la}:")
    vMLO, vTBO, vXA = vMISC+3, vMISC+4, vMISC+5
    e(f"s_lshr_b32 s55, s54, 2\n s_lshl_b32 s55, s55, 8\n s_add_u32 s55, s55, {WS_ML}\n v_add_u32 v{vMLO}, s55, v{vL16}")
    e(f"s_lshl_b32 s55, {SB}, 8\n s_add_u32 s55, s55, {WS_ZF}\n v_mov_b32 v{vB}, s55\n v_cmp_lt_u32 vcc, 15, v{vLANE}\n s_nop 1\n v_cndmask_b32 v{vMLO}, v{vMLO}, v{vB}, vcc")
    e(f"s_add_u32 s48, s32, {WS_TAB}\n s_addc_u32 s49, s33, 0\n s_lshl_b32 s50, {SFIN}, 15\n v_lshlrev_b32 v{vTBO}, 4, v0")
    g.c("final stage x values (final workgroups only): columns 3j..3j+2, j = min(tid,213), and column 0")
    e(f"v_min_u32 v{vXA}, 213, v0\n v_mul_u32_u24 v{vXA}, 6, v{vXA}\n s_mul_i32 s55, {SB}, 1280\n v_add_u32 v{vXA}, s55, v{vXA}\n v_mov_b32 v{vXF+3}, s55")
    e(f"s_mov_b32 s44, s8\n s_mov_b32 s45, s9\n s_movk_i32 s46, 2560")
    lx = g.label("Lxf")
    e(f"s_cmp_eq_u32 {SFIN}, 0\n s_cbranch_scc1 {lx}")
    for k in range(3): e(f"buffer_load_ushort v{vXF+k}, v{vXA}, s[44:47], 0 offen offset:{2*k}")
    if P.OTOUCH: e(f"global_load_dword v{vT}, v{vXF+3}, s[28:29]")
    e(f"buffer_load_ushort v{vXF+3}, v{vXF+3}, s[44:47], 0 offen\n {lx}:")
    vFA, vOPW, vOPR, vOUW = vML+4, vML+5, vML+6, vML+7
    vPA, vO0, vO1, vFW, vZ = vMISC+2, vMISC+3, vMISC+4, vMISC+5, vMISC+6
    vTB = vX
    tl = [f"s_movk_i32 s55, {k*4096}\n buffer_load_dwordx4 {vr(vTB+4*k,4)}, v{vTBO}, s[48:51], s55 offen sc1" for k in range(8)]
    mload = f"global_load_dwordx4 {vr(vML,4)}, v{vMLO}, {sWS} sc1"
    for i in range(NL):
        n = NL + i
        g.wait(("kv", n))
        rowmac(vACC, vS + i//16, i % 16, vr(ring(n),4), first=(i == 0))
        if i % 32 == 31: stamp(g, 8 + i//32, 1 if i < 96 else 0)
        after_consume(n)
        if i == P.TAB_AT:
            ls = g.label("Ltl"); e(f"s_cmp_eq_u32 {SFIN}, 0\n s_cbranch_scc1 {ls}"); e("\n".join(tl)); e(f"{ls}:"); st["tmark"] = ("kv", st["nk"])
        if i == P.TAB_USE:
            assert st["tmark"] not in g.fifo and st["tmark"][1] < st["nk"]
            ls = g.label("Lts")
            e(f"s_cmp_eq_u32 {SFIN}, 0\n s_cbranch_scc1 {ls}")
            tag_poll([vTB+1+2*k for k in range(16)], "\n".join(tl), 2)
            e(f"v_lshlrev_b32 v{vT}, 3, v0")
            for k in range(8): e(f"v_mov_b32 v{vTB+4*k+1}, v{vTB+4*k+2}\n ds_write_b64 v{vT}, {vr(vTB+4*k,2)} offset:{L_TAB + k*2048}")
            for k in range(4): e(f"v_lshlrev_b32 v{vXF+k}, 16, v{vXF+k}")
            e(f"{ls}:")
        if i == P.POLL_AT:
            lw = g.label("Lw0"); e(f"s_cmp_lg_u32 {SW}, 0\n s_cbranch_scc1 {lw}\n {mload}\n {lw}:"); st["mark"] = ("kv", st["nk"])
        if i == P.POLL_USE:
            pre_issue(n, P.PRE)
            g.c("wave 0: true max / sum of this (batch, head) -> scale factors of the workgroup's waves")
            assert st["mark"] not in g.fifo and st["mark"][1] < st["nk"]
            lw = g.label("Lw0"); e(f"s_cmp_lg_u32 {SW}, 0\n s_cbranch_scc1 {lw}")
            tag_poll([vML+1, vML+3], mload, 2)
            e(f"s_mov_b32 exec_lo, 0xffff0000\n v_mov_b32 v{vML}, s52\n v_mov_b32 v{vML+2}, 0\n s_mov_b32 exec_lo, -1")
            e(f"v_mov_b32 v{vT}, v{vML}\n s_nop 1")
            wave_reduce(g, "v_max_f32", [vT])
            e(f"v_readlane_b32 s53, v{vT}, 63\n s_nop 1")
            e(f"v_subrev_f32 v{vML}, s53, v{vML}\n v_mul_f32 v{vML}, {f2u(LOG2E):#x}, v{vML}\n v_exp_f32 v{vML}, v{vML}\n s_nop 0\n v_mul_f32 v{vT}, v{vML}, v{vML+2}\n s_nop 1")
            wave_reduce(g, "v_add_f32", [vT])
            e(f"v_readlane_b32 s53, v{vT}, 63\n s_nop 1\n v_rcp_f32 v{vT}, s53\n s_lshl_b32 s55, {SS}, 2\n v_mul_f32 v{vML}, v{vML}, v{vT}")
            e(f"v_subrev_u32 v{vT}, s55, v{vLANE}\n v_lshlrev_b32 v{vT}, 2, v{vT}\n s_lshl_b64 exec, 15, s55")
            e(f"ds_write_b32 v{vT}, v{vML} offset:{L_F}\n s_mov_b64 exec, -1\n {lw}:")
            g.c("addresses for the tail")
            e(f"v_lshrrev_b32 v{vFA}, 3, v{vC}\n v_lshlrev_b32 v{vT+1}, 10, v{vFA}\n v_lshlrev_b32 v{vFA}, 3, v{vFA}")
            e(f"s_lshl_b32 s55, {SW}, 9\n v_add_u32 v{vOPW}, s55, v{vL16}")
            e(f"v_and_b32 v{vT}, 1, v{vC}\n v_lshl_add_u32 v{vT+1}, v{vT}, 8, v{vT+1}\n v_bfe_u32 v{vT+2}, v{vC}, 1, 2\n v_lshl_add_u32 v{vT+1}, v{vT+2}, 4, v{vT+1}")
            e(f"v_lshl_add_u32 v{vT+1}, v{vG}, 2, v{vT+1}\n s_lshl_b32 s55, {SW}, 6\n v_add_u32 v{vOPR}, s55, v{vT+1}")
            e(f"s_mul_i32 s55, {SW}, 2560\n v_lshlrev_b32 v{vT}, 5, v{vC}\n v_lshl_add_u32 v{vT}, v{vG}, 4, v{vT}\n v_add_u32 v{vOUW}, s55, v{vT}")
            for k in range(4):
                e(f"v_add_u32 v{vT}, {256*k}, v0\n v_lshlrev_b32 v{vGA+4+k}, 2, v{vT}\n v_lshrrev_b32 v{vT+1}, 2, v{vT}\n v_and_b32 v{vT}, 3, v{vT}")
                e(f"v_mad_u32_u24 v{vT+1}, v{vT+1}, 3, v{vT}\n v_min_u32 v{vGA+k}, 639, v{vT+1}\n v_lshlrev_b32 v{vGA+k}, 2, v{vGA+k}")
            e(f"s_movk_i32 s55, 639\n v_cmp_lt_u32 s[6:7], s55, v{vT+1}\n s_mov_b32 s4, 0x88888888\n s_mov_b32 s5, 0x88888888")
            g.c("final stage constants")
            e(f"v_min_u32 v{vPA}, 213, v0\n v_lshlrev_b32 v{vPA}, 4, v{vPA}\n v_mul_u32_u24 v{vT}, 3, v0")
            e(f"s_movk_i32 s55, 640\n v_cmp_gt_u32 s[56:57], s55, v{vT}\n s_movk_i32 s55, 639\n v_cmp_gt_u32 s[58:59], s55, v{vT}")
            e(f"s_mul_i32 s55, {SB}, 1280\n v_lshl_add_u32 v{vT}, v{vT}, 1, s55\n v_mov_b32 v{vT+1}, 0x7ffffff0")
            e(f"v_cndmask_b32 v{vO0}, v{vT+1}, v{vT}, s[56:57]\n v_cndmask_b32 v{vO1}, v{vT+1}, v{vT}, s[58:59]")
            e(f"s_lshl_b32 s55, {SW}, 3\n v_mov_b32 v{vFW}, s55\n v_mov_b32 v{vZ}, 0")
            e(f"s_lshl_b32 s55, {SB}, 15\n s_add_u32 s55, s55, {WS_ACC}\n s_add_u32 s44, s32, s55\n s_addc_u32 s45, s33, 0\n s_mov_b32 s46, {P.R*REP_STRIDE}")
            e("s_mov_b32 s48, s28\n s_mov_b32 s49, s29\n s_mov_b32 s50, 2560")
    assert st["nwo"] == 40 and st["nk"] == 2*NL and P.TAB_USE < P.POLL_USE and P.WO_START >= 0, st
    oacc = lambda t: vX + 4*t
    e("s_nop 6\n s_mov_b32 exec_hi, 0")
    e(f"ds_write_b128 v{vOPW}, {vr(vACC,4)} offset:{L_QP}\n s_mov_b64 exec, -1")
    g.wait(("wo", 39))
    e("s_waitcnt lgkmcnt(0)\n s_barrier")
    e(f"ds_read2_b32 {vr(vT,2)}, v{vOPR} offset0:0 offset1:128\n ds_read_b64 {vr(vT+2,2)}, v{vFA} offset:{L_F}")
    e(f"s_waitcnt lgkmcnt(0)\n v_mul_f32 v{vT}, v{vT}, v{vT+2}\n v_fmac_f32 v{vT}, v{vT+1}, v{vT+3}\n s_nop 1")
    e(f"v_add_f32_dpp v{vT}, v{vT}, v{vT} row_ror:8 {DPP}\n v_cvt_pk_bf16_f32 v{vT}, v{vT}, v{vT}\n s_nop 1")
    if P.TORD:
        AO = lambda ii: vX + 32 + 4*ii
        def ab(ii):
            for r in range(4): e(f"v_and_b32_dpp v{AO(ii)+r}, v{vT}, v{vMK+r} row_newbcast:{ii} {DPP}")
        def mm(t, ii): e(f"v_mfma_f32_16x16x32_bf16 {vr(oacc(t),4)}, {vr(AO(ii),4)}, {ar(4*(5*ii+t),4)}, {'0' if ii == 0 else vr(oacc(t),4)}")
        def wr(t): e(f"s_mov_b32 exec_hi, 0\n ds_write_b128 v{vOUW}, {vr(oacc(t),4)} offset:{L_OUTP + t*512}\n s_mov_b32 exec_hi, -1")
        ab(0); ab(1)
        for ii in range(8):
            mm(0, ii); mm(1, ii)
            if ii + 2 < 8: ab(ii+2)
        for t in range(2, 5):
            for ii in range(8): mm(t, ii)
            if t == 2: wr(0)
            wr(t-1)
        e("s_nop 3"); wr(4)
    else:
        def abuild(ii):
            a = vA + 4*(ii & 1)
            for r in range(4): e(f"v_and_b32_dpp v{a+r}, v{vT}, v{vMK+r} row_newbcast:{ii} {DPP}")
        abuild(0); e("s_nop 1")
        for ii in range(8):
            a = vA + 4*(ii & 1)
            for t in range(5):
                e(f"v_mfma_f32_16x16x32_bf16 {vr(oacc(t),4)}, {vr(a,4)}, {ar(4*(5*ii+t),4)}, {'0' if ii == 0 else vr(oacc(t),4)}")
                if t == 1 and ii < 7: abuild(ii+1)
        e("s_nop 3\n s_mov_b32 exec_hi, 0")
        for t in range(5): e(f"ds_write_b128 v{vOUW}, {vr(oacc(t),4)} offset:{L_OUTP + t*512}")
    e("s_mov_b64 exec, -1\n s_waitcnt lgkmcnt(0)\n s_barrier")
    base64 = L_OUTP // 256
    for k in range(4):
        for p in range(2): e(f"ds_read2st64_b32 {vr(vT+4*k+2*p,2)}, v{vGA+k} offset0:{base64+20*p} offset1:{base64+20*p+10}")
    for k in range(4):
        r = vT+4*k
        e(f"s_waitcnt lgkmcnt({6-2*k})\n v_add_f32 v{r}, v{r}, v{r+1}\n v_add_f32 v{r+2}, v{r+2}, v{r+3}\n v_add_f32 v{r}, v{r}, v{r+2}")
        if k == 3: e(f"v_cndmask_b32 v{r}, v{r}, 0, s[6:7]")
        e(f"v_cndmask_b32 v{r}, v{r}, 1.0, s[4:5]\n buffer_atomic_add_f32 v{r}, v{vGA+4+k}, s[40:43], 0 offen sc1")
    stamp(g, 12)
    e(f"s_cmp_eq_u32 {SFIN}, 0\n s_cbranch_scc1 Ldone")
    PL = vX; H, N, Y = vT, vT+4, vT+8; N2 = vX+72
    le = g.label("Lep")
    g.c("past the tail barriers every workgroup's tag has been seen, so every workgroup has read the epoch word: advance it")
    e(f"s_cmp_lg_u32 s2, {FINAL_IDS[0]}\n s_cbranch_scc1 {le}\n s_cmp_lg_u32 {SW}, 3\n s_cbranch_scc1 {le}")
    e(f"v_mov_b32 v{vB}, {ST}\n s_mov_b64 exec, 1\n global_store_dword v{vZ}, v{vB}, {sWS} offset:{WS_E} sc1\n s_mov_b64 exec, -1\n {le}:")
    def tree(dst, regs):
        regs = list(regs)
        while len(regs) > 2:
            for a in range(0, len(regs) - 1, 2): e(f"v_add_f32 v{regs[a]}, v{regs[a]}, v{regs[a+1]}")
            regs = regs[0::2]
        e(f"v_add_f32 v{dst}, v{regs[0]}, v{regs[1]}")
    e(f"s_mov_b32 s3, {SPIN:#x}")
    if P.PM:
        e("Lpre:")
        for r in range(P.R): e(f"s_movk_i32 s55, {r*REP_STRIDE + 12}\n buffer_load_dword v{PL+r}, v{vZ}, s[44:47], s55 offen sc1")
        e("s_waitcnt vmcnt(0)")
        tree(Y, [PL+r for r in range(P.R)])
        e(f"v_cmp_gt_f32 vcc, {f2u(128.0 - P.PM):#x}, v{Y}\n s_cbranch_vccz Lpoll" + (f"\n s_sleep {P.PSL}" if P.PSL else "") + "\n s_sub_u32 s3, s3, 1\n s_cbranch_scc0 Lpre")
    e("Lpoll:")
    for r in range(P.R):
        e(f"s_movk_i32 s55, {r*REP_STRIDE}\n buffer_load_dwordx4 {vr(PL+8*r,4)}, v{vPA}, s[44:47], s55 offen sc1\n buffer_load_dwordx4 {vr(PL+8*r+4,4)}, v{vZ}, s[44:47], s55 offen sc1")
    e("s_waitcnt vmcnt(0)")
    cs = [PL+4*k+3 for k in range(2*P.R)]
    e(f"v_min_f32 v{Y}, v{cs[0]}, v{cs[1]}")
    for k in range(2, len(cs), 2): e(f"v_min3_f32 v{Y}, v{cs[k]}, v{cs[k+1]}, v{Y}")
    e(f"v_cmp_gt_f32 vcc, {f2u(128.0/P.R):#x}, v{Y}")
    for k in range(3): tree(H+k, [PL+8*r+k for r in range(P.R)])
    tree(H+3, [PL+8*r+4 for r in range(P.R)])
    e("s_cbranch_vccz Lpdone\n s_sub_u32 s3, s3, 1\n s_cbranch_scc0 Lpoll\n Lpdone:")
    stamp(g, 13)
    bf16r_n(g, [H, H+1, H+2])
    for k in range(4): e(f"v_add_f32 v{H+k}, v{H+k}, v{vXF+k}")
    bf16r_n(g, [H, H+1, H+2])
    def ln_block(src, dst, piv, slot):
        s1, s2 = vT+12, vT+13; Z = vX+64
        for k in range(3): e(f"v_sub_f32 v{Y+k}, v{src+k}, v{piv}")
        e(f"v_cndmask_b32 v{Y}, 0, v{Y}, s[56:57]\n v_cndmask_b32 v{Y+1}, 0, v{Y+1}, s[58:59]\n v_cndmask_b32 v{Y+2}, 0, v{Y+2}, s[58:59]")
        e(f"v_add_f32 v{s1}, v{Y}, v{Y+1}\n v_mul_f32 v{s2}, v{Y}, v{Y}\n v_fmac_f32 v{s2}, v{Y+1}, v{Y+1}\n v_add_f32 v{s1}, v{s1}, v{Y+2}\n v_fmac_f32 v{s2}, v{Y+2}, v{Y+2}\n s_nop 0")
        wave_reduce(g, "v_add_f32", [s1, s2]); g.L.pop()
        e(f"s_mov_b32 exec_lo, 0\n s_mov_b32 exec_hi, 0x80000000\n ds_write_b64 v{vFW}, {vr(s1,2)} offset:{L_FIN + slot*32}\n s_mov_b64 exec, -1")
        e("s_waitcnt lgkmcnt(0)\n s_barrier")
        e(f"ds_read_b128 {vr(Z,4)}, v{vZ} offset:{L_FIN + slot*32}\n ds_read_b128 {vr(Z+4,4)}, v{vZ} offset:{L_FIN + slot*32 + 16}\n s_waitcnt lgkmcnt(0)")
        e(f"v_pk_add_f32 {vr(Z,2)}, {vr(Z,2)}, {vr(Z+2,2)}\n v_pk_add_f32 {vr(Z+4,2)}, {vr(Z+4,2)}, {vr(Z+6,2)}\n v_pk_add_f32 {vr(Z,2)}, {vr(Z,2)}, {vr(Z+4,2)}")
        e(f"v_mul_f32 v{Y}, {f2u(1.0/640):#x}, v{Z}\n v_mul_f32 v{Y+1}, {f2u(1.0/640):#x}, v{Z+1}")
        e(f"v_fma_f32 v{Y+1}, -v{Y}, v{Y}, v{Y+1}\n v_add_f32 v{Y}, v{Y}, v{piv}\n v_max_f32 v{Y+1}, 0, v{Y+1}\n v_mov_b32 v{Y+2}, v{Y}\n v_mov_b32 v{vT+14}, v{Y+1}")
        bf16r_n(g, [Y+1, Y])
        e(f"v_add_f32 v{Y+1}, {f2u(1e-5):#x}, v{Y+1}")
        for k in range(3): e(f"v_sub_f32 v{dst+k}, v{src+k}, v{Y}")
        bf16r(g, Y+1, Y+1)
        e(f"v_sqrt_f32 v{Y+1}, v{Y+1}")
        bf16r_n(g, [dst, dst+1, dst+2])
        bf16r(g, Y+1, Y+1)
        e(f"v_rcp_f32 v{Y+1}, v{Y+1}\n v_sub_f32 v{Y+2}, v{Y+2}, v{Y}")
        for k in range(3): e(f"v_mul_f32 v{dst+k}, v{dst+k}, v{Y+1}")
        e(f"v_mul_f32 v{dst+3}, v{Y+2}, v{Y+1}")
        bf16r_n(g, [dst, dst+1, dst+2])
    ln_block(H, N, H+3, 0)
    if P.LN2A:
        g.c("LN(LN(h)): the inner output is (h - m) * r, so its mean is (mean - m) * r and its variance var * r^2")
        V2, M2 = vT+14, N+3
        e(f"v_mul_f32 v{V2}, v{V2}, v{Y+1}\n v_mul_f32 v{V2}, v{V2}, v{Y+1}")
        bf16r_n(g, [M2, V2])
        e(f"v_add_f32 v{V2}, {f2u(1e-5):#x}, v{V2}")
        for k in range(3): e(f"v_sub_f32 v{N2+k}, v{N+k}, v{M2}")
        bf16r(g, V2, V2)
        e(f"v_sqrt_f32 v{V2}, v{V2}")
        bf16r_n(g, [N2, N2+1, N2+2])
        bf16r(g, V2, V2)
        e(f"v_rcp_f32 v{V2}, v{V2}\n s_nop 0")
        for k in range(3): e(f"v_mul_f32 v{N2+k}, v{N2+k}, v{V2}")
        bf16r_n(g, [N2, N2+1, N2+2])
    else: ln_block(N, N2, N+3, 1)
    I = vT+8
    for k in range(3): e(f"v_bfe_u32 v{I+k}, v{N2+k}, 16, 15")
    for k in range(3): e(f"v_subrev_u32 v{I+k}, {EMIN<<7}, v{I+k}\n v_ashrrev_i32 v{N+k}, 31, v{N2+k}")
    e(f"v_max3_u32 v{vT+12}, v{I}, v{I+1}, v{I+2}\n s_movk_i32 s55, 3071")
    for k in range(3): e(f"v_min_u32 v{I+k}, s55, v{I+k}\n v_and_b32 v{N+k}, 3072, v{N+k}")
    e(f"v_cmp_lt_u32 vcc, s55, v{vT+12}" if P.XLIM == 3071 else f"v_cmp_lt_u32 vcc, {P.XLIM}, v{vT+12}")
    for k in range(3): e(f"v_add_u32 v{I+k}, v{I+k}, v{N+k}")
    for k in range(3): e(f"v_and_b32 v{N+k}, 2047, v{I+k}\n v_lshrrev_b32 v{I+k}, 10, v{I+k}")
    for k in range(3): e(f"v_and_b32 v{I+k}, 6, v{I+k}")
    for k in range(3): e(f"v_lshl_add_u32 v{I+k}, v{N+k}, 3, v{I+k}")
    for k in range(3): e(f"ds_read_u16 v{I+k}, v{I+k} offset:{L_TAB}")
    e("s_and_b64 vcc, vcc, s[56:57]\n s_cbranch_scc1 Lslow\n s_waitcnt lgkmcnt(0)\n Lback:")
    for k in range(3): e(f"v_lshlrev_b32 v{I+k}, 16, v{I+k}")
    for k in range(3): e(f"v_add_f32 v{I+k}, v{I+k}, v{H+k}")
    if P.XPERT > 0: e(f"v_cmp_eq_u32 vcc, 0, v0\n v_mov_b32 v{N}, {f2u(P.XPERT/1000):#x}\n s_nop 0\n v_cndmask_b32 v{N}, 0, v{N}, vcc\n v_add_f32 v{I}, v{I}, v{N}")
    if P.XPERT < 0:
        for k in range(3): e(f"v_add_f32 v{I+k}, {f2u(-P.XPERT/1000):#x}, v{I+k}")
    for k in range(3): e(f"v_cvt_pk_bf16_f32 v{I+k}, v{I+k}, v{I+k}")
    e(f"buffer_store_short v{I}, v{vO0}, s[48:51], 0 offen {P.OPOL}\n buffer_store_short v{I+1}, v{vO1}, s[48:51], 0 offen offset:2 {P.OPOL}\n buffer_store_short v{I+2}, v{vO1}, s[48:51], 0 offen offset:4 {P.OPOL}")
    e("Ldone:")
    if P.DIAG:
        if P.DIAG == 7: e("s_waitcnt vmcnt(0)")
        stamp(g, 14)
        e(f"s_lshl_b32 s55, s2, 3\n s_add_u32 s55, s55, {SW}\n s_lshl_b32 s55, s55, 6\n s_add_u32 s55, s55, {WS_DIAG}\n s_getreg_b32 s3, hwreg(HW_REG_XCC_ID)\n s_waitcnt vmcnt(0) lgkmcnt(0)")
        e(f"v_mov_b32 v{vT}, s55\n s_mov_b64 exec, 1")
        for k in range(15): e(f"v_mov_b32 v{vR+k}, s{66+2*k}")
        e(f"v_mov_b32 v{vR+15}, s3")
        for k in range(4): e(f"global_store_dwordx4 v{vT}, {vr(vR+4*k,4)}, {sWS} offset:{16*k}")
    e("Lend:\n s_endpgm")
    SV = vR
    e("Lslow:\n s_waitcnt lgkmcnt(0)\n s_mov_b64 s[52:53], vcc")
    for k in range(16): e(f"v_mov_b32 v{SV+k}, v{vT+k}")
    e("Lslow1:\n s_ff1_i32_b64 s55, s[52:53]\n s_bitset0_b64 s[52:53], s55\n s_mov_b32 m0, s55\n s_nop 1")
    for k in range(3): e(f"v_readlane_b32 s{56+k}, v{N2+k}, m0")
    for k in range(4): e(f"v_mov_b32 v{vTA+k}, 0")
    e(f"v_lshlrev_b32 v{vTL}, 2, v{vLANE}\n s_mov_b32 s3, 13\n s_mov_b32 s59, 0")
    e("Lslow2:\n s_call_b64 s[30:31], LtabA\n s_call_b64 s[30:31], LtabB\n s_sub_u32 s3, s3, 1\n s_cbranch_scc0 Lslow2")
    wave_reduce(g, "v_add_f32", [vTA, vTA+1, vTA+2])
    tab_finish(g, vTA, vT+10, vB2)
    e(f"s_nop 0\n v_readlane_b32 s56, v{vT+10}, 63\n v_readlane_b32 s58, v{vT+12}, 63\n s_nop 3\n s_lshr_b32 s57, s56, 16\n s_and_b32 s56, s56, 0xffff\n s_and_b32 s58, s58, 0xffff")
    for k in range(3): e(f"v_writelane_b32 v{SV+8+k}, s{56+k}, m0")
    e("s_cmp_lg_u64 s[52:53], 0\n s_cbranch_scc1 Lslow1")
    for k in range(16): e(f"v_mov_b32 v{vT+k}, v{SV+k}")
    e("s_branch Lback")
    w2, wl, wh, bl, cc = vGA, vGA+1, vGA+2, vGAp, vGAp+2
    K0 = (2/3.141592653589793)**0.5; C1 = -2*K0*LOG2E; C3 = C1*0.044715
    for part in range(3):
        e(f"Ltab{'ABC'[part]}:")
        if part == 0:
            e(f"ds_read_b32 v{vT}, v{vTL} offset:{L_MW}\n ds_read_b32 v{vT+1}, v{vTL} offset:{L_MW+4096}\n ds_read_b32 v{w2}, v{vTL} offset:{L_MW+8192}")
            e(f"v_add_u32 v{vTL}, 256, v{vTL}\n v_mov_b32 v{cc+1}, {f2u(C1):#x}\n v_mov_b32 v{cc}, {f2u(C3):#x}\n s_waitcnt lgkmcnt(0)")
            e(f"v_lshlrev_b32 v{wl}, 16, v{vT}\n v_and_b32 v{wh}, 0xffff0000, v{vT}\n v_lshlrev_b32 v{bl}, 16, v{vT+1}\n v_and_b32 v{bl+1}, 0xffff0000, v{vT+1}")
        S_ = [(vT+4*j, vT+4*j+2, 56+2*part+j, vTA+2*part+j) for j in range(2)]
        for U, Z, s_, _ in S_: e(f"v_mul_f32 v{U}, s{s_}, v{wl}\n v_mul_f32 v{U+1}, s{s_}, v{wh}")
        for U, Z, s_, _ in S_: e(f"v_cvt_pk_bf16_f32 v{U}, 0, v{U}\n v_cvt_pk_bf16_f32 v{U+1}, 0, v{U+1}")
        for U, Z, s_, _ in S_: e(f"v_pk_add_f32 {vr(U,2)}, {vr(U,2)}, {vr(bl,2)}")
        for U, Z, s_, _ in S_: e(f"v_cvt_pk_bf16_f32 v{U}, 0, v{U}\n v_cvt_pk_bf16_f32 v{U+1}, 0, v{U+1}")
        for U, Z, s_, _ in S_: e(f"v_pk_mul_f32 {vr(Z,2)}, {vr(U,2)}, {vr(U,2)}")
        for U, Z, s_, _ in S_: e(f"v_fma_f32 v{Z}, v{Z}, v{cc}, v{cc+1}\n v_fma_f32 v{Z+1}, v{Z+1}, v{cc}, v{cc+1}")
        for U, Z, s_, _ in S_: e(f"v_pk_mul_f32 {vr(Z,2)}, {vr(Z,2)}, {vr(U,2)}")
        for U, Z, s_, _ in S_: e(f"v_exp_f32 v{Z}, v{Z}\n v_exp_f32 v{Z+1}, v{Z+1}")
        for U, Z, s_, _ in S_: e(f"v_add_f32 v{Z}, 1.0, v{Z}\n v_add_f32 v{Z+1}, 1.0, v{Z+1}")
        for U, Z, s_, _ in S_: e(f"v_rcp_f32 v{Z}, v{Z}\n v_rcp_f32 v{Z+1}, v{Z+1}")
        for U, Z, s_, _ in S_: e(f"v_pk_mul_f32 {vr(Z,2)}, {vr(Z,2)}, {vr(U,2)}")
        for U, Z, s_, acc in S_: e(f"v_cvt_pk_bf16_f32 v{U}, v{Z}, v{Z+1}")
        for U, Z, s_, acc in S_: e(f"v_dot2_f32_bf16 v{acc}, v{U}, v{w2}, v{acc}")
        e("s_nop 1\n s_setpc_b64 s[30:31]")
    return g

HEADER = open("cdna_kernels/" + NAME + ".s.ref").read().split("; Override launch")[0]
DOC = """;
"""

def emit():
    g = gen()
    acc = (g.nv + 3)//4*4; assert acc <= 256
    out = HEADER + f"; @launch grid=(256,1,1) block=(256,1,1) lds={LDS_BYTES}\n" + DOC
    out += '.amdgcn_target "amdgcn-amd-amdhsa--gfx950"\n.text\n'
    out += f".globl {KN}\n.p2align 8\n.type {KN},@function\n" + "\n".join(g.L) + "\n"
    out += f""".section .rodata,"a"
.p2align 6
.amdhsa_kernel {KN}
  .amdhsa_next_free_vgpr {acc + 160}
  .amdhsa_next_free_sgpr 96
  .amdhsa_accum_offset {acc}
  .amdhsa_group_segment_fixed_size 0
  .amdhsa_kernarg_size 104
  .amdhsa_user_sgpr_count 2
  .amdhsa_user_sgpr_kernarg_segment_ptr 1
  .amdhsa_system_sgpr_workgroup_id_x 1
  .amdhsa_float_denorm_mode_32 3
.end_amdhsa_kernel
"""
    return out, g

if __name__ == "__main__":
    ap = argparse.ArgumentParser()
    ap.add_argument("-o", default="cdna_kernels/" + NAME + ".s")
    ap.add_argument("set", nargs="*")
    a = ap.parse_args()
    for kv in a.set:
        k, v = kv.split("=", 1); old = getattr(P, k)
        setattr(P, k, v.replace("_", " ") if isinstance(old, str) else int(v))
    out, g = emit()
    open(a.o, "w").write(out)
    print("vgprs", g.nv, "lines", len(g.L))
```

```python
import sys, struct, argparse

NAME = "sequential_preLN__mha_block_cached__mixer_token_mlp__decode"
KN = NAME + "_kernel"
def f2u(x): return struct.unpack("<I", struct.pack("<f", x))[0]

class P:
    D = 20
    NPRO = 40
    W = 6
    WEND = 5
    ENDAT = 136
    WPRO = 7
    LAG = 16
    CU_N = 1
    CU_D = 2
    PRE = 4
    STRIDE = 5
    ROT = 8
    ROTJ = 16
    ROTX = 6
    R = 4
    POL = "nt"
    K0 = 4
    KFIRST = 12
    KX1 = 0
    KX2 = 4
    KX3 = 8
    QPOLL_AT = 29
    QPOLL_USE = 35
    WO_START = 48
    WO_EVERY = 2
    TABK0 = 2
    TABKE = 3
    TPRE = 0
    TAB_AT = 48
    TAB_USE = 72
    POLL_AT = 80
    POLL_USE = 104
    MIXE = 1
    TABP = 11
    PAIR = 0
    PM = 0
    PSL = 0
    XQ = 1
    Q4 = 1
    XPERT = 0
    LN2A = 1
    TORD = 1
    QG1 = "sc1"
    WK = "6"
    WV = "5"
    CAPWO = 0
    OTOUCH = 0
    OPOL = ""
    DIAG = 0
    XLIM = 3071
    XMM = 0

WS_E, WS_ZF, WS_ML, WS_TAB, WS_ACC, WS_QG, WS_DIAG = 0x0, 0x1000, 0x2000, 0x10000, 0x20000, 0x40000, 0x100000
REP_STRIDE, NGRAN = 3584, 214
L_QP, L_MW, L_Q1, L_OUTP, L_TAB, L_FIN = 0, 4096, 16384, 16384, 36864, 53248
L_F = L_FIN + 128
L_AGG = L_FIN + 256
LDS_BYTES = 57344
EMIN = 108
LOG2E = 1.4426950408889634
FINAL_IDS = (0, 34)
DPP = "row_mask:0xf bank_mask:0xf"
SPIN = 0x40000
NL = 128

class G:
    def __init__(s): s.L = []; s.fifo = []; s.lab = 0; s.nv = 0
    def e(s, t):
        for x in t.split("\n"):
            x = x.strip()
            if x: s.L.append(("    " if not x.endswith(":") else "") + x)
    def c(s, t): s.L.append("    ; " + t)
    def label(s, p="L"): s.lab += 1; return f"{p}{s.lab}"
    def v(s, n=1, align=1):
        s.nv = (s.nv + align - 1)//align*align
        r = s.nv; s.nv += n; return r
    def vm(s, text, tag):
        s.e(text); s.fifo.append(tag); assert len(s.fifo) <= 63
    def wait(s, tag):
        if tag not in s.fifo: return
        i = s.fifo.index(tag); n = len(s.fifo) - 1 - i
        s.e(f"s_waitcnt vmcnt({n})"); del s.fifo[:i+1]
    def cap(s, W):
        kv = [t for t in s.fifo if t[0] == "kv" or (P.CAPWO and t[0] == "wo")]
        if len(kv) >= W: s.wait(kv[-W])

def vr(r, n): return f"v[{r}:{r+n-1}]"
def ar(r, n): return f"a[{r}:{r+n-1}]"

def wave_reduce(g, op, regs, nsteps=6):
    steps = [f"row_ror:8 {DPP}", f"row_ror:4 {DPP}", f"row_ror:2 {DPP}", f"row_ror:1 {DPP}",
             "row_bcast:15 row_mask:0xa bank_mask:0xf", "row_bcast:31 row_mask:0xc bank_mask:0xf"]
    for st in steps[:nsteps]:
        for r in regs: g.e(f"{op}_dpp v{r}, v{r}, v{r} {st}")
        pad = 2 - (len(regs) - 1)
        if pad > 0: g.e(f"s_nop {pad-1}")

def bf16r(g, d, s_): g.e(f"v_cvt_pk_bf16_f32 v{d}, 0, v{s_}")
def bf16r_n(g, regs):
    for r in regs: bf16r(g, r, r)

def stamp(g, k, mode=0):
    if P.DIAG and (mode == 0 or mode == P.DIAG): g.e(f"s_memrealtime s[{66+2*k}:{67+2*k}]")

def tab_finish(g, src, dst, vB2):
    bf16r_n(g, [src, src+1, src+2])
    for k in range(3): g.e(f"v_add_f32 v{src+k}, v{src+k}, v{vB2}")
    g.e(f"v_cvt_pk_bf16_f32 v{dst}, v{src}, v{src+1}\n v_cvt_pk_bf16_f32 v{dst+2}, v{src+2}, v{src+2}")

def gen():
    g = G(); e = g.e
    D = P.D; NX = P.NPRO - D; assert NX <= 20
    g.v(); vLANE = g.v(); vL16 = g.v(); vOFF = g.v()
    vMK = g.v(4); vA = g.v(8, 2); vQ = g.v(4, 2); vS = g.v(8, 2); vACC = g.v(4, 2)
    vB = g.v(8, 2); vT = g.v(16, 2); vML = g.v(8, 2); vMISC = g.v(8, 2); vGA = g.v(8, 2); vGAp = vGA + 4
    vTA = g.v(6); vTL = g.v(); vB2 = g.v(); vXF = g.v(4); vWOO = g.v(); vDT = g.v(2)
    vR = g.v(4*D, 2); vX = g.v(80, 2)
    def ring(i):
        if i < D: return vR + 4*i
        if i < D + NX: return vX + 4*(i - D)
        return vR + 4*((i - D - NX) % D)
    def slot_free_after(i):
        if i < D + NX: return -1
        return i - D - NX if i - D - NX < D else i - D
    sX, sK, sV, sWO, sB2, sWS = "s[8:9]", "s[10:11]", "s[12:13]", "s[16:17]", "s[26:27]", "s[32:33]"
    SW, SH, SB, SS, ST, SFIN = "s34", "s35", "s36", "s37", "s38", "s39"
    vG, vC = vMISC, vMISC+1
    st = {"nk": 0, "nwo": 0, "ab": 0, "tab": 42}
    def kv_issue():
        i = st["nk"]; st["nk"] += 1
        g.vm(f"global_load_dwordx4 {vr(ring(i),4)}, v{vOFF}, {sK if i < NL else sV} nt", ("kv", i))
        e(f"v_add_u32 v{vOFF}, {P.STRIDE*1024}, v{vOFF}\n v_and_b32 v{vOFF}, {NL*1024-1:#x}, v{vOFF}")
    def after_consume(n):
        if st["nk"] < 2*NL and slot_free_after(st["nk"]) <= n and st["nk"] <= n + max(P.LAG, P.NPRO - n*P.CU_N//P.CU_D):
            pat = P.WK if st["nk"] < P.ENDAT else P.WV
            g.cap(int(pat[st["nk"] % len(pat)])); kv_issue()
        if n >= P.WO_START and (n - P.WO_START) % P.WO_EVERY == 0 and st["nwo"] < 40:
            k = st["nwo"]; st["nwo"] += 1; t = k % 5
            g.vm(f"global_load_dwordx4 {ar(4*k,4)}, v{vWOO}, {sWO} offset:{256*t} {P.POL}", ("wo", k))
            if t == 4: e(f"v_add_u32 v{vWOO}, {4*1280}, v{vWOO}")
    def pre_issue(n, cnt):
        for _ in range(cnt):
            if st["nk"] < 2*NL and slot_free_after(st["nk"]) <= n: kv_issue()
    def rowmac(acc, src, lane, data, build=True, first=False):
        if build:
            st["ab"] ^= 1; a = vA + 4*st["ab"]
            for r in range(4): e(f"v_and_b32_dpp v{a+r}, v{src}, v{vMK+r} row_newbcast:{lane} {DPP}")
            e("s_nop 1")
        a = vA + 4*st["ab"]
        e(f"v_mfma_f32_16x16x32_bf16 {vr(acc,4)}, {vr(a,4)}, {data}, {'0' if first else vr(acc,4)}")
    def tag_poll(regs, reload, sleep, low4=False):
        lr = g.label("Lr"); lo = g.label("Lo")
        e(f"s_mov_b32 s3, {SPIN:#x}\n {lr}:\n v_xor_b32 v{vT}, {ST}, v{regs[0]}")
        for r in regs[1:]: e(f"v_xor_b32 v{vT+1}, {ST}, v{r}\n v_or_b32 v{vT}, v{vT}, v{vT+1}")
        if low4: e(f"v_and_b32 v{vT}, 15, v{vT}")
        e(f"v_cmp_ne_u32 vcc, 0, v{vT}\n s_cbranch_vccz {lo}\n s_sub_u32 s3, s3, 1\n s_cbranch_scc1 {lo}\n s_sleep {sleep}")
        e(reload); e(f"s_waitcnt vmcnt(0)\n s_branch {lr}\n {lo}:")

    e(f"{KN}:\n s_cmp_ge_u32 s2, 256\n s_cbranch_scc1 Lend")
    stamp(g, 0)
    e("s_load_dwordx16 s[8:23], s[0:1], 0\n s_load_dwordx8 s[24:31], s[0:1], 64\n s_load_dwordx2 s[32:33], s[0:1], 96")
    e(f"v_lshrrev_b32 v{vT}, 6, v0\n v_and_b32 v{vLANE}, 63, v0\n v_readfirstlane_b32 {SW}, v{vT}\n v_lshlrev_b32 v{vL16}, 4, v{vLANE}")
    g.c("id = 8j+x : head = 4x + (j>>3), batch = (j>>2)&1, split = j&3")
    e(f"s_and_b32 s52, s2, 7\n s_lshl_b32 s52, s52, 2\n s_lshr_b32 s53, s2, 6\n s_add_u32 {SH}, s52, s53")
    e(f"s_bfe_u32 {SB}, s2, 0x10005\n s_bfe_u32 {SS}, s2, 0x20003")
    e(f"s_lshl_b32 s52, {SB}, 5\n s_add_u32 s52, s52, {SH}\n s_lshl_b32 s54, s52, 2\n s_add_u32 s54, s54, {SS}")
    e(f"s_lshl_b32 s53, s54, 19\n s_lshl_b32 s55, {SW}, 17\n s_add_u32 s53, s53, s55")
    e(f"s_mul_i32 s55, {SW}, {P.ROT*1024}\n s_lshr_b32 s56, s2, 3\n s_mul_i32 s56, s56, {P.ROTJ*1024}\n s_add_u32 s55, s55, s56")
    e(f"s_and_b32 s56, s2, 7\n s_mul_i32 s56, s56, {P.ROTX*1024}\n s_add_u32 s55, s55, s56\n v_add_u32 v{vOFF}, s55, v{vL16}\n v_and_b32 v{vOFF}, {NL*1024-1:#x}, v{vOFF}")
    e(f"s_mov_b32 {SFIN}, 0\n s_cmp_eq_u32 s2, {FINAL_IDS[0]}\n s_cselect_b32 {SFIN}, 1, {SFIN}\n s_cmp_eq_u32 s2, {FINAL_IDS[1]}\n s_cselect_b32 {SFIN}, 1, {SFIN}")
    e(f"v_lshrrev_b32 v{vG}, 4, v{vLANE}\n v_and_b32 v{vC}, 15, v{vLANE}")
    g.c("q work: head id>>3, rows 80*(id&7)..+80; wave w takes row quads w, w+4, .. w+16")
    vWQO, vXO, vXQ = vMISC+2, vMISC+3, vGA
    e(f"s_and_b32 s55, s2, 7\n s_mul_i32 s55, s55, 80\n s_lshl_b32 s56, {SW}, 2\n s_add_u32 s55, s55, s56\n v_add_u32 v{vWQO}, s55, v{vG}")
    e(f"v_lshrrev_b32 v{vT}, 3, v{vC}\n v_mul_u32_u24 v{vT}, 640, v{vT}\n v_add_lshl_u32 v{vXQ}, v{vT}, v{vWQO}, 1")
    e(f"v_lshlrev_b32 v{vWQO}, 13, v{vWQO}\n v_lshl_add_u32 v{vWQO}, v{vC}, 4, v{vWQO}\n s_lshr_b32 s56, s2, 3\n s_lshl_b32 s56, s56, 8\n v_add_u32 v{vWQO}, s56, v{vWQO}")
    e(f"v_lshrrev_b32 v{vT}, 5, v{vLANE}\n v_mul_u32_u24 v{vT}, 1280, v{vT}\n v_and_b32 v{vXO}, 31, v{vLANE}\n v_lshl_add_u32 v{vXO+1}, v{vXO}, 4, v{vT}\n v_lshl_add_u32 v{vXO}, v{vXO}, 3, v{vT}")
    e(f"s_mov_b32 s51, 0x20000\n s_mov_b32 s47, 0x20000\n s_mov_b32 s43, 0x20000")
    e(f"s_lshl_b32 s55, {SB}, 15\n s_add_u32 s55, s55, {WS_ACC}\n s_mov_b32 s46, {P.R*REP_STRIDE}")
    e("s_waitcnt lgkmcnt(0)")
    stamp(g, 1)
    e("s_add_u32 s10, s10, s53\n s_addc_u32 s11, s11, 0\n s_add_u32 s44, s32, s55\n s_addc_u32 s45, s33, 0")
    lz = g.label("Lnz")
    e(f"s_cmp_eq_u32 {SFIN}, 0\n s_cbranch_scc1 {lz}")
    e(f"v_mov_b32 v{vT+4}, 0\n v_mov_b32 v{vT+5}, 0\n v_mov_b32 v{vT+6}, 0\n v_mov_b32 v{vT+7}, 0\n v_lshlrev_b32 v{vT}, 4, v0")
    for k in range((P.R*REP_STRIDE + 4095)//4096):
        e(f"s_movk_i32 s55, {k*4096}\n buffer_store_dwordx4 {vr(vT+4,4)}, v{vT}, s[44:47], s55 offen sc1")
    e(f"{lz}:")
    for _ in range(P.K0): kv_issue()
    vXD, vWQ, X = vX + 28, vX + 40, vX + 60
    assert P.KFIRST + P.KX1 + P.KX2 <= D + 7
    g.vm(f"global_load_dwordx4 {vr(vXD,4)}, v{vXO+1}, {sX}", ("x", 0))
    g.vm(f"global_load_dwordx4 {vr(vXD+4,4)}, v{vXO+1}, {sX} offset:512", ("x", 1))
    g.vm(f"global_load_dwordx2 {vr(vXD+8,2)}, v{vXO}, {sX} offset:1024", ("x", 2))
    for k in range(5):
        g.vm(f"global_load_dwordx4 {vr(vWQ+4*k,4)}, v{vWQO}, s[14:15] {P.POL}", ("wq", k))
        if k < 4: e(f"v_add_u32 v{vWQO}, {16*8192:#x}, v{vWQO}")
    for k in [1, 2, 3, 4, 0]: g.vm(f"global_load_ushort v{vXQ+k}, v{vXQ}, {sX} offset:{32*k}", ("xq", k))
    while st["nk"] < P.KFIRST: kv_issue()
    e(f"s_load_dword {ST}, {sWS}, {WS_E}\n s_add_u32 s12, s12, s53\n s_addc_u32 s13, s13, 0")
    g.c("operand masks: lane (g,i) owns element i&7 of its 8-element slab")
    e(f"v_bfe_u32 v{vT}, v{vC}, 1, 2\n v_and_b32 v{vT+1}, 1, v{vC}\n v_lshlrev_b32 v{vT+1}, 4, v{vT+1}\n v_mov_b32 v{vT+2}, 0xffff\n v_lshlrev_b32 v{vT+1}, v{vT+1}, v{vT+2}")
    for r in range(4): e(f"v_cmp_eq_u32 vcc, {r}, v{vT}\n s_nop 1\n v_cndmask_b32 v{vMK+r}, 0, v{vT+1}, vcc")
    e(f"s_and_b32 s55, s54, {P.R-1}")
    e(f"s_mul_i32 s55, s55, {REP_STRIDE}\n s_add_u32 s40, s44, s55\n s_addc_u32 s41, s45, 0\n s_mov_b32 s42, {NGRAN*16}")
    e("s_mov_b32 s4, 0\n s_mov_b32 s5, -1\n s_mov_b32 s6, 0xff00ff00\n s_mov_b32 s7, 0xff00ff00")
    e(f"s_lshl_b32 s55, {SH}, 7\n s_lshl_b32 s53, {SW}, 5\n s_add_u32 s55, s55, s53\n v_add_u32 v{vWOO}, s55, v{vG}")
    e(f"v_mul_u32_u24 v{vWOO}, 1280, v{vWOO}\n v_lshl_add_u32 v{vWOO}, v{vC}, 4, v{vWOO}")
    e(f"v_mov_b32 v{vT}, 0\n ds_write_b32 v{vT}, v{vT} offset:{L_AGG+256}")
    g.c("LN(x) statistics for both batches (lanes 0-31 batch 0, lanes 32-63 batch 1)")
    g.wait(("x", 2)); stamp(g, 4, 3)
    for _ in range(P.KX1): kv_issue()
    for k in range(10): e(f"v_lshlrev_b32 v{X+2*k}, 16, v{vXD+k}\n v_and_b32 v{X+2*k+1}, 0xffff0000, v{vXD+k}")
    e(f"v_readlane_b32 s55, v{X}, 0\n v_readlane_b32 s56, v{X}, 32\n s_nop 0\n v_mov_b32 v{vT}, s55\n v_mov_b32 v{vT+1}, s56")
    e(f"v_cndmask_b32 v{vT+2}, v{vT}, v{vT+1}, s[4:5]\n v_cndmask_b32 v{vT+3}, v{vT}, v{vT+1}, s[6:7]")
    for k in range(20): e(f"v_sub_f32 v{X+k}, v{X+k}, v{vT+2}")
    S1, S2, M_, V_ = vT+10, vT+11, vT+12, vT+13
    e(f"v_add_f32 v{S1}, v{X}, v{X+1}\n v_mul_f32 v{S2}, v{X}, v{X}\n v_fmac_f32 v{S2}, v{X+1}, v{X+1}")
    for k in range(2, 20): e(f"v_add_f32 v{S1}, v{S1}, v{X+k}\n v_fmac_f32 v{S2}, v{X+k}, v{X+k}")
    e("s_nop 1")
    wave_reduce(g, "v_add_f32", [S1, S2], 5)
    e(f"v_readlane_b32 s55, v{S1}, 31\n v_readlane_b32 s56, v{S1}, 63\n v_readlane_b32 s57, v{S2}, 31\n v_readlane_b32 s58, v{S2}, 63")
    e(f"v_mov_b32 v{vT}, s55\n v_mov_b32 v{vT+1}, s56\n v_mov_b32 v{vT+4}, s57\n v_mov_b32 v{vT+5}, s58")
    e(f"v_cndmask_b32 v{M_}, v{vT}, v{vT+1}, s[6:7]\n v_cndmask_b32 v{V_}, v{vT+4}, v{vT+5}, s[6:7]")
    e(f"v_mul_f32 v{M_}, {f2u(1.0/640):#x}, v{M_}\n v_mul_f32 v{V_}, {f2u(1.0/640):#x}, v{V_}")
    e(f"v_fma_f32 v{V_}, -v{M_}, v{M_}, v{V_}\n v_add_f32 v{M_}, v{vT+3}, v{M_}\n v_max_f32 v{V_}, 0, v{V_}")
    bf16r_n(g, [M_, V_])
    e(f"v_add_f32 v{V_}, {f2u(1e-5):#x}, v{V_}"); bf16r(g, V_, V_)
    e(f"v_sqrt_f32 v{V_}, v{V_}\n s_nop 0"); bf16r(g, V_, V_)
    e(f"v_rcp_f32 v{V_}, v{V_}\n s_nop 0")
    MW = [vS, vS+4, vQ]
    def mix_load():
        g.c("mixer weights: wave w stages 1KB chunk w of w1, b1, w2 (zero past 3456 B)")
        e(f"s_mov_b32 s50, 3456\n s_lshl_b32 s55, {SW}, 10\n v_add_u32 v{vDT}, s55, v{vL16}")
        for a, sp in enumerate([20, 22, 24]):
            e(f"s_mov_b32 s48, s{sp}\n s_mov_b32 s49, s{sp+1}")
            g.vm(f"buffer_load_dwordx4 {vr(MW[a],4)}, v{vL16}, s[48:51], s55 offen {P.POL}", ("mw", a))
        e(f"v_mov_b32 v{vB2}, 0")
        g.vm(f"global_load_ushort v{vB2}, v{vB2}, {sB2}", ("b2", 0))
    def mix_store():
        g.wait(("b2", 0))
        e(f"v_lshlrev_b32 v{vB2}, 16, v{vB2}")
        for a in range(3): e(f"ds_write_b128 v{vDT}, {vr(MW[a],4)} offset:{L_MW + 4096*a}")
    g.wait(("xq", 0)); stamp(g, 5, 3)
    if P.MIXE: mix_load()
    for _ in range(P.KX2): kv_issue()
    for k in range(5):
        r = vXQ + k
        e(f"v_lshlrev_b32 v{r}, 16, v{r}\n v_sub_f32 v{r}, v{r}, v{M_}"); bf16r(g, r, r)
        e(f"v_mul_f32 v{r}, v{r}, v{V_}\n v_cvt_pk_bf16_f32 v{r}, v{r}, v{r}")
        a_ = vA + 4*(k & 1)
        for j in range(4): e(f"v_and_b32 v{a_+j}, v{r}, v{vMK+j}")
        e(f"s_nop 1\n v_mfma_f32_16x16x32_bf16 {vr(vACC,4)}, {vr(a_,4)}, {vr(vWQ+4*k,4)}, {vr(vACC,4) if k else '0'}")
    stamp(g, 2)
    if P.Q4:
        e(f"s_lshl_b32 s55, {SW}, 10\n v_add_u32 v{vT}, s55, v{vL16}\n s_lshl_b32 s55, {SW}, 8\n v_lshl_add_u32 v{vT+1}, v{vC}, 4, s55\n v_lshl_add_u32 v{vT+1}, v{vG}, 10, v{vT+1}\n s_nop 2")
    else:
        e(f"s_lshl_b32 s55, {SW}, 10\n v_add_u32 v{vT}, s55, v{vL16}\n v_and_b32 v{vT+3}, 31, v{vLANE}\n v_lshrrev_b32 v{vT+2}, 5, v{vLANE}")
        e(f"s_lshl_b32 s55, {SW}, 8\n v_lshl_add_u32 v{vT+1}, v{vT+3}, 3, s55\n v_lshl_add_u32 v{vT+1}, v{vT+2}, 11, v{vT+1}\n s_nop 0")
    e(f"ds_write_b128 v{vT}, {vr(vACC,4)} offset:{L_Q1}")
    for _ in range(P.KX3): kv_issue()
    if P.MIXE: mix_store()
    e("s_waitcnt lgkmcnt(0)\n s_barrier")
    stamp(g, 6, 3)
    e(f"s_mul_i32 {ST}, {ST}, 1664525\n s_add_u32 {ST}, {ST}, 1013904223")
    g.c("sum the four partials; every wave hands over 64 of the 256 values: QG[id>>3][batch][id&7]")
    if P.Q4:
        e(f"ds_read_b128 {vr(vT+4,4)}, v{vT+1} offset:{L_Q1}")
        e(f"s_lshr_b32 s55, s2, 3\n s_lshl_b32 s55, s55, 1\n s_lshr_b32 s56, {SW}, 1\n s_add_u32 s55, s55, s56\n s_lshl_b32 s55, s55, 3\n s_and_b32 s56, s2, 7\n s_add_u32 s55, s55, s56")
        e(f"s_lshl_b32 s55, s55, 9\n s_and_b32 s56, {SW}, 1\n s_lshl_b32 s56, s56, 8\n s_add_u32 s55, s55, s56\n s_add_u32 s55, s55, {WS_QG}")
        e(f"v_lshl_add_u32 v{vT+2}, v{vC}, 4, s55\n s_and_b32 s62, {ST}, 15\n v_mov_b32 v{vT+3}, s62\n s_waitcnt lgkmcnt(0)")
        for sw in ("32", "16"):
            for k in range(4): e(f"v_mov_b32 v{vT+8+k}, v{vT+4+k}")
            e("s_nop 0")
            for k in range(4): e(f"v_permlane{sw}_swap_b32 v{vT+4+k}, v{vT+8+k}")
            for k in range(4): e(f"v_add_f32 v{vT+4+k}, v{vT+4+k}, v{vT+8+k}")
        for k in range(4): e(f"v_add_u32 v{vT+4+k}, 8, v{vT+4+k}")
        for k in range(4): e(f"v_bfi_b32 v{vT+4+k}, 15, v{vT+3}, v{vT+4+k}")
        e("s_mov_b64 exec, 0xffff")
        g.vm(f"global_store_dwordx4 v{vT+2}, {vr(vT+4,4)}, {sWS} sc1", ("qs", 0))
        e("s_mov_b64 exec, -1")
    else:
        e(f"ds_read_b64 {vr(vT+8,2)}, v{vT+1} offset:{L_Q1}\n ds_read_b64 {vr(vT+10,2)}, v{vT+1} offset:{L_Q1+1024}")
        e(f"s_lshr_b32 s55, s2, 3\n s_lshl_b32 s55, s55, 1\n s_lshr_b32 s56, {SW}, 1\n s_add_u32 s55, s55, s56\n s_lshl_b32 s55, s55, 3\n s_and_b32 s56, s2, 7\n s_add_u32 s55, s55, s56")
        e(f"s_lshl_b32 s55, s55, 10\n s_and_b32 s56, {SW}, 1\n s_lshl_b32 s56, s56, 9\n s_add_u32 s55, s55, s56\n s_add_u32 s55, s55, {WS_QG}")
        e(f"v_lshl_add_u32 v{vT+2}, v{vT+3}, 4, s55\n v_mov_b32 v{vT+5}, {ST}\n v_mov_b32 v{vT+7}, {ST}\n s_waitcnt lgkmcnt(0)")
        e(f"v_add_f32 v{vT+4}, v{vT+8}, v{vT+10}\n v_add_f32 v{vT+6}, v{vT+9}, v{vT+11}\n v_mov_b32 v{vT+8}, v{vT+4}\n v_mov_b32 v{vT+9}, v{vT+6}\n s_nop 1")
        e(f"v_permlane32_swap_b32 v{vT+4}, v{vT+8}\n v_permlane32_swap_b32 v{vT+6}, v{vT+9}\n v_add_f32 v{vT+4}, v{vT+4}, v{vT+8}\n v_add_f32 v{vT+6}, v{vT+6}, v{vT+9}")
        e("s_mov_b32 exec_hi, 0")
        if P.XQ != 4: g.vm(f"global_store_dwordx4 v{vT+2}, {vr(vT+4,4)}, {sWS} sc1", ("qs", 0))
        e("s_mov_b32 exec_hi, -1")
    g.c("zero-fill-done flag: the fill is older than the wq loads every wave waited for before the barrier")
    lz = g.label("Lnf")
    e(f"s_cmp_eq_u32 {SFIN}, 0\n s_cbranch_scc1 {lz}\n s_cmp_lg_u32 {SW}, 2\n s_cbranch_scc1 {lz}")
    e(f"v_mov_b32 v{vT+8}, {ST}\n v_mov_b32 v{vT+9}, {ST}\n v_mov_b32 v{vT+10}, {ST}\n v_mov_b32 v{vT+11}, {ST}")
    e(f"s_lshl_b32 s55, {SB}, 8\n s_add_u32 s55, s55, {WS_ZF}\n v_mov_b32 v{vT+12}, s55\n s_mov_b64 exec, 1")
    e(f"global_store_dwordx4 v{vT+12}, {vr(vT+8,4)}, {sWS} sc1\n s_mov_b64 exec, -1\n {lz}:")
    if not P.MIXE: mix_load()
    vQGO, vQLO = vMISC+2, vMISC+3
    e(f"s_lshl_b32 s55, {SH}, 1\n s_add_u32 s55, s55, {SB}\n s_lshl_b32 s55, s55, 2\n s_add_u32 s55, s55, {SW}\n s_lshl_b32 s55, s55, {10 if P.Q4 else 11}\n s_add_u32 s55, s55, {WS_QG}")
    e(f"v_add_u32 v{vQGO}, s55, v{vL16}\n s_lshl_b32 s55, {SW}, 10\n v_lshl_add_u32 v{vQLO}, v{vLANE}, {4 if P.Q4 else 3}, s55")
    g.c("table inputs of this wave: entries k*2048 + (wg*8 + 2w + u), k = 0..2, u = 0..1")
    e(f"s_lshl_b32 s55, s2, 2\n s_add_u32 s55, s55, {SW}\n s_lshl_b32 s55, s55, 1\n s_add_u32 s56, s55, {EMIN<<7}\n s_lshl_b32 s56, s56, 16")
    e(f"s_add_u32 s57, s55, {2048 + (EMIN<<7)}\n s_add_u32 s58, s55, {2048 - 3072 + (EMIN<<7) + 0x8000}")
    e(f"s_cmp_ge_u32 s55, 1024\n s_cselect_b32 s57, s58, s57\n s_lshl_b32 s57, s57, 16")
    e(f"s_add_u32 s58, s55, {4096 - 3072 + (EMIN<<7) + 0x8000}\n s_lshl_b32 s58, s58, 16")
    e("s_add_u32 s59, s56, 0x10000\n s_add_u32 s60, s57, 0x10000\n s_add_u32 s61, s58, 0x10000")
    for k in range(6): e(f"v_mov_b32 v{vTA+k}, 0")
    e(f"v_lshlrev_b32 v{vTL}, 2, v{vLANE}")
    mw_at = st["nk"] + 3
    qload = [f"global_load_dwordx4 {vr(vML+4*u,4)}, v{vQGO}, {sWS} offset:{1024*u} sc1" for u in range(2)]
    while st["nk"] < P.NPRO:
        if st["nk"] <= P.QPOLL_USE: g.cap(P.WPRO)
        kv_issue()
        if st["nk"] == mw_at and not P.MIXE: mix_store()
        if P.MIXE and 42 - st["tab"] < P.TABP and st["nk"] <= P.QPOLL_USE:
            for _ in range(2 if P.TABP - (42 - st["tab"]) > P.QPOLL_USE - st["nk"] + 1 else 1):
                e(f"s_call_b64 s[30:31], Ltab{'ABC'[(42 - st['tab']) % 3]}"); st["tab"] -= 1
        if st["nk"] == P.QPOLL_AT:
            if P.Q4 and P.XQ == 1: g.vm(qload[0].replace("sc1", P.QG1), ("qg", 1))
            elif P.XQ == 1:
                for u in range(2): g.vm(qload[u], ("qg", u))
            else:
                e(f"s_lshr_b32 s55, s54, 2\n s_lshl_b32 s55, s55, 8\n s_add_u32 s55, s55, 0x200000\n v_lshl_add_u32 v{vQGO}, v{vC}, 4, s55")
                g.vm(f"global_load_dwordx4 {vr(vML,4)}, v{vQGO}, {sWS} nt", ("qg", 1))
        if st["nk"] == P.QPOLL_USE:
            g.wait(("qg", 1)); stamp(g, 8, 3)
            if P.Q4 and P.XQ == 1:
                tag_poll([vML+k for k in range(4)], qload[0], 1, low4=True)
                for k in range(4): e(f"v_and_b32 v{vML+k}, -16, v{vML+k}")
                e(f"ds_write_b128 v{vQLO}, {vr(vML,4)} offset:{L_QP}")
            elif P.XQ == 1: tag_poll([vML+1, vML+3, vML+5, vML+7], "\n".join(qload), 1)
            stamp(g, 9, 3)
            for u in range(2 if P.XQ == 1 and not P.Q4 else 0): e(f"v_mov_b32 v{vML+4*u+1}, v{vML+4*u+2}\n ds_write_b64 v{vQLO}, {vr(vML+4*u,2)} offset:{L_QP + 512*u}")
    assert mw_at <= P.NPRO and mw_at - 3 < P.QPOLL_AT < P.QPOLL_USE <= P.NPRO
    stamp(g, 10, 3)
    e(f"v_lshlrev_b32 v{vDT}, 4, v{vC}\n s_waitcnt lgkmcnt(0)\n s_barrier")
    for rnd in range(4):
        for w in range(2):
            o = L_QP + (2*rnd + w)*512
            e(f"ds_read_b128 {vr(vT+8*w,4)}, v{vDT} offset:{o}\n ds_read_b128 {vr(vT+8*w+4,4)}, v{vDT} offset:{o + 256}")
        for w in range(2):
            e(f"s_waitcnt lgkmcnt({2-2*w})")
            for k in range(8): e(f"v_mov_b32 v{vB+k}, v{vT+k}" if rnd == 0 and w == 0 else f"v_add_f32 v{vB+k}, v{vB+k}, v{vT+8*w+k}")
    for k in range(4): e(f"v_cvt_pk_bf16_f32 v{vQ+k}, v{vB+2*k}, v{vB+2*k+1}" if P.XQ == 1 else f"v_mov_b32 v{vQ+k}, v{vML+k}")
    e("s_mov_b32 s4, 0xcccccccc\n s_mov_b32 s5, 0xcccccccc\n s_mov_b32 s6, 0xaaaaaaaa\n s_mov_b32 s7, 0xaaaaaaaa")
    stamp(g, 3)
    def stepA(i, t): e(f"v_add_f32_dpp v{vB + (i & 7)}, v{t}, v{t} row_mirror row_mask:0xf bank_mask:{'0x3' if i < 8 else '0xc'}")
    for G_ in range(8):
        pend = None
        for i in range(16):
            n = 16*G_ + i
            g.wait(("kv", n))
            r = ring(n); t = vDT + (i & 1)
            e(f"v_dot2_f32_bf16 v{t}, v{r}, v{vQ}, 0")
            for k in range(1, 4): e(f"v_dot2_f32_bf16 v{t}, v{r+k}, v{vQ+k}, v{t}")
            if pend is not None: stepA(*pend)
            pend = (i, t)
            after_consume(n)
            if st["tab"] and n >= P.TABK0 and (n - P.TABK0) % P.TABKE == 0:
                pre_issue(n, P.TPRE)
                e(f"s_call_b64 s[30:31], Ltab{'ABC'[(42 - st['tab']) % 3]}"); st["tab"] -= 1
        if G_ == 7: pre_issue(n, P.PRE)
        e("s_nop 2"); stepA(*pend); e("s_nop 1")
        for u in range(4):
            e(f"v_add_f32_dpp v{vT+u}, v{vB+u}, v{vB+u} row_half_mirror row_mask:0xf bank_mask:0x5")
            e(f"v_add_f32_dpp v{vT+u}, v{vB+u+4}, v{vB+u+4} row_half_mirror row_mask:0xf bank_mask:0xa")
        e("s_nop 0")
        for u in range(4): e(f"v_add_f32_dpp v{vT+4+u}, v{vT+u}, v{vT+u} quad_perm:[2,3,0,1] {DPP}")
        e(f"v_cndmask_b32 v{vT}, v{vT+4}, v{vT+6}, s[4:5]\n v_cndmask_b32 v{vT+1}, v{vT+5}, v{vT+7}, s[4:5]\n s_nop 1")
        e(f"v_add_f32_dpp v{vT+2}, v{vT}, v{vT} quad_perm:[1,0,3,2] {DPP}\n v_add_f32_dpp v{vT+3}, v{vT+1}, v{vT+1} quad_perm:[1,0,3,2] {DPP}")
        e(f"v_cndmask_b32 v{vT}, v{vT+2}, v{vT+3}, s[6:7]")
        bf16r(g, vT, vT)
        e(f"v_mul_f32 v{vT}, {f2u(128**-0.5):#x}, v{vT}")
        bf16r(g, vS+G_, vT)
        if G_ & 1: stamp(g, 4+G_//2, 1 if G_ < 7 else 0)
    assert st["tab"] == 0
    e(f"v_max3_f32 v{vT}, v{vS}, v{vS+1}, v{vS+2}\n v_max3_f32 v{vT+1}, v{vS+3}, v{vS+4}, v{vS+5}\n v_max3_f32 v{vT}, v{vS+6}, v{vS+7}, v{vT}\n v_max_f32 v{vT}, v{vT}, v{vT+1}\n s_nop 1")
    wave_reduce(g, "v_max_f32", [vT])
    e(f"v_readlane_b32 s52, v{vT}, 63\n s_nop 1")
    for k in range(8): e(f"v_subrev_f32 v{vS+k}, s52, v{vS+k}")
    for k in range(8): e(f"v_mul_f32 v{vS+k}, {f2u(LOG2E):#x}, v{vS+k}")
    for k in range(8): e(f"v_exp_f32 v{vS+k}, v{vS+k}")
    e(f"v_add_f32 v{vT}, v{vS}, v{vS+1}\n v_add_f32 v{vT+1}, v{vS+2}, v{vS+3}\n v_add_f32 v{vT+2}, v{vS+4}, v{vS+5}\n v_add_f32 v{vT+3}, v{vS+6}, v{vS+7}")
    e(f"v_add_f32 v{vT}, v{vT}, v{vT+1}\n v_add_f32 v{vT+2}, v{vT+2}, v{vT+3}\n v_add_f32 v{vT}, v{vT}, v{vT+2}")
    for k in range(8): e(f"v_cvt_pk_bf16_f32 v{vS+k}, v{vS+k}, v{vS+k}")
    wave_reduce(g, "v_add_f32", [vT] + [vTA+k for k in range(6)])
    e(f"v_mov_b32 v{vT+4}, s52\n v_mov_b32 v{vT+5}, {ST}\n v_mov_b32 v{vT+6}, v{vT}\n v_mov_b32 v{vT+7}, {ST}")
    tab_finish(g, vTA, vT+8, vB2); tab_finish(g, vTA+3, vT+12, vB2)
    for r in (9, 11, 13, 15): e(f"v_mov_b32 v{vT+r}, {ST}")
    la = g.label("Lag")
    e(f"s_lshl_b32 s55, {SW}, 4\n v_mov_b32 v{vT}, s55\n v_lshlrev_b32 v{vT+1}, 1, v{vT}\n v_mov_b32 v{vT+2}, 1\n v_mov_b32 v{vT+3}, 0")
    e("s_mov_b32 exec_lo, 0\n s_mov_b32 exec_hi, 0x80000000")
    e(f"ds_write_b128 v{vT}, {vr(vT+4,4)} offset:{L_AGG}\n ds_write_b128 v{vT+1}, {vr(vT+8,4)} offset:{L_AGG+64}\n ds_write_b128 v{vT+1}, {vr(vT+12,4)} offset:{L_AGG+80}\n s_waitcnt lgkmcnt(0)")
    e(f"ds_add_rtn_u32 v{vT+2}, v{vT+3}, v{vT+2} offset:{L_AGG+256}\n s_mov_b64 exec, -1\n s_waitcnt lgkmcnt(0)")
    e(f"v_readlane_b32 s55, v{vT+2}, 63\n s_nop 3\n s_cmp_lg_u32 s55, 3\n s_cbranch_scc1 {la}")
    e(f"ds_read_b128 {vr(vT+4,4)}, v{vL16} offset:{L_AGG}")
    e(f"s_lshl_b32 s55, s54, 6\n s_add_u32 s55, s55, {WS_ML}\n s_lshl_b32 s53, s2, 7\n s_add_u32 s53, s53, {WS_TAB - 64}")
    e(f"v_mov_b32 v{vT+8}, s55\n v_mov_b32 v{vT+9}, s53\n v_cmp_lt_u32 vcc, 3, v{vLANE}\n s_nop 1\n v_cndmask_b32 v{vT+8}, v{vT+8}, v{vT+9}, vcc\n v_add_u32 v{vT+8}, v{vT+8}, v{vL16}")
    e(f"s_mov_b64 exec, 0xfff\n s_waitcnt lgkmcnt(0)\n global_store_dwordx4 v{vT+8}, {vr(vT+4,4)}, {sWS} sc1\n s_mov_b64 exec, -1\n {la}:")
    vMLO, vTBO, vXA = vMISC+3, vMISC+4, vMISC+5
    e(f"s_lshr_b32 s55, s54, 2\n s_lshl_b32 s55, s55, 8\n s_add_u32 s55, s55, {WS_ML}\n v_add_u32 v{vMLO}, s55, v{vL16}")
    e(f"s_lshl_b32 s55, {SB}, 8\n s_add_u32 s55, s55, {WS_ZF}\n v_mov_b32 v{vB}, s55\n v_cmp_lt_u32 vcc, 15, v{vLANE}\n s_nop 1\n v_cndmask_b32 v{vMLO}, v{vMLO}, v{vB}, vcc")
    e(f"s_add_u32 s48, s32, {WS_TAB}\n s_addc_u32 s49, s33, 0\n s_lshl_b32 s50, {SFIN}, 15\n v_lshlrev_b32 v{vTBO}, 4, v0")
    g.c("final stage x values (final workgroups only): columns 3j..3j+2, j = min(tid,213), and column 0")
    e(f"v_min_u32 v{vXA}, 213, v0\n v_mul_u32_u24 v{vXA}, 6, v{vXA}\n s_mul_i32 s55, {SB}, 1280\n v_add_u32 v{vXA}, s55, v{vXA}\n v_mov_b32 v{vXF+3}, s55")
    e(f"s_mov_b32 s44, s8\n s_mov_b32 s45, s9\n s_movk_i32 s46, 2560")
    lx = g.label("Lxf")
    e(f"s_cmp_eq_u32 {SFIN}, 0\n s_cbranch_scc1 {lx}")
    for k in range(3): e(f"buffer_load_ushort v{vXF+k}, v{vXA}, s[44:47], 0 offen offset:{2*k}")
    if P.OTOUCH: e(f"global_load_dword v{vT}, v{vXF+3}, s[28:29]")
    e(f"buffer_load_ushort v{vXF+3}, v{vXF+3}, s[44:47], 0 offen\n {lx}:")
    vFA, vOPW, vOPR, vOUW = vML+4, vML+5, vML+6, vML+7
    vPA, vO0, vO1, vFW, vZ = vMISC+2, vMISC+3, vMISC+4, vMISC+5, vMISC+6
    vTB = vX
    tl = [f"s_movk_i32 s55, {k*4096}\n buffer_load_dwordx4 {vr(vTB+4*k,4)}, v{vTBO}, s[48:51], s55 offen sc1" for k in range(8)]
    mload = f"global_load_dwordx4 {vr(vML,4)}, v{vMLO}, {sWS} sc1"
    for i in range(NL):
        n = NL + i
        g.wait(("kv", n))
        rowmac(vACC, vS + i//16, i % 16, vr(ring(n),4), first=(i == 0))
        if i % 32 == 31: stamp(g, 8 + i//32, 1 if i < 96 else 0)
        after_consume(n)
        if i == P.TAB_AT:
            ls = g.label("Ltl"); e(f"s_cmp_eq_u32 {SFIN}, 0\n s_cbranch_scc1 {ls}"); e("\n".join(tl)); e(f"{ls}:"); st["tmark"] = ("kv", st["nk"])
        if i == P.TAB_USE:
            assert st["tmark"] not in g.fifo and st["tmark"][1] < st["nk"]
            ls = g.label("Lts")
            e(f"s_cmp_eq_u32 {SFIN}, 0\n s_cbranch_scc1 {ls}")
            tag_poll([vTB+1+2*k for k in range(16)], "\n".join(tl), 2)
            e(f"v_lshlrev_b32 v{vT}, 3, v0")
            for k in range(8): e(f"v_mov_b32 v{vTB+4*k+1}, v{vTB+4*k+2}\n ds_write_b64 v{vT}, {vr(vTB+4*k,2)} offset:{L_TAB + k*2048}")
            for k in range(4): e(f"v_lshlrev_b32 v{vXF+k}, 16, v{vXF+k}")
            e(f"{ls}:")
        if i == P.POLL_AT:
            lw = g.label("Lw0"); e(f"s_cmp_lg_u32 {SW}, 0\n s_cbranch_scc1 {lw}\n {mload}\n {lw}:"); st["mark"] = ("kv", st["nk"])
        if i == P.POLL_USE:
            pre_issue(n, P.PRE)
            g.c("wave 0: true max / sum of this (batch, head) -> scale factors of the workgroup's waves")
            assert st["mark"] not in g.fifo and st["mark"][1] < st["nk"]
            lw = g.label("Lw0"); e(f"s_cmp_lg_u32 {SW}, 0\n s_cbranch_scc1 {lw}")
            tag_poll([vML+1, vML+3], mload, 2)
            e(f"s_mov_b32 exec_lo, 0xffff0000\n v_mov_b32 v{vML}, s52\n v_mov_b32 v{vML+2}, 0\n s_mov_b32 exec_lo, -1")
            e(f"v_mov_b32 v{vT}, v{vML}\n s_nop 1")
            wave_reduce(g, "v_max_f32", [vT])
            e(f"v_readlane_b32 s53, v{vT}, 63\n s_nop 1")
            e(f"v_subrev_f32 v{vML}, s53, v{vML}\n v_mul_f32 v{vML}, {f2u(LOG2E):#x}, v{vML}\n v_exp_f32 v{vML}, v{vML}\n s_nop 0\n v_mul_f32 v{vT}, v{vML}, v{vML+2}\n s_nop 1")
            wave_reduce(g, "v_add_f32", [vT])
            e(f"v_readlane_b32 s53, v{vT}, 63\n s_nop 1\n v_rcp_f32 v{vT}, s53\n s_lshl_b32 s55, {SS}, 2\n v_mul_f32 v{vML}, v{vML}, v{vT}")
            e(f"v_subrev_u32 v{vT}, s55, v{vLANE}\n v_lshlrev_b32 v{vT}, 2, v{vT}\n s_lshl_b64 exec, 15, s55")
            e(f"ds_write_b32 v{vT}, v{vML} offset:{L_F}\n s_mov_b64 exec, -1\n {lw}:")
            g.c("addresses for the tail")
            e(f"v_lshrrev_b32 v{vFA}, 3, v{vC}\n v_lshlrev_b32 v{vT+1}, 10, v{vFA}\n v_lshlrev_b32 v{vFA}, 3, v{vFA}")
            e(f"s_lshl_b32 s55, {SW}, 9\n v_add_u32 v{vOPW}, s55, v{vL16}")
            e(f"v_and_b32 v{vT}, 1, v{vC}\n v_lshl_add_u32 v{vT+1}, v{vT}, 8, v{vT+1}\n v_bfe_u32 v{vT+2}, v{vC}, 1, 2\n v_lshl_add_u32 v{vT+1}, v{vT+2}, 4, v{vT+1}")
            e(f"v_lshl_add_u32 v{vT+1}, v{vG}, 2, v{vT+1}\n s_lshl_b32 s55, {SW}, 6\n v_add_u32 v{vOPR}, s55, v{vT+1}")
            e(f"s_mul_i32 s55, {SW}, 2560\n v_lshlrev_b32 v{vT}, 5, v{vC}\n v_lshl_add_u32 v{vT}, v{vG}, 4, v{vT}\n v_add_u32 v{vOUW}, s55, v{vT}")
            for k in range(4):
                e(f"v_add_u32 v{vT}, {256*k}, v0\n v_lshlrev_b32 v{vGA+4+k}, 2, v{vT}\n v_lshrrev_b32 v{vT+1}, 2, v{vT}\n v_and_b32 v{vT}, 3, v{vT}")
                e(f"v_mad_u32_u24 v{vT+1}, v{vT+1}, 3, v{vT}\n v_min_u32 v{vGA+k}, 639, v{vT+1}\n v_lshlrev_b32 v{vGA+k}, 2, v{vGA+k}")
            e(f"s_movk_i32 s55, 639\n v_cmp_lt_u32 s[6:7], s55, v{vT+1}\n s_mov_b32 s4, 0x88888888\n s_mov_b32 s5, 0x88888888")
            g.c("final stage constants")
            e(f"v_min_u32 v{vPA}, 213, v0\n v_lshlrev_b32 v{vPA}, 4, v{vPA}\n v_mul_u32_u24 v{vT}, 3, v0")
            e(f"s_movk_i32 s55, 640\n v_cmp_gt_u32 s[56:57], s55, v{vT}\n s_movk_i32 s55, 639\n v_cmp_gt_u32 s[58:59], s55, v{vT}")
            e(f"s_mul_i32 s55, {SB}, 1280\n v_lshl_add_u32 v{vT}, v{vT}, 1, s55\n v_mov_b32 v{vT+1}, 0x7ffffff0")
            e(f"v_cndmask_b32 v{vO0}, v{vT+1}, v{vT}, s[56:57]\n v_cndmask_b32 v{vO1}, v{vT+1}, v{vT}, s[58:59]")
            e(f"s_lshl_b32 s55, {SW}, 3\n v_mov_b32 v{vFW}, s55\n v_mov_b32 v{vZ}, 0")
            e(f"s_lshl_b32 s55, {SB}, 15\n s_add_u32 s55, s55, {WS_ACC}\n s_add_u32 s44, s32, s55\n s_addc_u32 s45, s33, 0\n s_mov_b32 s46, {P.R*REP_STRIDE}")
            e("s_mov_b32 s48, s28\n s_mov_b32 s49, s29\n s_mov_b32 s50, 2560")
    assert st["nwo"] == 40 and st["nk"] == 2*NL and P.TAB_USE < P.POLL_USE and P.WO_START >= 0, st
    oacc = lambda t: vX + 4*t
    e("s_nop 6\n s_mov_b32 exec_hi, 0")
    e(f"ds_write_b128 v{vOPW}, {vr(vACC,4)} offset:{L_QP}\n s_mov_b64 exec, -1")
    g.wait(("wo", 39))
    e("s_waitcnt lgkmcnt(0)\n s_barrier")
    e(f"ds_read2_b32 {vr(vT,2)}, v{vOPR} offset0:0 offset1:128\n ds_read_b64 {vr(vT+2,2)}, v{vFA} offset:{L_F}")
    e(f"s_waitcnt lgkmcnt(0)\n v_mul_f32 v{vT}, v{vT}, v{vT+2}\n v_fmac_f32 v{vT}, v{vT+1}, v{vT+3}\n s_nop 1")
    e(f"v_add_f32_dpp v{vT}, v{vT}, v{vT} row_ror:8 {DPP}\n v_cvt_pk_bf16_f32 v{vT}, v{vT}, v{vT}\n s_nop 1")
    if P.TORD:
        AO = lambda ii: vX + 32 + 4*ii
        def ab(ii):
            for r in range(4): e(f"v_and_b32_dpp v{AO(ii)+r}, v{vT}, v{vMK+r} row_newbcast:{ii} {DPP}")
        def mm(t, ii): e(f"v_mfma_f32_16x16x32_bf16 {vr(oacc(t),4)}, {vr(AO(ii),4)}, {ar(4*(5*ii+t),4)}, {'0' if ii == 0 else vr(oacc(t),4)}")
        def wr(t): e(f"s_mov_b32 exec_hi, 0\n ds_write_b128 v{vOUW}, {vr(oacc(t),4)} offset:{L_OUTP + t*512}\n s_mov_b32 exec_hi, -1")
        ab(0); ab(1)
        for ii in range(8):
            mm(0, ii); mm(1, ii)
            if ii + 2 < 8: ab(ii+2)
        for t in range(2, 5):
            for ii in range(8): mm(t, ii)
            if t == 2: wr(0)
            wr(t-1)
        e("s_nop 3"); wr(4)
    else:
        def abuild(ii):
            a = vA + 4*(ii & 1)
            for r in range(4): e(f"v_and_b32_dpp v{a+r}, v{vT}, v{vMK+r} row_newbcast:{ii} {DPP}")
        abuild(0); e("s_nop 1")
        for ii in range(8):
            a = vA + 4*(ii & 1)
            for t in range(5):
                e(f"v_mfma_f32_16x16x32_bf16 {vr(oacc(t),4)}, {vr(a,4)}, {ar(4*(5*ii+t),4)}, {'0' if ii == 0 else vr(oacc(t),4)}")
                if t == 1 and ii < 7: abuild(ii+1)
        e("s_nop 3\n s_mov_b32 exec_hi, 0")
        for t in range(5): e(f"ds_write_b128 v{vOUW}, {vr(oacc(t),4)} offset:{L_OUTP + t*512}")
    e("s_mov_b64 exec, -1\n s_waitcnt lgkmcnt(0)\n s_barrier")
    base64 = L_OUTP // 256
    for k in range(4):
        for p in range(2): e(f"ds_read2st64_b32 {vr(vT+4*k+2*p,2)}, v{vGA+k} offset0:{base64+20*p} offset1:{base64+20*p+10}")
    for k in range(4):
        r = vT+4*k
        e(f"s_waitcnt lgkmcnt({6-2*k})\n v_add_f32 v{r}, v{r}, v{r+1}\n v_add_f32 v{r+2}, v{r+2}, v{r+3}\n v_add_f32 v{r}, v{r}, v{r+2}")
        if k == 3: e(f"v_cndmask_b32 v{r}, v{r}, 0, s[6:7]")
        e(f"v_cndmask_b32 v{r}, v{r}, 1.0, s[4:5]\n buffer_atomic_add_f32 v{r}, v{vGA+4+k}, s[40:43], 0 offen sc1")
    stamp(g, 12)
    e(f"s_cmp_eq_u32 {SFIN}, 0\n s_cbranch_scc1 Ldone")
    PL = vX; H, N, Y = vT, vT+4, vT+8; N2 = vX+72
    le = g.label("Lep")
    g.c("past the tail barriers every workgroup's tag has been seen, so every workgroup has read the epoch word: advance it")
    e(f"s_cmp_lg_u32 s2, {FINAL_IDS[0]}\n s_cbranch_scc1 {le}\n s_cmp_lg_u32 {SW}, 3\n s_cbranch_scc1 {le}")
    e(f"v_mov_b32 v{vB}, {ST}\n s_mov_b64 exec, 1\n global_store_dword v{vZ}, v{vB}, {sWS} offset:{WS_E} sc1\n s_mov_b64 exec, -1\n {le}:")
    def tree(dst, regs):
        regs = list(regs)
        while len(regs) > 2:
            for a in range(0, len(regs) - 1, 2): e(f"v_add_f32 v{regs[a]}, v{regs[a]}, v{regs[a+1]}")
            regs = regs[0::2]
        e(f"v_add_f32 v{dst}, v{regs[0]}, v{regs[1]}")
    e(f"s_mov_b32 s3, {SPIN:#x}")
    if P.PM:
        e("Lpre:")
        for r in range(P.R): e(f"s_movk_i32 s55, {r*REP_STRIDE + 12}\n buffer_load_dword v{PL+r}, v{vZ}, s[44:47], s55 offen sc1")
        e("s_waitcnt vmcnt(0)")
        tree(Y, [PL+r for r in range(P.R)])
        e(f"v_cmp_gt_f32 vcc, {f2u(128.0 - P.PM):#x}, v{Y}\n s_cbranch_vccz Lpoll" + (f"\n s_sleep {P.PSL}" if P.PSL else "") + "\n s_sub_u32 s3, s3, 1\n s_cbranch_scc0 Lpre")
    e("Lpoll:")
    for r in range(P.R):
        e(f"s_movk_i32 s55, {r*REP_STRIDE}\n buffer_load_dwordx4 {vr(PL+8*r,4)}, v{vPA}, s[44:47], s55 offen sc1\n buffer_load_dwordx4 {vr(PL+8*r+4,4)}, v{vZ}, s[44:47], s55 offen sc1")
    e("s_waitcnt vmcnt(0)")
    cs = [PL+4*k+3 for k in range(2*P.R)]
    e(f"v_min_f32 v{Y}, v{cs[0]}, v{cs[1]}")
    for k in range(2, len(cs), 2): e(f"v_min3_f32 v{Y}, v{cs[k]}, v{cs[k+1]}, v{Y}")
    e(f"v_cmp_gt_f32 vcc, {f2u(128.0/P.R):#x}, v{Y}")
    for k in range(3): tree(H+k, [PL+8*r+k for r in range(P.R)])
    tree(H+3, [PL+8*r+4 for r in range(P.R)])
    e("s_cbranch_vccz Lpdone\n s_sub_u32 s3, s3, 1\n s_cbranch_scc0 Lpoll\n Lpdone:")
    stamp(g, 13)
    bf16r_n(g, [H, H+1, H+2])
    for k in range(4): e(f"v_add_f32 v{H+k}, v{H+k}, v{vXF+k}")
    bf16r_n(g, [H, H+1, H+2])
    def ln_block(src, dst, piv, slot):
        s1, s2 = vT+12, vT+13; Z = vX+64
        for k in range(3): e(f"v_sub_f32 v{Y+k}, v{src+k}, v{piv}")
        e(f"v_cndmask_b32 v{Y}, 0, v{Y}, s[56:57]\n v_cndmask_b32 v{Y+1}, 0, v{Y+1}, s[58:59]\n v_cndmask_b32 v{Y+2}, 0, v{Y+2}, s[58:59]")
        e(f"v_add_f32 v{s1}, v{Y}, v{Y+1}\n v_mul_f32 v{s2}, v{Y}, v{Y}\n v_fmac_f32 v{s2}, v{Y+1}, v{Y+1}\n v_add_f32 v{s1}, v{s1}, v{Y+2}\n v_fmac_f32 v{s2}, v{Y+2}, v{Y+2}\n s_nop 0")
        wave_reduce(g, "v_add_f32", [s1, s2]); g.L.pop()
        e(f"s_mov_b32 exec_lo, 0\n s_mov_b32 exec_hi, 0x80000000\n ds_write_b64 v{vFW}, {vr(s1,2)} offset:{L_FIN + slot*32}\n s_mov_b64 exec, -1")
        e("s_waitcnt lgkmcnt(0)\n s_barrier")
        e(f"ds_read_b128 {vr(Z,4)}, v{vZ} offset:{L_FIN + slot*32}\n ds_read_b128 {vr(Z+4,4)}, v{vZ} offset:{L_FIN + slot*32 + 16}\n s_waitcnt lgkmcnt(0)")
        e(f"v_pk_add_f32 {vr(Z,2)}, {vr(Z,2)}, {vr(Z+2,2)}\n v_pk_add_f32 {vr(Z+4,2)}, {vr(Z+4,2)}, {vr(Z+6,2)}\n v_pk_add_f32 {vr(Z,2)}, {vr(Z,2)}, {vr(Z+4,2)}")
        e(f"v_mul_f32 v{Y}, {f2u(1.0/640):#x}, v{Z}\n v_mul_f32 v{Y+1}, {f2u(1.0/640):#x}, v{Z+1}")
        e(f"v_fma_f32 v{Y+1}, -v{Y}, v{Y}, v{Y+1}\n v_add_f32 v{Y}, v{Y}, v{piv}\n v_max_f32 v{Y+1}, 0, v{Y+1}\n v_mov_b32 v{Y+2}, v{Y}\n v_mov_b32 v{vT+14}, v{Y+1}")
        bf16r_n(g, [Y+1, Y])
        e(f"v_add_f32 v{Y+1}, {f2u(1e-5):#x}, v{Y+1}")
        for k in range(3): e(f"v_sub_f32 v{dst+k}, v{src+k}, v{Y}")
        bf16r(g, Y+1, Y+1)
        e(f"v_sqrt_f32 v{Y+1}, v{Y+1}")
        bf16r_n(g, [dst, dst+1, dst+2])
        bf16r(g, Y+1, Y+1)
        e(f"v_rcp_f32 v{Y+1}, v{Y+1}\n v_sub_f32 v{Y+2}, v{Y+2}, v{Y}")
        for k in range(3): e(f"v_mul_f32 v{dst+k}, v{dst+k}, v{Y+1}")
        e(f"v_mul_f32 v{dst+3}, v{Y+2}, v{Y+1}")
        bf16r_n(g, [dst, dst+1, dst+2])
    ln_block(H, N, H+3, 0)
    if P.LN2A:
        g.c("LN(LN(h)): the inner output is (h - m) * r, so its mean is (mean - m) * r and its variance var * r^2")
        V2, M2 = vT+14, N+3
        e(f"v_mul_f32 v{V2}, v{V2}, v{Y+1}\n v_mul_f32 v{V2}, v{V2}, v{Y+1}")
        bf16r_n(g, [M2, V2])
        e(f"v_add_f32 v{V2}, {f2u(1e-5):#x}, v{V2}")
        for k in range(3): e(f"v_sub_f32 v{N2+k}, v{N+k}, v{M2}")
        bf16r(g, V2, V2)
        e(f"v_sqrt_f32 v{V2}, v{V2}")
        bf16r_n(g, [N2, N2+1, N2+2])
        bf16r(g, V2, V2)
        e(f"v_rcp_f32 v{V2}, v{V2}\n s_nop 0")
        for k in range(3): e(f"v_mul_f32 v{N2+k}, v{N2+k}, v{V2}")
        bf16r_n(g, [N2, N2+1, N2+2])
    else: ln_block(N, N2, N+3, 1)
    I = vT+8
    for k in range(3): e(f"v_bfe_u32 v{I+k}, v{N2+k}, 16, 15")
    for k in range(3): e(f"v_subrev_u32 v{I+k}, {EMIN<<7}, v{I+k}\n v_ashrrev_i32 v{N+k}, 31, v{N2+k}")
    e(f"v_max3_u32 v{vT+12}, v{I}, v{I+1}, v{I+2}\n s_movk_i32 s55, 3071")
    for k in range(3): e(f"v_min_u32 v{I+k}, s55, v{I+k}\n v_and_b32 v{N+k}, 3072, v{N+k}")
    e(f"v_cmp_lt_u32 vcc, s55, v{vT+12}" if P.XLIM == 3071 else f"v_cmp_lt_u32 vcc, {P.XLIM}, v{vT+12}")
    for k in range(3): e(f"v_add_u32 v{I+k}, v{I+k}, v{N+k}")
    for k in range(3): e(f"v_and_b32 v{N+k}, 2047, v{I+k}\n v_lshrrev_b32 v{I+k}, 10, v{I+k}")
    for k in range(3): e(f"v_and_b32 v{I+k}, 6, v{I+k}")
    for k in range(3): e(f"v_lshl_add_u32 v{I+k}, v{N+k}, 3, v{I+k}")
    for k in range(3): e(f"ds_read_u16 v{I+k}, v{I+k} offset:{L_TAB}")
    e("s_and_b64 vcc, vcc, s[56:57]\n s_cbranch_scc1 Lslow\n s_waitcnt lgkmcnt(0)\n Lback:")
    for k in range(3): e(f"v_lshlrev_b32 v{I+k}, 16, v{I+k}")
    for k in range(3): e(f"v_add_f32 v{I+k}, v{I+k}, v{H+k}")
    if P.XPERT > 0: e(f"v_cmp_eq_u32 vcc, 0, v0\n v_mov_b32 v{N}, {f2u(P.XPERT/1000):#x}\n s_nop 0\n v_cndmask_b32 v{N}, 0, v{N}, vcc\n v_add_f32 v{I}, v{I}, v{N}")
    if P.XPERT < 0:
        for k in range(3): e(f"v_add_f32 v{I+k}, {f2u(-P.XPERT/1000):#x}, v{I+k}")
    for k in range(3): e(f"v_cvt_pk_bf16_f32 v{I+k}, v{I+k}, v{I+k}")
    e(f"buffer_store_short v{I}, v{vO0}, s[48:51], 0 offen {P.OPOL}\n buffer_store_short v{I+1}, v{vO1}, s[48:51], 0 offen offset:2 {P.OPOL}\n buffer_store_short v{I+2}, v{vO1}, s[48:51], 0 offen offset:4 {P.OPOL}")
    e("Ldone:")
    if P.DIAG:
        if P.DIAG == 7: e("s_waitcnt vmcnt(0)")
        stamp(g, 14)
        e(f"s_lshl_b32 s55, s2, 3\n s_add_u32 s55, s55, {SW}\n s_lshl_b32 s55, s55, 6\n s_add_u32 s55, s55, {WS_DIAG}\n s_getreg_b32 s3, hwreg(HW_REG_XCC_ID)\n s_waitcnt vmcnt(0) lgkmcnt(0)")
        e(f"v_mov_b32 v{vT}, s55\n s_mov_b64 exec, 1")
        for k in range(15): e(f"v_mov_b32 v{vR+k}, s{66+2*k}")
        e(f"v_mov_b32 v{vR+15}, s3")
        for k in range(4): e(f"global_store_dwordx4 v{vT}, {vr(vR+4*k,4)}, {sWS} offset:{16*k}")
    e("Lend:\n s_endpgm")
    SV = vR
    e("Lslow:\n s_waitcnt lgkmcnt(0)\n s_mov_b64 s[52:53], vcc")
    for k in range(16): e(f"v_mov_b32 v{SV+k}, v{vT+k}")
    e("Lslow1:\n s_ff1_i32_b64 s55, s[52:53]\n s_bitset0_b64 s[52:53], s55\n s_mov_b32 m0, s55\n s_nop 1")
    for k in range(3): e(f"v_readlane_b32 s{56+k}, v{N2+k}, m0")
    for k in range(4): e(f"v_mov_b32 v{vTA+k}, 0")
    e(f"v_lshlrev_b32 v{vTL}, 2, v{vLANE}\n s_mov_b32 s3, 13\n s_mov_b32 s59, 0")
    e("Lslow2:\n s_call_b64 s[30:31], LtabA\n s_call_b64 s[30:31], LtabB\n s_sub_u32 s3, s3, 1\n s_cbranch_scc0 Lslow2")
    wave_reduce(g, "v_add_f32", [vTA, vTA+1, vTA+2])
    tab_finish(g, vTA, vT+10, vB2)
    e(f"s_nop 0\n v_readlane_b32 s56, v{vT+10}, 63\n v_readlane_b32 s58, v{vT+12}, 63\n s_nop 3\n s_lshr_b32 s57, s56, 16\n s_and_b32 s56, s56, 0xffff\n s_and_b32 s58, s58, 0xffff")
    for k in range(3): e(f"v_writelane_b32 v{SV+8+k}, s{56+k}, m0")
    e("s_cmp_lg_u64 s[52:53], 0\n s_cbranch_scc1 Lslow1")
    for k in range(16): e(f"v_mov_b32 v{vT+k}, v{SV+k}")
    e("s_branch Lback")
    w2, wl, wh, bl, cc = vGA, vGA+1, vGA+2, vGAp, vGAp+2
    K0 = (2/3.141592653589793)**0.5; C1 = -2*K0*LOG2E; C3 = C1*0.044715
    for part in range(3):
        e(f"Ltab{'ABC'[part]}:")
        if part == 0:
            e(f"ds_read_b32 v{vT}, v{vTL} offset:{L_MW}\n ds_read_b32 v{vT+1}, v{vTL} offset:{L_MW+4096}\n ds_read_b32 v{w2}, v{vTL} offset:{L_MW+8192}")
            e(f"v_add_u32 v{vTL}, 256, v{vTL}\n v_mov_b32 v{cc+1}, {f2u(C1):#x}\n v_mov_b32 v{cc}, {f2u(C3):#x}\n s_waitcnt lgkmcnt(0)")
            e(f"v_lshlrev_b32 v{wl}, 16, v{vT}\n v_and_b32 v{wh}, 0xffff0000, v{vT}\n v_lshlrev_b32 v{bl}, 16, v{vT+1}\n v_and_b32 v{bl+1}, 0xffff0000, v{vT+1}")
        S_ = [(vT+4*j, vT+4*j+2, 56+2*part+j, vTA+2*part+j) for j in range(2)]
        for U, Z, s_, _ in S_: e(f"v_mul_f32 v{U}, s{s_}, v{wl}\n v_mul_f32 v{U+1}, s{s_}, v{wh}")
        for U, Z, s_, _ in S_: e(f"v_cvt_pk_bf16_f32 v{U}, 0, v{U}\n v_cvt_pk_bf16_f32 v{U+1}, 0, v{U+1}")
        for U, Z, s_, _ in S_: e(f"v_pk_add_f32 {vr(U,2)}, {vr(U,2)}, {vr(bl,2)}")
        for U, Z, s_, _ in S_: e(f"v_cvt_pk_bf16_f32 v{U}, 0, v{U}\n v_cvt_pk_bf16_f32 v{U+1}, 0, v{U+1}")
        for U, Z, s_, _ in S_: e(f"v_pk_mul_f32 {vr(Z,2)}, {vr(U,2)}, {vr(U,2)}")
        for U, Z, s_, _ in S_: e(f"v_fma_f32 v{Z}, v{Z}, v{cc}, v{cc+1}\n v_fma_f32 v{Z+1}, v{Z+1}, v{cc}, v{cc+1}")
        for U, Z, s_, _ in S_: e(f"v_pk_mul_f32 {vr(Z,2)}, {vr(Z,2)}, {vr(U,2)}")
        for U, Z, s_, _ in S_: e(f"v_exp_f32 v{Z}, v{Z}\n v_exp_f32 v{Z+1}, v{Z+1}")
        for U, Z, s_, _ in S_: e(f"v_add_f32 v{Z}, 1.0, v{Z}\n v_add_f32 v{Z+1}, 1.0, v{Z+1}")
        for U, Z, s_, _ in S_: e(f"v_rcp_f32 v{Z}, v{Z}\n v_rcp_f32 v{Z+1}, v{Z+1}")
        for U, Z, s_, _ in S_: e(f"v_pk_mul_f32 {vr(Z,2)}, {vr(Z,2)}, {vr(U,2)}")
        for U, Z, s_, acc in S_: e(f"v_cvt_pk_bf16_f32 v{U}, v{Z}, v{Z+1}")
        for U, Z, s_, acc in S_: e(f"v_dot2_f32_bf16 v{acc}, v{U}, v{w2}, v{acc}")
        e("s_nop 1\n s_setpc_b64 s[30:31]")
    return g

HEADER = open("cdna_kernels/" + NAME + ".s.ref").read().split("; Override launch")[0]
DOC = """;
; One launch, 256 workgroups x 4 waves (one workgroup per CU). Workgroup = (batch, head, quarter of the keys).
;  1. q: workgroup id computes 80 rows of LN(x) @ wq for head id>>3 (both batches, one MFMA per 4 rows) and hands the
;     partial sums to the 8 workgroups of that head; K loads are already streaming meanwhile.
;  4. (o partial) @ wo from registers, added into counted f32 accumulators; one workgroup per batch finishes:
;  Hand-over words carry a tag derived from the epoch word in d_ws, which only tells this launch's words from older ones
"""

def emit():
    g = gen()
    acc = (g.nv + 3)//4*4; assert acc <= 256
    out = HEADER + f"; @launch grid=(256,1,1) block=(256,1,1) lds={LDS_BYTES}\n" + DOC
    out += '.amdgcn_target "amdgcn-amd-amdhsa--gfx950"\n.text\n'
    out += f".globl {KN}\n.p2align 8\n.type {KN},@function\n" + "\n".join(g.L) + "\n"
    out += f""".section .rodata,"a"
.p2align 6
.amdhsa_kernel {KN}
  .amdhsa_next_free_vgpr {acc + 160}
  .amdhsa_next_free_sgpr 96
  .amdhsa_accum_offset {acc}
  .amdhsa_group_segment_fixed_size 0
  .amdhsa_kernarg_size 104
  .amdhsa_user_sgpr_count 2
  .amdhsa_user_sgpr_kernarg_segment_ptr 1
  .amdhsa_system_sgpr_workgroup_id_x 1
  .amdhsa_float_denorm_mode_32 3
.end_amdhsa_kernel
"""
    return out, g

if __name__ == "__main__":
    ap = argparse.ArgumentParser()
    ap.add_argument("-o", default="cdna_kernels/" + NAME + ".s")
    ap.add_argument("set", nargs="*")
    a = ap.parse_args()
    for kv in a.set:
        k, v = kv.split("=", 1); old = getattr(P, k)
        setattr(P, k, v.replace("_", " ") if isinstance(old, str) else int(v))
    out, g = emit()
    open(a.o, "w").write(out)
    print("vgprs", g.nv, "lines", len(g.L))
```
